```python
import torch

def _softmax(x, axis=-1):
    return torch.softmax(x, dim=axis)
def _gelu(x):
    return torch.nn.functional.gelu(x, approximate="tanh")
def _silu(x):
    return torch.nn.functional.silu(x)
def _sigmoid(x):
    return torch.sigmoid(x)
def _layernorm(x, axis=-1, eps=1e-5):
    m = x.mean(dim=axis, keepdim=True)
    v = x.var(dim=axis, keepdim=True, unbiased=False)
    return (x - m) / torch.sqrt(v + eps)
def _scatter_add(tgt, idx, src, axis=0):
    return tgt.clone().index_add_(axis, idx, src)
def _segment_sum(src, seg, n):
    out = torch.zeros((n,) + src.shape[1:], dtype=src.dtype)
    return out.index_add_(0, seg, src)
def _pad(x, pw):
    flat = tuple(v for pair in reversed(pw) for v in pair)
    return torch.nn.functional.pad(x, flat)

kernel_name = 'interleave_layers__sliding_local_dilated__glu_gated_geglu__prompt'

def setup_inputs():

    _w = (lambda a: (lambda t: t.to(torch.bfloat16) if t.is_floating_point() else t)(torch.as_tensor(a)))
    def _A_setup():
        B, S, D = 1, 2048, 576
        return {
            "x": _w((lambda *s: torch.randn(*s, dtype=torch.bfloat16) * 0.05)(B, S, D)),
            "wqkv": _w((lambda *s: torch.randn(*s, dtype=torch.bfloat16) * 0.05)(D, 3 * D)),
            "wo": _w((lambda *s: torch.randn(*s, dtype=torch.bfloat16) * 0.05)(D, D)),
        }
    _A_in = _A_setup()

    def _B_setup():
        B, S, Dm, Df = 1, 2048, 576, 4608
        return {
            "x": _w((lambda *s: torch.randn(*s, dtype=torch.bfloat16) * 0.05)(B, S, Dm)),
            "w_gate": _w((lambda *s: torch.randn(*s, dtype=torch.bfloat16) * 0.8)(Dm, Df) * (Dm ** -0.5)),
            "w_up": _w((lambda *s: torch.randn(*s, dtype=torch.bfloat16) * 0.8)(Dm, Df) * (Dm ** -0.5)),
            "w_down": _w((lambda *s: torch.randn(*s, dtype=torch.bfloat16) * 0.8)(Df, Dm) * (Df ** -0.5)),
        }
    _B_in = _B_setup()

    return {
        "A_x": _A_in["x"],
        "A_wqkv": _A_in["wqkv"],
        "A_wo": _A_in["wo"],
        "B_x": _B_in["x"],
        "B_w_gate": _B_in["w_gate"],
        "B_w_up": _B_in["w_up"],
        "B_w_down": _B_in["w_down"],
    }

def reference(A_x, A_wqkv, A_wo, B_x, B_w_gate, B_w_up, B_w_down):
    def _A_ref(x, wqkv, wo):
        B, S, D = x.shape
        H = 32; Dh = D // H
        W, dil = 8, 2
        qkv = (lambda x, *d: x.permute(*d))((x @ wqkv).reshape(B, S, 3, H, Dh), 2, 0, 3, 1, 4)
        q, k, v = qkv[0], qkv[1], qkv[2]
        scale = Dh ** -0.5
        pos = torch.arange(S)
        off = torch.arange(W) * dil
        idx = pos[:, None] - off[None, :]
        mask = idx >= 0
        idx_c = torch.where(mask, idx, 0).reshape(-1)
        kg = k[:, :, idx_c, :].reshape(B, H, S, W, Dh)
        vg = v[:, :, idx_c, :].reshape(B, H, S, W, Dh)
        logits = torch.einsum("bhsd,bhswd->bhsw", q, kg) * scale
        logits = torch.where(mask[None, None, :, :], logits, -1e9)
        attn = _softmax(logits, axis=-1)
        o = torch.einsum("bhsw,bhswd->bhsd", attn, vg)
        return (lambda x, *d: x.permute(*d))(o, 0, 2, 1, 3).reshape(B, S, D) @ wo

    def _B_ref(x, w_gate, w_up, w_down):
        g = torch.einsum("bsd,df->bsf", x, w_gate)
        u = torch.einsum("bsd,df->bsf", x, w_up)
        h = _gelu(g) * u
        return torch.einsum("bsf,fd->bsd", h, w_down)

    x = A_x
    x = x + _A_ref(_layernorm(x, axis=-1), A_wqkv, A_wo)
    x = x + _B_ref(_layernorm(x, axis=-1), B_w_gate, B_w_up, B_w_down)
    x = x + _A_ref(_layernorm(x, axis=-1), A_wqkv, A_wo)
    x = x + _B_ref(_layernorm(x, axis=-1), B_w_gate, B_w_up, B_w_down)
    return x
```

```python
import re

TRANS = {"v_exp_f32", "v_log_f32", "v_rcp_f32", "v_rsq_f32", "v_sqrt_f32", "v_sin_f32", "v_cos_f32"}
REG = re.compile(r"^(-|abs\()?\|?([vas])(?:(\d+)|\[(\d+):(\d+)\])\|?\)?$")

def regs_of(tok):
    tok = tok.strip()
    if tok == "vcc": return {("s", "vcc")}
    if tok == "exec": return {("s", "exec")}
    if tok == "m0": return {("s", "m0")}
    m = REG.match(tok)
    if not m: return set()
    k = m.group(2)
    if m.group(3) is not None: return {(k, int(m.group(3)))}
    return {(k, i) for i in range(int(m.group(4)), int(m.group(5)) + 1)}

class Ins:
    __slots__ = ("text", "op", "kind", "wr", "rd", "srcc", "ab", "data", "lds", "states")
    def __init__(self, text):
        self.text = text
        body = text.split(";")[0].strip()
        parts = body.split(None, 1)
        self.op = op = parts[0] if parts else ""
        ops = []
        if len(parts) > 1:
            depth = 0; cur = ""
            for ch in parts[1]:
                if ch in "[(": depth += 1
                if ch in "])": depth -= 1
                if ch == "," and depth == 0: ops.append(cur.strip()); cur = ""
                else: cur += ch
            ops.append(cur.strip())
        last_mods = []
        if ops:
            sp = ops[-1].split()
            if sp:
                ops[-1] = sp[0]; last_mods = sp[1:]
        self.wr = set(); self.rd = set(); self.srcc = set(); self.ab = set(); self.data = set()
        self.lds = "lds" in last_mods
        self.states = 1
        R = [regs_of(o) for o in ops]
        if op.endswith(":") or op.startswith(".") or op == "":
            self.kind = "none"; self.states = 0
        elif op == "s_nop":
            self.kind = "nop"; self.states = int(ops[0], 0) + 1
        elif op.startswith("v_mfma"):
            self.kind = "mfma"; self.wr = R[0]; self.ab = R[1] | R[2]; self.srcc = R[3]; self.rd = self.ab | self.srcc
        elif op.startswith("v_cmp"):
            self.kind = "valu"; self.wr = R[0]; self.rd = set().union(*R[1:])
        elif op.startswith("v_permlane") and "swap" in op:
            self.kind = "valu"; self.wr = R[0] | R[1]; self.rd = R[0] | R[1]
        elif op.startswith("v_"):
            self.kind = "valu"; self.wr = R[0]; self.rd = set().union(*R[1:]) if len(R) > 1 else set()
            if op.startswith(("v_fmac", "v_dot2c", "v_pk_fmac")) or "dpp" in op or any(m.startswith(("row_", "quad_perm")) for m in last_mods):
                self.rd |= R[0]
            if op.startswith("v_cndmask") and len(ops) == 3: self.rd |= {("s", "vcc")}
            if "_co_" in op: self.wr |= R[1]; self.rd = set().union(*R[2:])
        elif op.startswith(("buffer_load", "global_load")):
            self.kind = "vmem"
            if self.lds: self.rd = set().union(*R) | {("s", "m0")}
            else:
                self.wr = R[0]; self.rd = set().union(*R[1:])
                if "d16" in op: self.rd |= set()
        elif op.startswith(("buffer_store", "buffer_atomic")):
            self.kind = "vmem"; self.data = R[0]; self.rd = set().union(*R)
        elif op.startswith(("global_store", "global_atomic")):
            self.kind = "vmem"; self.data = R[1]; self.rd = set().union(*R)
        elif op.startswith(("buffer_inv", "buffer_wbl2")):
            self.kind = "vmem"
        elif op.startswith(("ds_read", "ds_bpermute", "ds_permute", "ds_swizzle")):
            self.kind = "ds"; self.wr = R[0]; self.rd = set().union(*R[1:])
        elif op.startswith("ds_"):
            self.kind = "ds"; self.rd = set().union(*R)
        elif op.startswith(("s_load", "s_memtime", "s_memrealtime", "s_buffer_load")):
            self.kind = "smem"; self.wr = R[0]; self.rd = set().union(*R[1:]) if len(R) > 1 else set()
        elif op.startswith(("s_waitcnt", "s_barrier", "s_endpgm", "s_branch", "s_cbranch", "s_setprio", "s_sleep")):
            self.kind = "ctl"
        elif op.startswith("s_cmp"):
            self.kind = "salu"; self.rd = set().union(*R)
        elif op.startswith("s_"):
            self.kind = "salu"; self.wr = R[0]; self.rd = set().union(*R[1:]) if len(R) > 1 else set()
            if "saveexec" in op: self.wr |= {("s", "exec")}
        else:
            raise ValueError("unknown instruction: " + text)

    def is_dpp(self):
        return "row_" in self.text or "quad_perm" in self.text or self.op.startswith("v_permlane")

def need(p, c):
    n = 0
    vec = lambda s: {r for r in s if r[0] in "va"}
    sc = lambda s: {r for r in s if r[0] == "s"}
    if p.kind == "valu":
        pw = vec(p.wr); ps = sc(p.wr)
        if pw:
            if c.kind == "mfma" and pw & c.rd: n = max(n, 2)
            if c.kind == "valu" and c.is_dpp() and pw & c.rd: n = max(n, 2)
            if c.op.startswith(("v_readlane", "v_readfirstlane")) and pw & c.rd: n = max(n, 1)
            if p.op in TRANS and c.kind == "valu" and pw & c.rd: n = max(n, 1)
        if ps:
            if c.kind == "valu" and ps & c.rd: n = max(n, 4 if c.op.startswith(("v_readlane", "v_writelane")) else 2)
            if c.kind == "vmem" and ps & c.rd: n = max(n, 5)
            if c.kind in ("salu", "smem") and ps & c.rd: n = max(n, 1)
    if p.kind == "mfma":
        big = "32x32" in p.op
        d = p.wr
        if c.kind == "mfma":
            if d & c.ab: n = max(n, 12 if big else 8)
            if d & c.srcc and (d != c.srcc or p.op != c.op): n = max(n, 10 if big else 6)
            if d & c.wr and d != c.srcc: n = max(n, 10 if big else 6)
        elif c.kind in ("valu", "vmem", "ds") and d & (c.rd | c.wr): n = max(n, 12 if big else 8)
        if c.kind == "valu" and p.srcc & c.wr: n = max(n, 7 if big else 3)
    if p.kind == "salu" and ("s", "m0") in p.wr and c.kind == "vmem" and c.lds: n = max(n, 1)
    if p.kind == "vmem" and p.data and ("x4" in p.op or "x3" in p.op) and p.data & c.wr: n = max(n, 2)
    return n

class Asm:
    def __init__(self):
        self.lines = []
    def __call__(self, s, *more):
        for x in (s,) + more:
            if isinstance(x, (list, tuple)):
                for y in x: self(y)
            elif x is not None:
                for ln in x.split("\n"):
                    ln = ln.strip()
                    if ln: self.lines.append(ln)
    def label(self, name): self.lines.append(name + ":")

def pad_hazards(lines, stats=None):
    out = []; hist = []
    for ln in lines:
        if ln.startswith(";"): out.append(ln); continue
        ins = Ins(ln)
        if ins.kind == "none": out.append(ln); continue
        dist = 0; short = 0
        for p in reversed(hist):
            if dist >= 12: break
            k = need(p, ins)
            if k > dist: short = max(short, k - dist)
            dist += p.states
        if short:
            nop = f"s_nop {short-1}"
            out.append(nop); hist.append(Ins(nop))
            if stats is not None: stats.append((short, ln))
        out.append(ln); hist.append(ins)
        if len(hist) > 16: hist = hist[-16:]
    return out

def check_waits(lines, name=""):
    vm = []; lg = []; errs = []
    for n, ln in enumerate(lines):
        if ln.startswith(";"): continue
        ins = Ins(ln)
        if ins.kind == "none": continue
        if ins.op == "s_waitcnt":
            m = re.search(r"vmcnt\((\d+)\)", ln)
            if m:
                k = int(m.group(1)); assert k <= 63, ln
                vm = vm[len(vm)-k:] if k and len(vm) > k else ([] if k == 0 else vm)
            m = re.search(r"lgkmcnt\((\d+)\)", ln)
            if m:
                k = int(m.group(1)); assert k <= 15, ln
                if k == 0: lg = []
                else:
                    ds = [x for x in lg]
                    if not any(x.kind == "smem" for x in lg):
                        lg = ds[len(ds)-k:] if len(ds) > k else ds
                    else:
                        sm = [x for x in lg if x.kind == "smem"]; dd = [x for x in lg if x.kind != "smem"]
                        lg = sm + (dd[len(dd)-k:] if len(dd) > k else dd)
            continue
        touch = ins.rd | ins.wr
        for o in vm + lg:
            hit = o.wr & touch
            if hit and not (ins.kind == "vmem" and o.kind == "vmem" and ins.wr == o.wr and not (ins.rd & o.wr)):
                errs.append(f"{name}:{n}: '{ln}' touches {sorted(hit)[:3]} of outstanding '{o.text}'")
        if ins.kind == "vmem": vm.append(ins)
        if ins.kind in ("ds", "smem"): lg.append(ins)
    return errs

def descriptor(name, vgpr, accum, sgpr=102):
    return f""".p2align 6
.amdhsa_kernel {name}
  .amdhsa_next_free_vgpr {vgpr}
  .amdhsa_next_free_sgpr {sgpr}
  .amdhsa_accum_offset {accum}
  .amdhsa_group_segment_fixed_size 0
  .amdhsa_kernarg_size 80
  .amdhsa_user_sgpr_count 2
  .amdhsa_user_sgpr_kernarg_segment_ptr 1
  .amdhsa_system_sgpr_workgroup_id_x 1
.end_amdhsa_kernel
"""
```

```python
from gen_common import *
from gen_a2 import dma_copy
import math

XCH = 147456
A1_LDS = XCH + 4*3072

def gen_a1(a, sL, cp=""):
    vm = VM(a)
    ACC, RING, NW = 32, 216, 8
    HA = ACC + 64
    VB = [V_L16, 4, 5]; VH = [[6, 7, 8], [9, 10, 11]]
    acc = lambda t, j: ACC + (2*t + j)*4
    a(f"s_lshr_b32 s20, s{S_I}, 4", f"s_lshl_b32 s21, s{S_X}, 1", "s_add_u32 s20, s20, s21")
    a(f"s_and_b32 s21, s{S_I}, 15")
    a(f"s_mul_i32 s22, s21, {PQ_TASK}", f"s_mul_i32 s23, s{S_WAVE}, {36*1024}", "s_add_u32 s22, s22, s23", f"s_add_u32 s22, s22, {PQ}")
    wt = dma_copy(a, vm, 36, 22, 23)
    a("s_lshl_b32 s24, s20, 3", "s_sub_u32 s25, s24, 1", "s_max_i32 s25, s25, 0", f"s_mul_i32 s25, s25, {TILE}",
      f"s_lshl_b32 s26, s{S_WAVE}, 1", "s_add_u32 s24, s24, s26", f"s_mul_i32 s24, s24, {TILE}")
    a(f"s_add_u32 s26, s24, s{sL['XN']}", f"s_add_u32 s27, s26, {TILE}", f"s_add_u32 s28, s25, s{sL['XN']}")
    xt = []
    for k in range(18):
        if k % 4 == 0 and k: a("s_add_u32 s26, s26, 4096", "s_add_u32 s27, s27, 4096", "s_add_u32 s28, s28, 4096")
        for j in range(3):
            t = vm.op(f"buffer_load_dwordx4 a[{72*j+4*k}:{72*j+4*k+3}], v{V_L16}, {WS}, s{26+j} offen offset:{(k % 4)*1024} {cp}")
        xt.append(t)
    a(f"v_add_u32 v4, 0x10000, v{V_L16}", f"v_add_u32 v5, 0x20000, v{V_L16}")
    a(f"s_cmp_eq_u32 s{S_WAVE}, 3", f"s_cselect_b32 s29, 0, s{S_WAVE}", "s_lshl_b32 s30, s29, 10")
    for h, t0 in enumerate((2, 5)):
        a(f"s_add_u32 s31, s30, {t0*1024}")
        for n in range(3): a(f"v_add_u32 v{VH[h][n]}, s31, v{VB[n]}")
    a(f"v_and_b32 v12, 15, v{V_LANE}", f"v_lshrrev_b32 v13, 4, v{V_LANE}", "v_lshlrev_b32 v14, 2, v13", "v_sub_u32 v14, v12, v14")
    for r in range(4):
        a(f"v_subrev_u32 v15, {r}, v14", f"v_cmp_gt_u32 s[{52+2*r}:{53+2*r}], 8, v15", f"v_cmp_gt_i32 s[{44+2*r}:{45+2*r}], -8, v15")
    a("s_and_b32 s31, s20, 7", f"s_or_b32 s31, s31, s{S_WAVE}", "s_cmp_eq_u32 s31, 0")
    for r in range(4): a(f"s_cselect_b64 s[{60+2*r}:{61+2*r}], 0, s[{44+2*r}:{45+2*r}]")
    vm.wait(wt[-1]); a("s_barrier")
    seq = []
    for k0 in range(0, 18, 2):
        for t in list(range(8)) + ["h0", "h1"]:
            seq += [(k0, t), (k0+1, t)]
    def rd(n):
        k, t = seq[n]; w = RING + 4*(n % NW)
        if isinstance(t, str):
            off = k*8192; base = VH[int(t[1])]
        else:
            off = (k*8 + t)*1024; base = VB
        return f"ds_read_b128 a[{w}:{w+3}], v{base[off // 65536]} offset:{off % 65536}"
    PF_ = 6
    for n in range(PF_): a(rd(n))
    issued = PF_
    for n in range(0, len(seq), 2):
        k0, t = seq[n]
        if t == 0: vm.wait(xt[k0+1])
        a(f"s_waitcnt lgkmcnt({issued - n - 2})")
        jl = [2] if isinstance(t, str) else [0, 1]
        swapped = t == "h1" or (not isinstance(t, str) and t >= 5)
        cnt = 0
        for j in jl:
            d = HA + 4*int(t[1]) if isinstance(t, str) else acc(t, j)
            for c in range(2):
                w = f"a[{RING + 4*((n+c) % NW)}:{RING + 4*((n+c) % NW) + 3}]"
                x = f"a[{72*j + 4*(k0+c)}:{72*j + 4*(k0+c) + 3}]"
                A, B = (x, w) if swapped else (w, x)
                a(f"v_mfma_f32_16x16x32_bf16 v[{d}:{d+3}], {A}, {B}, {'0' if k0+c == 0 else f'v[{d}:{d+3}]'}")
                cnt += 1
                if (len(jl) == 1 or c == 1) and issued < len(seq):
                    a(rd(issued)); issued += 1
    KP, K0, K1 = 104, 110, 116
    VV = [122, 128, 134]
    QO = [[140, 144], [148, 152]]
    HC, XR_ = 156, 160
    def cvt(dst, src): a(f"v_cvt_pk_bf16_f32 v{dst}, v{src}, v{src+1}", f"v_cvt_pk_bf16_f32 v{dst+1}, v{src+2}, v{src+3}")
    KT = [K0, K1]
    cvt(K1, acc(2, 1)); cvt(K1+4, acc(3, 1)); cvt(XR_, acc(4, 1))
    for n in range(3): cvt(VV[n]+4, acc(5+n, 1))
    cvt(HC, HA); cvt(HC+2, HA+4)
    a(f"v_lshlrev_b32 v14, 3, v{V_LANE}", f"s_mul_i32 s31, s{S_WAVE}, 3072", f"s_add_u32 s32, s31, {XCH}", "v_add_u32 v15, s32, v14")
    a("s_lshl_b32 s33, s29, 9", f"s_add_u32 s33, s33, {XCH}", "v_add_u32 v16, s33, v14")
    a(f"ds_write_b64 v16, v[{HC}:{HC+1}]", f"ds_write_b64 v16, v[{HC+2}:{HC+3}] offset:1536")
    a(f"s_cmp_eq_u32 s{S_WAVE}, 3", "s_cbranch_scc1 L_a1_noxch")
    for n, r in enumerate([K1, K1+4, XR_, VV[0]+4, VV[1]+4, VV[2]+4]):
        a(f"ds_write_b64 v15, v[{r}:{r+1}] offset:{3072 + 512*n}")
    a.label("L_a1_noxch")
    cvt(K0, acc(2, 0)); cvt(K0+4, acc(3, 0))
    for n in range(3): cvt(VV[n]+2, acc(5+n, 0))
    for j in range(2):
        q0, q1 = QO[j]; x = acc(4, j)
        cvt(q0, acc(0, j)); cvt(q1+2, acc(1, j))
        a(f"v_cvt_pk_bf16_f32 v{q0+2}, v{x}, v{x+1}", f"v_cvt_pk_bf16_f32 v{q1+1}, v{x+2}, v{x+3}",
          f"v_mov_b32 v{q0+3}, 0", f"v_mov_b32 v{q1}, 0", f"v_mov_b32 v{KT[j]+2}, 0", f"v_mov_b32 v{KT[j]+3}, 0")
        a(f"v_permlane16_swap_b32 v{q0+2}, v{KT[j]+2}", f"v_permlane16_swap_b32 v{q1+1}, v{KT[j]+3}")
    a(f"v_add_u32 v17, 16, v12", "v_add_u32 v18, 32, v12", f"v_cmp_gt_u32 vcc, 16, v{V_LANE}", "v_cndmask_b32 v17, v18, v17, vcc",
      "v_lshlrev_b32 v17, 3, v17", "v_add_u32 v17, s32, v17")
    a("s_waitcnt lgkmcnt(0)", "s_barrier")
    a(f"ds_read_b64 v[{KP}:{KP+1}], v15", f"ds_read_b64 v[{KP+4}:{KP+5}], v15 offset:512", f"ds_read_b64 v[{KP+2}:{KP+3}], v17 offset:1024")
    for n in range(3): a(f"ds_read_b64 v[{VV[n]}:{VV[n]+1}], v15 offset:{1536 + 512*n}")
    units = [(1, 0), (1, 1), (0, 0), (0, 1)]
    SS = lambda u: 32 + 8*u
    PP = lambda u: 64 + 4*u
    OO = lambda u: 80 + 8*u if u < 3 else 164
    for u, (j, h) in enumerate(units):
        if u == 2: a("s_waitcnt lgkmcnt(0)")
        prev = (K0 if j == 1 else KP) + 2*h; cur = KT[j] + 2*h; q = QO[j][h]
        a(f"v_mfma_f32_16x16x32_bf16 v[{SS(u)}:{SS(u)+3}], v[{prev}:{prev+3}], v[{q}:{q+3}], 0",
          f"v_mfma_f32_16x16x32_bf16 v[{SS(u)+4}:{SS(u)+7}], v[{cur}:{cur+3}], v[{q}:{q+3}], 0")
    a(f"v_mov_b32 v18, {f32(-3.0e38)}", f"s_mov_b32 s34, {f32(math.log2(math.e) / math.sqrt(DH))}")
    MX, TM, SM = 20, 24, 28
    for r in range(8):
        for u, (j, h) in enumerate(units):
            m = (52 + 2*(r-4)) if r >= 4 else ((44 if j == 1 else 60) + 2*r)
            a(f"v_cndmask_b32 v{SS(u)+r}, v18, v{SS(u)+r}, s[{m}:{m+1}]")
    for u in range(4): a(f"v_max3_f32 v{MX+u}, v{SS(u)}, v{SS(u)+1}, v{SS(u)+2}")
    for u in range(4): a(f"v_max3_f32 v{MX+u}, v{MX+u}, v{SS(u)+3}, v{SS(u)+4}")
    for u in range(4): a(f"v_max3_f32 v{MX+u}, v{MX+u}, v{SS(u)+5}, v{SS(u)+6}")
    for u in range(4): a(f"v_max_f32 v{MX+u}, v{MX+u}, v{SS(u)+7}")
    xreduce(a, [MX+u for u in range(4)], TM, op="v_max_f32")
    for u in range(4): a(f"v_mul_f32 v{MX+u}, s34, v{MX+u}")
    for r in range(8):
        for u in range(4): a(f"v_fma_f32 v{SS(u)+r}, v{SS(u)+r}, s34, -v{MX+u}")
        for u in range(4): a(f"v_exp_f32 v{SS(u)+r}, v{SS(u)+r}")
    for u in range(4): a(f"v_add_f32 v{SM+u}, v{SS(u)}, v{SS(u)+1}")
    for r in range(2, 8):
        for u in range(4): a(f"v_add_f32 v{SM+u}, v{SM+u}, v{SS(u)+r}")
    xreduce(a, [SM+u for u in range(4)], TM)
    for u in range(4): a(f"v_rcp_f32 v{SM+u}, v{SM+u}")
    for r in range(8):
        for u in range(4): a(f"v_mul_f32 v{SS(u)+r}, v{SS(u)+r}, v{SM+u}")
    for u in range(4):
        for d in range(4): a(f"v_cvt_pk_bf16_f32 v{PP(u)+d}, v{SS(u)+2*d}, v{SS(u)+2*d+1}")
    for u, (j, h) in enumerate(units):
        va = VV[h] + 2*j; vx = VV[2] + 2*j
        a(f"v_mfma_f32_16x16x32_bf16 v[{OO(u)}:{OO(u)+3}], v[{va}:{va+3}], v[{PP(u)}:{PP(u)+3}], 0",
          f"v_mfma_f32_16x16x32_bf16 v[{OO(u)+4}:{OO(u)+7}], v[{vx}:{vx+3}], v[{PP(u)}:{PP(u)+3}], 0")
    a("v_lshlrev_b32 v14, 4, v12", f"v_mov_b32 v15, {OOB}", f"v_cmp_gt_u32 vcc, 16, v{V_LANE}", "v_cndmask_b32 v14, v15, v14, vcc")
    a(f"s_add_u32 s26, s24, s{sL['OB']}", "s_lshl_b32 s27, s21, 10", "s_add_u32 s27, s27, s26",
      "s_lshr_b32 s28, s21, 1", "s_lshl_b32 s28, s28, 8", "s_and_b32 s30, s21, 1", "s_lshl_b32 s30, s30, 3", "s_add_u32 s28, s28, s30",
      f"s_add_u32 s28, s28, {64*256}", "s_add_u32 s28, s28, s26", f"s_add_u32 s30, s27, {TILE}", f"s_add_u32 s31, s28, {TILE}")
    for j in (1, 0):
        u0 = units.index((j, 0)); u1 = units.index((j, 1)); o = 172 + 8*j
        cvt(o, OO(u0)); cvt(o+2, OO(u1))
        a(f"v_cvt_pk_bf16_f32 v{o+4}, v{OO(u0)+4}, v{OO(u0)+5}", f"v_cvt_pk_bf16_f32 v{o+5}, v{OO(u1)+6}, v{OO(u1)+7}")
        vm.op(f"buffer_store_dwordx4 v[{o}:{o+3}], v{V_L16}, {WS}, s{30 if j else 27} offen {cp}")
        vm.op(f"buffer_store_dwordx2 v[{o+4}:{o+5}], v14, {WS}, s{31 if j else 28} offen {cp}")
```

```python
from gen_common import *

def dma_copy(a, vm, nfrag, s_src, s_lds, s_tmp=40):
    tags = []
    for q0 in range(0, nfrag, 4):
        a(f"s_add_u32 m0, s{s_lds}, {q0*1024}", f"s_add_u32 s{s_tmp}, s{s_src}, {q0*1024}")
        for q in range(min(4, nfrag - q0)):
            tags.append(vm.op(f"buffer_load_dwordx4 v{V_L16}, {WS}, s{s_tmp} offen offset:{q*1024} lds"))
    return tags

def gen_a2(a, sL, cp=""):
    vm = VM(a)
    ACC, RES, RING, NW = 32, 56, 216, 8
    VU8, VLB = 4, 5
    a(f"s_lshr_b32 s20, s{S_I}, 3", f"s_lshl_b32 s21, s{S_X}, 2", "s_add_u32 s20, s20, s21", "s_lshl_b32 s20, s20, 2",
      f"s_add_u32 s20, s20, s{S_WAVE}")
    a(f"s_and_b32 s21, s{S_I}, 7")
    a(f"s_mul_i32 s22, s21, {PO_TASK}", f"s_mul_i32 s23, s{S_WAVE}, {23*1024}", "s_add_u32 s22, s22, s23", f"s_add_u32 s22, s22, {PO}")
    wt = dma_copy(a, vm, 23, 22, 23)
    a(f"s_mul_i32 s24, s20, {TILE}", f"s_add_u32 s25, s24, s{sL['OB']}")
    xt = []
    for k in range(18):
        if k % 4 == 0 and k: a("s_add_u32 s25, s25, 4096")
        xt.append(vm.op(f"buffer_load_dwordx4 a[{4*k}:{4*k+3}], v{V_L16}, {WS}, s25 offen offset:{(k % 4)*1024} {cp}"))
    a(f"s_mul_i32 s26, s21, {9*256}", "s_add_u32 s26, s26, s24", f"s_add_u32 s27, s26, s{sL['XR']}")
    a(f"v_and_b32 v6, 15, v{V_LANE}", f"v_lshrrev_b32 v7, 4, v{V_LANE}", "v_lshlrev_b32 v8, 4, v6", "v_lshl_add_u32 v8, v7, 3, v8",
      "v_add_u32 v8, 2048, v8", f"v_mov_b32 v9, {OOB}", f"v_cmp_gt_u32 vcc, 32, v{V_LANE}", f"v_cndmask_b32 v{VU8}, v9, v8, vcc")
    rt = [vm.op(f"buffer_load_dwordx4 v[{RES}:{RES+3}], v{V_L16}, {WS}, s27 offen {cp}"),
          vm.op(f"buffer_load_dwordx4 v[{RES+4}:{RES+7}], v{V_L16}, {WS}, s27 offen offset:1024 {cp}"),
          vm.op(f"buffer_load_dwordx2 v[{RES+8}:{RES+9}], v{VU8}, {WS}, s27 offen {cp}")]
    a(f"v_add_u32 v{VLB}, 0x10000, v{V_L16}")
    vm.wait(wt[-1]); a("s_barrier")
    order = [(k0 + c, t) for k0 in range(0, 18, 2) for t in range(5) for c in range(2)]
    def rd(n):
        k, t = order[n]; off = (k*5 + t)*1024; w = RING + 4*(n % NW)
        return f"ds_read_b128 a[{w}:{w+3}], v{V_L16 if off < 65536 else VLB} offset:{off % 65536}"
    PF_ = 6
    for n in range(PF_): a(rd(n))
    for n, (k, t) in enumerate(order):
        if n % 10 == 0: vm.wait(xt[k+1])
        issued = min(len(order), n + PF_)
        if n % 2 == 0: a(f"s_waitcnt lgkmcnt({max(0, issued - n - 2)})")
        w = RING + 4*(n % NW); d = ACC + 4*t
        a(f"v_mfma_f32_16x16x32_bf16 v[{d}:{d+3}], a[{w}:{w+3}], a[{4*k}:{4*k+3}], {'0' if k == 0 else f'v[{d}:{d+3}]'}")
        if n + PF_ < len(order): a(rd(n + PF_))
    vm.wait(rt[-1])
    for t in range(5):
        for h in range(2):
            r = RES + 2*t + h; d = ACC + 4*t + 2*h; u = 68 + 2*((2*t+h) % 4)
            a(f"v_lshlrev_b32 v{u}, 16, v{r}", f"v_and_b32 v{u+1}, 0xffff0000, v{r}",
              f"v_add_f32 v{d}, v{d}, v{u}", f"v_add_f32 v{d+1}, v{d+1}, v{u+1}")
    OUT = 80
    for t in range(5):
        for h in range(2): a(f"v_cvt_pk_bf16_f32 v{OUT+2*t+h}, v{ACC+4*t+2*h}, v{ACC+4*t+2*h+1}")
    a(f"s_add_u32 s27, s26, s{sL['X1']}")
    vm.op(f"buffer_store_dwordx4 v[{OUT}:{OUT+3}], v{V_L16}, {WS}, s27 offen {cp}")
    vm.op(f"buffer_store_dwordx4 v[{OUT+4}:{OUT+7}], v{V_L16}, {WS}, s27 offen offset:1024 {cp}")
    vm.op(f"buffer_store_dwordx2 v[{OUT+8}:{OUT+9}], v{VU8}, {WS}, s27 offen {cp}")
    a(f"v_add_f32 v10, v{ACC}, v{ACC+1}", f"v_mul_f32 v11, v{ACC}, v{ACC}", f"v_mul_f32 v13, v{ACC+1}, v{ACC+1}", "v_mov_b32 v12, 0")
    for e in range(2, 20, 2):
        a(f"v_add_f32 v10, v10, v{ACC+e}", f"v_add_f32 v12, v12, v{ACC+e+1}",
          f"v_fmac_f32 v11, v{ACC+e}, v{ACC+e}", f"v_fmac_f32 v13, v{ACC+e+1}, v{ACC+e+1}")
    a("v_add_f32 v10, v10, v12", "v_add_f32 v11, v11, v13")
    xreduce(a, [10, 11], 12)
    a("v_lshlrev_b32 v8, 3, v6", f"v_cmp_gt_u32 vcc, 16, v{V_LANE}", "v_cndmask_b32 v8, v9, v8, vcc")
    a("s_lshl_b32 s27, s20, 10", "s_lshl_b32 s28, s21, 7", "s_add_u32 s27, s27, s28", f"s_add_u32 s27, s27, s{sL['ST']}")
    vm.op(f"buffer_store_dwordx2 v[10:11], v8, {WS}, s27 offen {cp}")
```

```python
from asmlib import *
from layout import *

KA = dict(x=0, wqkv=8, wo=16, wg=32, wu=40, wd=48, out=56, dbg=64, ws=72)
WS = "s[8:11]"
S_WAVE = 4
S_X, S_I = 5, 6
V_LANE, V_L16 = 1, 2
OOB = 0x7ff00000

class VM:
    def __init__(self, a): self.a = a; self.n = 0
    def op(self, text):
        self.a(text); self.n += 1
        return self.n
    def count_after(self, tag): return self.n - tag
    def wait(self, tag):
        self.a(f"s_waitcnt vmcnt({min(63, self.n - tag)})")

def srd(a, dst, src, nbytes):
    a(f"s_mov_b32 s{dst}, s{src}", f"s_and_b32 s{dst+1}, s{src+1}, 0xffff",
      f"s_mov_b32 s{dst+2}, {nbytes}", f"s_mov_b32 s{dst+3}, 0x20000")

def entry(a, name, nwg, end):
    a(".p2align 8"); a(f".globl {name}"); a(f".type {name},@function"); a.label(name)
    a(f"s_cmp_ge_u32 s2, {nwg}", f"s_cbranch_scc1 {end}")

def common(a):
    a(f"s_load_dwordx2 s[12:13], s[0:1], {KA['ws']}")
    a(f"v_and_b32 v{V_LANE}, 63, v0", "v_lshrrev_b32 v3, 6, v0", f"v_lshlrev_b32 v{V_L16}, 4, v{V_LANE}")
    a(f"v_readfirstlane_b32 s{S_WAVE}, v3")
    a(f"s_and_b32 s{S_X}, s2, 7", f"s_lshr_b32 s{S_I}, s2, 3")
    a("s_waitcnt lgkmcnt(0)")
    srd(a, 8, 12, WS_BYTES)

def xreduce(a, regs, tmp, steps=("16", "32"), op="v_add_f32"):
    for st in steps:
        if st == "8":
            for r in regs: a(f"{op}_dpp v{r}, v{r}, v{r} row_ror:8 row_mask:0xf bank_mask:0xf")
            continue
        for n, r in enumerate(regs): a(f"v_mov_b32 v{tmp+n}, v{r}")
        for n, r in enumerate(regs): a(f"v_permlane{st}_swap_b32 v{r}, v{tmp+n}")
        for n, r in enumerate(regs): a(f"{op} v{r}, v{r}, v{tmp+n}")

def f32(x):
    import struct
    return "0x%08x" % struct.unpack("<I", struct.pack("<f", x))[0]
```

```python
from gen_common import *
import math

STAGE, NS, PER = 24, 6, 6
F_LDS = STAGE * NS * 1024
NSTAGE = (486 + STAGE - 1) // STAGE
MF = "v_mfma_f32_16x16x32_bf16"

def cost(x):
    if callable(x) or isinstance(x, tuple): return 1
    return 2 if x.split()[0] in TRANS else 1

def gen_f(a, sL, tail, cp="sc1", xcp="", mapping=0):
    vm = VM(a); tag = {}
    VJ = [V_L16, 4, 5, 6]; VB = [V_L16, 7, 8]
    VODD, VFS, VFL, VFV = 9, 10, 11, 12
    XV, RING, NW = 16, 48, 8
    ACC = [80, 112]; HOWN, TMP, HS, CON = 144, 208, 224, 232
    OUT = 112
    sX, sW, sWd, sH, sM, sP, sF = 20, 21, 22, 24, 28, 31, 34
    if mapping == 0:
        a(f"s_and_b32 s40, s{S_X}, 1", "s_lshl_b32 s40, s40, 2", f"s_lshr_b32 s41, s{S_I}, 3", "s_add_u32 s40, s40, s41",
          f"s_lshr_b32 s41, s{S_X}, 1", "s_lshl_b32 s41, s41, 3", f"s_and_b32 s42, s{S_I}, 7", "s_add_u32 s41, s41, s42")
    else:
        a(f"s_lshr_b32 s40, s{S_I}, 2", f"s_lshl_b32 s41, s{S_X}, 2", f"s_and_b32 s42, s{S_I}, 3", "s_add_u32 s41, s41, s42")
    a("s_lshr_b32 s42, s41, 2", "s_and_b32 s43, s41, 3")
    a("s_lshl_b32 s44, s40, 4", f"s_lshl_b32 s45, s{S_WAVE}, 2", "s_add_u32 s44, s44, s45")
    a(f"s_mul_i32 s46, s44, {TILE}", f"s_add_u32 s{sX}, s46, s{sL['X1']}")
    a(f"s_mul_i32 s{sWd}, s{S_WAVE}, {PER*1024}", f"s_mul_i32 s{sW}, s41, {PF_TASK}", f"s_add_u32 s{sW}, s{sW}, s{sWd}", f"s_add_u32 s{sW}, s{sW}, {PF}")
    for j in range(1, 4): a(f"v_add_u32 v{VJ[j]}, {j*TILE}, v{V_L16}")
    a(f"v_and_b32 v13, 15, v{V_LANE}", f"v_lshrrev_b32 v14, 4, v{V_LANE}")
    a("v_lshlrev_b32 v15, 3, v13", "v_lshl_add_u32 v15, v14, 8, v15")
    a("s_lshl_b32 s47, s44, 10", f"s_add_u32 s47, s47, s{sL['ST']}")
    for j in range(4):
        for h in range(2):
            r = HOWN + 4*j + 2*h
            tag["st"] = vm.op(f"buffer_load_dwordx2 v[{r}:{r+1}], v15, {WS}, s47 offen offset:{j*1024 + h*128} {xcp}")
    def dma(stage):
        out = []
        slot = stage % NS
        for q0 in (0, 4):
            out += [f"s_add_u32 m0, s{sWd}, {slot*STAGE*1024 + q0*1024}", f"s_add_u32 s23, s{sW}, {stage*STAGE*1024 + q0*1024}"]
            out += [("vm", f"buffer_load_dwordx4 v{V_L16}, {WS}, s23 offen offset:{q*1024} lds", ("w", stage)) for q in range(min(4, PER - q0))]
        return out
    def xreg(k, j): return f"a[{(4*k+j)*4}:{(4*k+j)*4+3}]" if k < 16 else f"v[{XV + (4*(k-16)+j)*4}:{XV + (4*(k-16)+j)*4+3}]"
    def xload(k):
        out = [f"s_add_u32 s48, s{sX}, {(k >> 2)*4096}"] if k % 4 == 0 or k == 10 else []
        return out + [("vm", f"buffer_load_dwordx4 {xreg(k, j)}, v{VJ[j]}, {WS}, s48 offen offset:{(k & 3)*1024} {xcp}", ("x", k)) for j in range(4)]
    def emit(x):
        if callable(x): x()
        elif isinstance(x, tuple): tag[x[2]] = vm.op(x[1])
        else: a(x)
    for x in dma(0): emit(x)
    for k in range(6):
        for x in xload(k): emit(x)
    for x in dma(1): emit(x)
    for k in range(6, 10):
        for x in xload(k): emit(x)
    a(f"v_add_u32 v{VB[1]}, 0x10000, v{V_L16}", f"v_add_u32 v{VB[2]}, 0x20000, v{V_L16}")
    a(f"v_and_b32 v{VODD}, 1, v14", f"v_mul_u32_u24 v{VODD}, {TILE}, v{VODD}", "v_lshrrev_b32 v15, 1, v14", "v_lshlrev_b32 v15, 8, v15",
      "v_lshl_add_u32 v15, v13, 4, v15", f"v_add_u32 v{VODD}, v{VODD}, v15")
    a(f"v_and_b32 v{VFL}, 3, v{V_LANE}", f"v_lshlrev_b32 v{VFL}, 2, v{VFL}", "s_lshl_b32 s49, s43, 2", f"v_mov_b32 v{VFS}, {OOB}",
      "v_mov_b32 v15, s49", f"v_cmp_eq_u32 vcc, 0, v{V_LANE}", f"v_cndmask_b32 v{VFS}, v{VFS}, v15, vcc")
    a("s_lshl_b32 s49, s40, 3", "s_add_u32 s49, s49, s42")
    a("s_lshl_b32 s50, s49, 2", f"s_add_u32 s50, s50, s{S_WAVE}", "s_lshl_b32 s50, s50, 6", f"s_add_u32 s{sF}, s50, s{sL['FL']}")
    a("s_lshl_b32 s49, s49, 4", "s_add_u32 s49, s49, s45", f"s_mul_i32 s49, s49, {TILE}", f"s_add_u32 s49, s49, s{sL['HB']}")
    for rel in range(4):
        a(f"s_add_u32 s50, s43, {rel}", "s_and_b32 s50, s50, 3", "s_mul_i32 s50, s50, 9", "s_add_u32 s50, s50, 1", "s_lshr_b32 s50, s50, 1",
          "s_lshl_b32 s50, s50, 10", f"s_add_u32 s{sH+rel}, s49, s50")
    a(f"s_add_u32 s{sM}, s49, {4*1024}", f"s_add_u32 s{sM+1}, s49, {13*1024}", "s_cmp_ge_u32 s43, 2", f"s_cselect_b32 s50, s{sM+1}, s{sM}",
      "s_and_b32 s51, s43, 1", "s_lshl_b32 s51, s51, 3", f"s_add_u32 s{sM+2}, s50, s51")
    a(f"s_mul_i32 s50, s42, {ACT}", "s_add_u32 s50, s50, s46", "s_mul_i32 s51, s43, 4608", "s_add_u32 s50, s50, s51",
      f"s_add_u32 s{sP}, s50, s{sL['PART']}", f"s_add_u32 s{sP+1}, s{sP}, 4096", f"s_add_u32 s{sP+2}, s{sP+1}, {2*TILE}")
    vm.wait(tag["st"])
    sr = []
    for j in range(4):
        r = HOWN + 4*j
        a(f"v_add_f32 v{r}, v{r}, v{r+2}", f"v_add_f32 v{r+1}, v{r+1}, v{r+3}"); sr += [r, r+1]
    xreduce(a, sr, HOWN + 16)
    k1 = -2.0 * math.sqrt(2.0 / math.pi) * math.log2(math.e); k2 = k1 * 0.044715
    for j in range(4):
        r = HOWN + 4*j; c = CON + 3*j
        a(f"v_mul_f32 v{r}, {f32(1/576)}, v{r}", f"v_mul_f32 v{r+1}, {f32(1/576)}, v{r+1}", f"v_fma_f32 v{r+1}, -v{r}, v{r}, v{r+1}",
          f"v_max_f32 v{r+1}, 0, v{r+1}", f"v_add_f32 v{c+2}, {f32(1e-5)}, v{r+1}", f"v_rsq_f32 v{r}, v{c+2}")
    for j in range(4):
        r = HOWN + 4*j; c = CON + 3*j
        a(f"v_mul_f32 v{c}, {f32(k1)}, v{r}", f"v_mul_f32 v{r+1}, v{r}, v{r}", f"v_mul_f32 v{r+1}, v{r+1}, v{r}", f"v_mul_f32 v{c+1}, {f32(k2)}, v{r+1}")

    def gelu(pos):
        acc = ACC[pos % 2]; out = []
        for j in range(4):
            c = CON + 3*j
            for h in range(2):
                st = []
                for e in range(2):
                    g = acc + 4*j + 2*h + e; u = g + 16; t = TMP + 4*((2*j + h) % 2) + 2*e
                    st.append([f"v_mul_f32 v{t}, v{g}, v{g}", f"v_fma_f32 v{t}, v{t}, v{c+1}, v{c}", f"v_mul_f32 v{t}, v{t}, v{g}",
                               f"v_exp_f32 v{t}, v{t}", f"v_mul_f32 v{t+1}, v{g}, v{u}", f"v_fma_f32 v{t}, v{t}, v{c+2}, v{c+2}",
                               f"v_rcp_f32 v{t}, v{t}", f"v_mul_f32 v{t+1}, v{t+1}, v{t}"])
                for x, y in zip(*st): out += [x, y]
                t = TMP + 4*((2*j + h) % 2)
                dst = HS + 2*j + h if pos == 0 else HOWN + 16*((pos-1)//2) + 4*j + 2*((pos-1) % 2) + h
                out.append(f"v_cvt_pk_bf16_f32 v{dst}, v{t+1}, v{t+3}")
            if pos == 0:
                out.append(("vm", f"buffer_store_dwordx2 v[{HS+2*j}:{HS+2*j+1}], v{VJ[j]}, {WS}, s{sM+2} offen {cp}", ("hs", 0)))
            elif pos % 2 == 0:
                p = (pos-1)//2; r = HOWN + 16*p + 4*j
                out.append(("vm", f"buffer_store_dwordx4 v[{r}:{r+3}], v{VJ[j]}, {WS}, s{sH} offen offset:{p*1024} {cp}", ("hs", pos)))
        return out
    hreg = {0: ("v", HOWN), 1: ("v", HOWN+16), 2: ("v", HOWN+32), 11: ("v", HOWN+48)}
    for n, pos in enumerate(range(3, 10)): hreg[pos] = ("a", 16*n)
    hreg[10] = ("v", XV); hreg[12] = ("v", XV+16); hreg[13] = ("v", ACC[1]); hreg[14] = ("v", ACC[1]+16)
    hreg[15] = ("v", ACC[0]); hreg[16] = ("v", ACC[0]+16); hreg[17] = ("v", HOWN)
    def hfrag(pos, j):
        k, r = hreg[pos]; return f"{k}[{r+4*j}:{r+4*j+3}]"
    def hload(pos):
        rel, p = KPOS[pos]
        so, off = (f"s{sM+p}", 0) if rel == "mix" else (f"s{sH+rel}", p*1024)
        return [("vm", f"buffer_load_dwordx4 {hfrag(pos, j)}, v{VJ[j]}, {WS}, {so} offen offset:{off} {cp}", ("h", pos)) for j in range(4)]
    def set_flag(val):
        return [f"v_mov_b32 v{VFV}, {val}", ("vm", f"buffer_store_dword v{VFV}, v{VFS}, {WS}, s{sF} offen sc1", ("fs", val))]
    def poll(val):
        return [("vm", f"buffer_load_dword v13, v{VFL}, {WS}, s{sF} offen sc1", ("fl", val))]
    def check(val):
        def f():
            vm.wait(tag[("fl", val)])
            a(f"v_cmp_le_u32 vcc, {val}, v13", "s_nop 0", "s_cmp_eq_u64 vcc, exec", f"s_cbranch_scc0 L_f_slow{val}")
            a.label(f"L_f_back{val}")
            tail(f"L_f_slow{val}:", "s_mov_b32 s52, 0", f"L_f_spin{val}:", "s_sleep 1",
                 f"buffer_load_dword v13, v{VFL}, {WS}, s{sF} offen sc1", "s_add_u32 s52, s52, 1", "s_waitcnt vmcnt(0)",
                 f"v_cmp_le_u32 vcc, {val}, v13", "s_cmp_gt_u32 s52, 0x40000", f"s_cbranch_scc1 L_f_back{val}",
                 "s_cmp_eq_u64 vcc, exec", f"s_cbranch_scc0 L_f_spin{val}", f"s_branch L_f_back{val}")
        return f
    def epilogue(tiles):
        out = []
        if len(tiles) == 2:
            P = tiles[0] // 2
            for j in range(4):
                t = TMP + 8*(j % 2); pk = HS + 4*(j % 2)
                for n, tt in enumerate(tiles):
                    r = OUT + (tt*4 + j)*4
                    out += [f"v_accvgpr_read_b32 v{t+4*n+e}, a{r+e}" for e in range(4)]
                out += [f"v_cvt_pk_bf16_f32 v{pk+d}, v{t+2*d}, v{t+2*d+1}" for d in range(4)]
                out.append(("vm", f"buffer_store_dwordx4 v[{pk}:{pk+3}], v{VJ[j]}, {WS}, s{sP} offen offset:{P*1024} {xcp}", ("o", P)))
        else:
            for jp in range(2):
                t = TMP + 8*jp; pk = HS + 4*jp
                for n in range(2):
                    r = OUT + (8*4 + 2*jp + n)*4
                    out += [f"v_accvgpr_read_b32 v{t+4*n+e}, a{r+e}" for e in range(4)]
                out += [f"v_cvt_pk_bf16_f32 v{pk+d}, v{t+2*d}, v{t+2*d+1}" for d in range(4)]
                out += [f"v_permlane16_swap_b32 v{pk}, v{pk+2}", f"v_permlane16_swap_b32 v{pk+1}, v{pk+3}"]
                out.append(("vm", f"buffer_store_dwordx4 v[{pk}:{pk+3}], v{VODD}, {WS}, s{sP+1+jp} offen {xcp}", ("o", 4)))
        return out

    steps = []
    for pos in range(9):
        for kp in range(9):
            for mat in range(2):
                d = [f"v[{ACC[pos % 2] + 16*mat + 4*j}:{ACC[pos % 2] + 16*mat + 4*j + 3}]" for j in range(4)]
                steps.append(dict(d=d, b=[[xreg(2*kp + c, j) for c in range(2)] for j in range(4)], first=kp == 0,
                                  wait=("x", 2*kp+1) if pos == 0 and mat == 0 else None))
    P2 = len(steps)
    for start, n in KBLOCKS:
        for t in range(9):
            for c0 in range(0, n, 2):
                d = [f"a[{OUT + (t*4+j)*4}:{OUT + (t*4+j)*4 + 3}]" for j in range(4)]
                need_h = [p for p in (start+c0, start+c0+1) if KPOS[p][0] != 0]
                steps.append(dict(d=d, b=[[hfrag(start + c0 + c, j) for c in range(2)] for j in range(4)], first=start == 0,
                                  wait=("h", need_h[-1]) if need_h and t == 0 else None))
    NSTEP = len(steps)
    bstep = lambda b: (STAGE*b - 6) // 2
    memq = []; valq = []
    at_boundary = {}
    mem_at = {}; val_at = {}
    def add(d, s, items): d.setdefault(s, []).extend(items)
    for k in range(10, 18): add(mem_at, 0, xload(k))
    for st in (2, 3, 4): add(mem_at, 0, dma(st))
    for pos in range(9): add(val_at, 18*(pos+1), [(gelu(pos), 17 if pos < 8 else 11)])
    drain = {10: 1, 13: 2, 16: 3}
    pollb = {11: 1, 15: 2, 17: 3}
    add(mem_at, bstep(12) + 1, [check(1)])
    for n, pos in enumerate(range(3, 10)): add(mem_at, 18*8 + 2*(n//2) + 2, hload(pos))
    add(mem_at, P2, hload(10))
    add(mem_at, bstep(15) + 7, [check(2)] + hload(12) + hload(13) + hload(14))
    add(mem_at, bstep(17) + 7, [check(3)] + hload(15) + hload(16) + hload(17))
    fin = NSTEP - 18
    for P in range(4): add(val_at, fin + 4*P + 4, [(epilogue([2*P, 2*P+1]), 4 if P < 3 else 2)])
    def rd(n):
        off = (n % (STAGE*NS))*1024; w = RING + 4*(n % NW)
        return f"ds_read_b128 v[{w}:{w+3}], v{VB[off // 65536]} offset:{off % 65536}"
    vm.wait(tag[("w", 0)]); a("s_barrier")
    for n in range(6): a(rd(n))
    issued = 6
    vrate = 0.0; vcredit = 0.0
    for s, st in enumerate(steps):
        memq += mem_at.get(s, [])
        for items, span in val_at.get(s, []):
            valq += items
            vrate = sum(cost(x) for x in valq) / (8.0*span); vcredit = -vrate*(3 if s < fin else 4)
        if st["wait"]: vm.wait(tag[st["wait"]])
        a(f"s_waitcnt lgkmcnt({issued - 2*s - 2})")
        burst = s < 9
        for n in range(8):
            j, c = n // 2, n % 2
            w = RING + 4*((2*s + c) % NW)
            a(f"{MF} {st['d'][j]}, v[{w}:{w+3}], {st['b'][j][c]}, {'0' if st['first'] and c == 0 else st['d'][j]}")
            room = 2 - (1 if n == 7 else 0)
            if n in (2, 6) and issued < 486:
                if issued % STAGE == 0:
                    b = issued // STAGE
                    while memq and any(isinstance(x, tuple) and x[2] == ("w", b) for x in memq): emit(memq.pop(0))
                    if b in drain: a("s_waitcnt vmcnt(0)")
                    else: vm.wait(tag[("w", b)])
                    a("s_barrier"); room -= 2
                    pre = []
                    if b in drain: pre += set_flag(drain[b])
                    if b in pollb: pre += poll(pollb[b])
                    for x in pre: emit(x)
                    if b + 4 < NSTAGE: memq = memq + dma(b + 4)
                a(rd(issued)); issued += 1; room -= 1
            if memq and (burst or (room > 0 and n % 2 == 1) or len(memq) > 12):
                emit(memq.pop(0)); room -= 1
                if burst and memq: emit(memq.pop(0)); room -= 1
            vcredit += vrate
            while valq and vcredit >= cost(valq[0]) - 0.5 and (room >= cost(valq[0]) or vcredit > 3):
                x = valq.pop(0); vcredit -= cost(x); room -= cost(x); emit(x)
        nxt = s + 1
        if nxt % 18 == 0 and nxt <= P2 or nxt == fin:
            while valq: emit(valq.pop(0))
    assert not memq, memq
    for x in valq + epilogue([8]): emit(x)
```

```python
from gen_common import *

RAW, FR = 16, 80
VO, VO2 = 4, 5

def gather(a, rowoff, vsel=lambda k: VO):
    vm = VM(a)
    for k0 in range(0, 18, 6):
        tags = []
        for k in range(k0, k0+6):
            for i in range(8):
                so = rowoff(k, i)
                t = vm.op(f"buffer_load_ushort v{RAW + 8*(k-k0) + i}, v{vsel(k)}, s[16:19], {so} offen")
            tags.append(t)
        for k in range(k0, k0+6):
            vm.wait(tags[k-k0])
            for d in range(4):
                r = RAW + 8*(k-k0) + 2*d
                a(f"v_lshl_or_b32 v{FR + 4*k + d}, v{r+1}, 16, v{r}")
    return vm

def stores(a, vm, dest):
    for k in range(18):
        so = dest(k)
        vm.op(f"buffer_store_dwordx4 v[{FR+4*k}:{FR+4*k+3}], v{V_L16}, {WS}, {so} offen")

def load_srd(a, key, nbytes):
    a(f"s_load_dwordx2 s[12:13], s[0:1], {key}", "s_waitcnt lgkmcnt(0)")
    srd(a, 16, 12, nbytes)

def div(a, dst, src, d, maxv):
    sh = 16; m = (1 << sh) // d + 1
    assert all((v * m) >> sh == v // d for v in range(maxv)), (d, maxv)
    a(f"s_mul_i32 s{dst}, s{src}, {m}", f"s_lshr_b32 s{dst}, s{dst}, {sh}")

def const_off(a, base_reg):
    def f(val):
        a(f"s_add_u32 s40, s{base_reg}, {val}")
        return "s40"
    return f

def gen_pack(a, end):
    a("s_lshl_b32 s20, s2, 2", f"s_add_u32 s20, s20, s{S_WAVE}")
    a(f"v_and_b32 v6, 15, v{V_LANE}", f"v_lshrrev_b32 v7, 4, v{V_LANE}")
    a("v_lshrrev_b32 v8, 2, v6", "v_and_b32 v9, 3, v6", "v_lshl_add_u32 v10, v8, 3, v9")
    a("s_cmp_ge_u32 s20, 992", "s_cbranch_scc1 L_pack_o", "s_cmp_ge_u32 s20, 864", "s_cbranch_scc1 L_pack_q",
      "s_cmp_ge_u32 s20, 576", "s_cbranch_scc1 L_pack_d")
    div(a, 21, 2, 72, 144)
    a("s_mul_i32 s22, s21, 72", "s_sub_u32 s22, s2, s22")
    div(a, 23, 22, 9, 72)
    a("s_mul_i32 s24, s23, 9", "s_sub_u32 s24, s22, s24")
    a("s_lshl_b32 s24, s24, 2", f"s_add_u32 s24, s24, s{S_WAVE}")
    a(f"s_load_dwordx4 s[36:39], s[0:1], {KA['wg']}", "s_waitcnt lgkmcnt(0)", "s_cmp_eq_u32 s21, 0", "s_cselect_b64 s[12:13], s[36:37], s[38:39]")
    srd(a, 16, 12, D * DF * 2)
    a("s_lshr_b32 s26, s24, 1", "s_lshl_b32 s26, s26, 5", "s_and_b32 s27, s24, 1", "s_lshl_b32 s27, s27, 2",
      "s_add_u32 s26, s26, s27", "s_mul_i32 s27, s23, 576", "s_add_u32 s26, s26, s27")
    a("v_add_u32 v11, s26, v10", "v_lshlrev_b32 v11, 1, v11", f"v_mul_u32_u24 v12, {8*9216}, v7", f"v_add_u32 v{VO}, v11, v12")
    div(a, 27, 24, 9, 36)
    a("s_mul_i32 s28, s27, 9", "s_sub_u32 s28, s24, s28")
    a("s_add_u32 s29, s28, 1", "s_cmp_eq_u32 s29, 9", "s_cselect_b32 s29, 0, s29",
      "s_and_b32 s30, s27, 1", "s_cmp_eq_u32 s30, 0", "s_cselect_b32 s28, s29, s28")
    a("s_lshl_b32 s29, s23, 2", "s_add_u32 s29, s29, s27", f"s_mul_i32 s29, s29, {PF_TASK}",
      f"s_mul_i32 s28, s28, {36*1024}", "s_add_u32 s29, s29, s28", "s_lshl_b32 s21, s21, 11", "s_add_u32 s29, s29, s21",
      f"s_add_u32 s29, s29, {PF}")
    def ro(k, i):
        a(f"s_mov_b32 s40, {(32*k+i)*9216}"); return "s40"
    vm = gather(a, ro)
    a("s_mov_b32 s31, 0x3f803f80", "v_mov_b32 v12, 0", "v_mov_b32 v13, 0")
    for r in range(72): a(f"v_dot2_f32_bf16 v{12 + r % 2}, v{FR+r}, s31, v{12 + r % 2}")
    a("s_nop 2", "v_add_f32 v12, v12, v13")
    xreduce(a, [12], 13)
    a(f"v_mul_f32 v12, {f32(1/576)}, v12")
    for r in range(72):
        t = RAW + 2*(r % 4)
        a(f"v_lshlrev_b32 v{t}, 16, v{FR+r}", f"v_and_b32 v{t+1}, 0xffff0000, v{FR+r}",
          f"v_sub_f32 v{t}, v{t}, v12", f"v_sub_f32 v{t+1}, v{t+1}, v12", f"v_cvt_pk_bf16_f32 v{FR+r}, v{t}, v{t+1}")
    co = const_off(a, 29)
    stores(a, vm, lambda k: co(1024*(4*(k >> 1) + (k & 1))))
    a(f"s_branch {end}")
    a.label("L_pack_d")
    a("s_sub_u32 s20, s20, 576")
    div(a, 21, 20, 9, 288)
    a("s_mul_i32 s22, s21, 9", "s_sub_u32 s22, s20, s22")
    a("s_lshr_b32 s23, s21, 2", "s_and_b32 s24, s21, 3")
    load_srd(a, KA["wd"], D * DF * 2)
    a("s_lshr_b32 s25, s22, 1", "s_lshl_b32 s25, s25, 5", "s_and_b32 s26, s22, 1", "s_lshl_b32 s26, s26, 2", "s_add_u32 s25, s25, s26",
      "s_mul_i32 s26, s24, 144", "s_add_u32 s25, s25, s26")
    a("s_cmp_eq_u32 s22, 8", "s_cselect_b64 vcc, -1, 0", "v_cndmask_b32 v11, v10, v6, vcc")
    a("v_add_u32 v11, s25, v11", "v_lshlrev_b32 v11, 1, v11", f"v_mul_u32_u24 v12, {8*1152}, v7", f"v_add_u32 v{VO}, v11, v12")
    a(f"s_mul_i32 s26, s23, {576*1152}")
    for rel in range(4):
        a(f"s_add_u32 s27, s24, {rel}", "s_and_b32 s27, s27, 3", "s_mul_i32 s27, s27, 9", "s_add_u32 s27, s27, 1", "s_lshr_b32 s27, s27, 1",
          f"s_mul_i32 s27, s27, {32*1152}", f"s_add_u32 s{32+rel}, s26, s27")
    def ro(pos, i):
        rel, p = KPOS[pos]
        if rel == "mix": a(f"s_add_u32 s40, s26, {((4 if p == 0 else 13)*32 + i)*1152}")
        else: a(f"s_add_u32 s40, s{32+rel}, {(32*p + i)*1152}")
        return "s40"
    vm = gather(a, ro)
    a(f"s_mul_i32 s29, s21, {PF_TASK}", f"s_add_u32 s29, s29, {PF + 324*1024}")
    a("s_lshl_b32 s30, s22, 11", "s_add_u32 s30, s30, s29", "s_lshl_b32 s31, s22, 12", "s_add_u32 s31, s31, s29")
    def dst(pos):
        n = [b for b in KBLOCKS if b[0] <= pos < b[0]+b[1]][0][1]
        a(f"s_add_u32 s40, s{30 if n == 2 else 31}, {pd_index(pos, 0)*1024}")
        return "s40"
    stores(a, vm, dst)
    a(f"s_branch {end}")
    a.label("L_pack_q")
    a("s_sub_u32 s20, s20, 864", "s_lshr_b32 s21, s20, 3", "s_and_b32 s22, s20, 7")
    load_srd(a, KA["wqkv"], D * 3 * D * 2)
    a("s_mov_b32 s23, 0")
    for t, base in enumerate([0, 18, 576, 594, 16, 1152, 1170, 1168]):
        a(f"s_cmp_eq_u32 s22, {t}", f"s_cselect_b32 s23, {base}, s23")
    a("s_mul_i32 s24, s21, 36", "s_add_u32 s23, s23, s24")
    a("v_and_b32 v11, 1, v6", "v_bfe_u32 v12, v6, 1, 1", "v_mul_u32_u24 v12, 18, v12", "v_add_u32 v11, v11, v12",
      "v_mul_u32_u24 v12, 576, v8", "v_add_u32 v11, v11, v12")
    a("s_mov_b32 s24, 16", "s_cmp_eq_u32 s22, 4", "s_cselect_b32 s24, 8, s24", "s_cmp_eq_u32 s22, 7", "s_cselect_b32 s24, 4, s24",
      "s_cmp_lg_u32 s24, 16", "s_cselect_b64 vcc, -1, 0", "v_cndmask_b32 v11, v6, v11, vcc")
    a("v_add_u32 v11, s23, v11", "v_lshlrev_b32 v11, 1, v11", f"v_mul_u32_u24 v12, {8*3456}, v7", "v_add_u32 v11, v11, v12")
    a(f"v_mov_b32 v12, {OOB}", "v_cmp_gt_u32 vcc, s24, v6", f"v_cndmask_b32 v{VO}, v12, v11, vcc")
    def ro(k, i):
        a(f"s_mov_b32 s40, {(32*k+i)*3456}"); return "s40"
    vm = gather(a, ro)
    a(f"s_mul_i32 s29, s21, {PQ_TASK}", "s_lshl_b32 s30, s22, 10", "s_add_u32 s29, s29, s30", f"s_add_u32 s29, s29, {PQ}")
    co = const_off(a, 29)
    stores(a, vm, lambda k: co(8192*k))
    a(f"s_branch {end}")
    a.label("L_pack_o")
    a("s_sub_u32 s20, s20, 992")
    div(a, 21, 20, 5, 40)
    a("s_mul_i32 s22, s21, 5", "s_sub_u32 s22, s20, s22")
    load_srd(a, KA["wo"], D * D * 2)
    a("s_lshr_b32 s25, s22, 1", "s_lshl_b32 s25, s25, 5", "s_and_b32 s26, s22, 1", "s_lshl_b32 s26, s26, 2", "s_add_u32 s25, s25, s26",
      "s_mul_i32 s26, s21, 72", "s_add_u32 s25, s25, s26")
    a("s_cmp_eq_u32 s22, 4", "s_cselect_b64 vcc, -1, 0", "s_cselect_b32 s24, 8, 16", "v_cndmask_b32 v11, v10, v6, vcc")
    a("v_add_u32 v11, s25, v11", "v_lshlrev_b32 v11, 1, v11", f"v_mov_b32 v12, {OOB}", "v_cmp_gt_u32 vcc, s24, v6", "v_cndmask_b32 v11, v12, v11, vcc")
    a(f"v_mul_u32_u24 v12, {4*1152}, v7", f"v_add_u32 v{VO}, v11, v12", f"v_mul_u32_u24 v12, {72*1152}, v7", f"v_add_u32 v{VO2}, v11, v12")
    def ro(k, i):
        row = 36*k + 18*(i >> 2) + (i & 3) if k < 16 else 288*(k-16) + 36*(i >> 2) + [16, 17, 34, 35][i & 3]
        a(f"s_mov_b32 s40, {row*1152}"); return "s40"
    vm = gather(a, ro, lambda k: VO if k < 16 else VO2)
    a(f"s_mul_i32 s29, s21, {PO_TASK}", "s_lshl_b32 s30, s22, 10", "s_add_u32 s29, s29, s30", f"s_add_u32 s29, s29, {PO}")
    co = const_off(a, 29)
    stores(a, vm, lambda k: co(5120*k))
```

```python
from gen_common import *

def gen_r(a, mode, layer, cp=""):
    vm = VM(a)
    VA, VN, T0 = 4, 5, 6
    DATA, SUM, PK = 16, 128, 152
    sT, sN = 20, 21
    a(f"v_and_b32 v6, 7, v{V_LANE}", f"v_lshrrev_b32 v7, 3, v{V_LANE}")
    a(f"s_mul_i32 s22, s{S_WAVE}, 24", "v_add_u32 v7, s22, v7")
    a(f"s_and_b32 s23, s{S_I}, 1", "s_lshl_b32 s23, s23, 3")
    a("v_add_u32 v8, s23, v6", "v_lshlrev_b32 v8, 4, v8", f"v_lshl_add_u32 v{VA}, v7, 8, v8")
    a(f"s_lshl_b32 s24, s{S_X}, 4", f"s_lshr_b32 s25, s{S_I}, 1", "s_add_u32 s24, s24, s25",
      f"s_mul_i32 s{sT}, s24, {TILE}")
    if mode != "mid":
        a(f"s_lshl_b32 s24, s{S_X}, 8", f"s_lshl_b32 s25, s{S_I}, 3", "s_add_u32 s24, s24, s25",
          "s_and_b32 s25, s24, 1023", "s_lshl_b32 s25, s25, 1", "s_lshr_b32 s24, s24, 10", "s_add_u32 s24, s24, s25",
          f"s_mul_i32 s{sN}, s24, 1152")
        a("v_mul_u32_u24 v8, 2304, v6", f"v_lshl_add_u32 v{VN}, v7, 4, v8")
        key = "x" if mode == "first" else "out"
        a(f"s_load_dwordx2 s[12:13], s[0:1], {KA[key]}", "s_waitcnt lgkmcnt(0)")
        srd(a, 16, 12, S * D * 2)
    tags = []
    if mode == "first":
        for j in range(3):
            tags.append(vm.op(f"buffer_load_dwordx4 v[{DATA+4*j}:{DATA+4*j+3}], v{VN}, s[16:19], s{sN} offen offset:{128*j}"))
        nsrc = 1
    else:
        nsrc = 9
        for s in range(9):
            base = X1[layer] if s == 0 else PART[layer] + (s-1) * ACT
            a(f"s_add_u32 s24, s{sT}, {base}", "s_add_u32 s25, s24, 4096")
            for j in range(3):
                r = DATA + 12*s + 4*j
                so, off = ("s24", 2048*j) if j < 2 else ("s25", 0)
                tags.append(vm.op(f"buffer_load_dwordx4 v[{r}:{r+3}], v{VA}, {WS}, {so} offen offset:{off} {cp}"))
    for s in range(nsrc):
        for j in range(3):
            vm.wait(tags[3*s+j])
            for d in range(4):
                src = DATA + 12*s + 4*j + d; lo = SUM + 8*j + 2*d
                if s == 0:
                    a(f"v_lshlrev_b32 v{lo}, 16, v{src}", f"v_and_b32 v{lo+1}, 0xffff0000, v{src}")
                else:
                    t = T0 + 2*(d % 2)
                    a(f"v_lshlrev_b32 v{t}, 16, v{src}", f"v_and_b32 v{t+1}, 0xffff0000, v{src}",
                      f"v_add_f32 v{lo}, v{lo}, v{t}", f"v_add_f32 v{lo+1}, v{lo+1}, v{t+1}")
    pk = DATA if mode == "first" else PK
    if mode != "first":
        for d in range(12): a(f"v_cvt_pk_bf16_f32 v{PK+d}, v{SUM+2*d}, v{SUM+2*d+1}")
    if mode == "last":
        for j in range(3):
            vm.op(f"buffer_store_dwordx4 v[{PK+4*j}:{PK+4*j+3}], v{VN}, s[16:19], s{sN} offen offset:{128*j}")
        return
    nl = 0 if mode == "first" else layer + 1
    a(f"s_add_u32 s24, s{sT}, {XR[nl]}", "s_add_u32 s25, s24, 4096")
    for j in range(3):
        so, off = ("s24", 2048*j) if j < 2 else ("s25", 0)
        vm.op(f"buffer_store_dwordx4 v[{pk+4*j}:{pk+4*j+3}], v{VA}, {WS}, {so} offen offset:{off} {cp}")
    a(f"v_add_f32 v6, v{SUM}, v{SUM+1}", f"v_mul_f32 v7, v{SUM}, v{SUM}", f"v_mul_f32 v9, v{SUM+1}, v{SUM+1}", "v_mov_b32 v8, 0")
    for e in range(2, 24, 2):
        a(f"v_add_f32 v6, v6, v{SUM+e}", f"v_add_f32 v8, v8, v{SUM+e+1}",
          f"v_fmac_f32 v7, v{SUM+e}, v{SUM+e}", f"v_fmac_f32 v9, v{SUM+e+1}, v{SUM+e+1}")
    a("v_add_f32 v6, v6, v8", "v_add_f32 v7, v7, v9")
    xreduce(a, [6, 7], 8, steps=("8", "16", "32"))
    a(f"v_and_b32 v10, 7, v{V_LANE}", "v_lshlrev_b32 v10, 3, v10", f"s_lshl_b32 s24, s{S_WAVE}, 6", "v_add_u32 v11, s24, v10")
    a("ds_write_b64 v11, v[6:7]", "s_waitcnt lgkmcnt(0)", "s_barrier")
    a("ds_read_b64 v[6:7], v10", "ds_read_b64 v[8:9], v10 offset:64", "ds_read_b64 v[12:13], v10 offset:128", "s_waitcnt lgkmcnt(0)")
    a("v_add_f32 v6, v6, v8", "v_add_f32 v7, v7, v9", "v_add_f32 v6, v6, v12", "v_add_f32 v7, v7, v13")
    a(f"v_mul_f32 v6, {f32(1/576)}, v6", f"v_mul_f32 v7, {f32(1/576)}, v7", "v_fma_f32 v7, -v6, v6, v7",
      "v_max_f32 v7, 0, v7", f"v_add_f32 v7, {f32(1e-5)}, v7", "v_rsq_f32 v7, v7")
    a("v_mul_f32 v6, v6, v7")
    for e in range(24): a(f"v_fma_f32 v{SUM+e}, v{SUM+e}, v7, -v6")
    XO = 168
    for d in range(12): a(f"v_cvt_pk_bf16_f32 v{XO+d}, v{SUM+2*d}, v{SUM+2*d+1}")
    a(f"s_add_u32 s24, s{sT}, {XN[nl]}", "s_add_u32 s25, s24, 4096")
    for j in range(3):
        so, off = ("s24", 2048*j) if j < 2 else ("s25", 0)
        vm.op(f"buffer_store_dwordx4 v[{XO+4*j}:{XO+4*j+3}], v{VA}, {WS}, {so} offen offset:{off} {cp}")
```

```python
S, D, H, DH, DF = 2048, 576, 32, 18, 4608
TILE = 18432
ACT = 128 * TILE
WS_BYTES = 268435456

_off = 0
def _alloc(n):
    global _off
    o = _off
    _off += (n + 4095) // 4096 * 4096
    return o

FLAG_BYTES = 1 << 18
FLAGS = _alloc(FLAG_BYTES)
FL_LAYER = 0x10000
FL_H, FL_O, FL_X, FL_P, FL_R, FL_K = 0, 0x4000, 0x6000, 0x8000, 0xA000, 0xC000
PQ_TASK = 144 * 1024
PQ = _alloc(16 * PQ_TASK)
PO_TASK = 90 * 1024
PO = _alloc(8 * PO_TASK + 8192)
PF_TASK = 486 * 1024
PF = _alloc(32 * PF_TASK + 32768)
XN = [_alloc(ACT) for _ in range(2)]
XR = [_alloc(ACT) for _ in range(2)]
OB = [_alloc(ACT) for _ in range(2)]
X1 = [_alloc(ACT) for _ in range(2)]
STAT_BYTES = 128 * 8 * 128
ST = [_alloc(STAT_BYTES) for _ in range(2)]
HB_BYTES = 8 * 8 * 16 * TILE
HB = [_alloc(HB_BYTES) for _ in range(2)]
PART = [_alloc(8 * ACT) for _ in range(2)]
PROF = _alloc(16 * 256 * 256)
WS_USED = _off
assert WS_USED <= WS_BYTES

KPOS = [(0, 0), (0, 1), (0, 2), (1, 0), (2, 0), (3, 0), (1, 1), (2, 1), (3, 1), ("mix", 0), ("mix", 1), (0, 3),
        (1, 2), (2, 2), (3, 2), (1, 3), (2, 3), (3, 3)]
KBLOCKS = [(0, 2), (2, 2), (4, 2), (6, 2), (8, 2), (10, 2), (12, 2), (14, 4)]

def kbase(m): return (9 * m + 1) >> 1

def kstep_of(member, pos):
    rel, p = KPOS[pos]
    if rel == "mix": return 4 if p == 0 else 13
    return kbase((member + rel) & 3) + p

def pd_index(pos, t):
    for start, n in KBLOCKS:
        if start <= pos < start + n: return start * 9 + t * n + (pos - start)
```

```python
import sys
from gen_common import *
from gen_r import gen_r
from gen_pack import gen_pack
from gen_a1 import gen_a1, A1_LDS
from gen_a2 import gen_a2
from gen_f import gen_f, F_LDS

NAME = "interleave_layers__sliding_local_dilated__glu_gated_geglu__prompt"
HEADER = open(f"/code/{NAME}.s.ref").read().split("; Override launch")[0]

SL = dict(XN=70, XR=71, OB=72, X1=73, ST=74, HB=75, PART=76, FL=77)
def layer_regs(a, l):
    for k, v in (("XN", XN[l]), ("XR", XR[l]), ("OB", OB[l]), ("X1", X1[l]), ("ST", ST[l]), ("HB", HB[l]), ("PART", PART[l]),
                 ("FL", FLAGS + l*16384)):
        a(f"s_mov_b32 s{SL[k]}, {v}")

def finish(lines, name):
    st = []
    out = pad_hazards(lines, st)
    errs = check_waits(out, name)
    for e in errs[:20]: print("WAIT ERROR", e)
    assert not errs
    nins = sum(1 for l in out if not l.endswith(":") and not l.startswith((".", ";")))
    print(f"{name}: {nins} instructions, {len(st)} pads ({sum(x[0] for x in st)} states)", file=sys.stderr)
    return out

def two_layer(stem, body, nwg=256):
    a = Asm(); tail = Asm()
    for l in (1, 0):
        entry(a, f"{stem}{l}_kernel", nwg, f"L_{stem}_end")
        layer_regs(a, l)
        if l == 1: a(f"s_branch L_{stem}_body")
    a.label(f"L_{stem}_body")
    common(a); body(a, tail)
    a.label(f"L_{stem}_end"); a("s_endpgm")
    return finish(a.lines, stem) + pad_hazards(tail.lines)

def build(opts):
    code = []; desc = []; launches = []
    a = Asm()
    entry(a, "prep_kernel", 258, "L_prep_end"); common(a)
    a("s_cmp_ge_u32 s2, 256", "s_cbranch_scc1 L_prep_pack")
    a("s_lshl_b32 s20, s2, 10", f"s_add_u32 s20, s20, {FLAGS}", "v_lshlrev_b32 v4, 2, v0", "v_mov_b32 v5, 0",
      f"buffer_store_dword v5, v4, {WS}, s20 offen")
    a(f"s_cmp_eq_u32 s{S_WAVE}, 3", "s_cbranch_scc1 L_prep_idle")
    gen_r(a, "first", 0)
    a("s_branch L_prep_pack")
    a.label("L_prep_idle"); a("s_barrier")
    a.label("L_prep_pack"); a("s_waitcnt vmcnt(0)")
    gen_pack(a, "L_prep_end")
    a.label("L_prep_end"); a("s_endpgm")
    code += finish(a.lines, "prep"); desc.append(descriptor("prep_kernel", 184, 184))
    code += two_layer("a1l", lambda a, t: gen_a1(a, SL))
    code += two_layer("a2l", lambda a, t: gen_a2(a, SL))
    code += two_layer("fl", lambda a, t: gen_f(a, SL, t, mapping=opts.get("mapping", 0)))
    for l, mode in ((0, "mid"), (1, "last")):
        a = Asm()
        entry(a, f"rl{l}_kernel", 256, f"L_r{l}_end"); common(a); gen_r(a, mode, l)
        a.label(f"L_r{l}_end"); a("s_endpgm")
        code += finish(a.lines, f"r{l}"); desc.append(descriptor(f"rl{l}_kernel", 184, 184))
    for l in range(2):
        desc += [descriptor(f"a1l{l}_kernel", 512, 256), descriptor(f"a2l{l}_kernel", 512, 256), descriptor(f"fl{l}_kernel", 512, 256)]
    launches.append(("prep_kernel", 258, 256, 1024))
    for l in range(2):
        launches += [(f"a1l{l}_kernel", 256, 256, A1_LDS), (f"a2l{l}_kernel", 256, 256, 92*1024), (f"fl{l}_kernel", 256, 256, F_LDS),
                     (f"rl{l}_kernel", 256, 192, 1024)]
    s = HEADER
    for k, g, b, lds in launches: s += f"; @launch kernel={k} grid=({g},1,1) block=({b},1,1) lds={lds}\n"
    s += '.amdgcn_target "amdgcn-amd-amdhsa--gfx950"\n.text\n' + "\n".join(code) + '\n.section .rodata,"a"\n' + "".join(desc)
    return s

if __name__ == "__main__":
    out = sys.argv[1] if len(sys.argv) > 1 else f"/code/{NAME}.s"
    opts = dict(kv.split("=") for kv in sys.argv[2:])
    opts = {k: int(v) for k, v in opts.items()}
    open(out, "w").write(build(opts))
```

```python
from gen_common import *
import math

XCH = 147456
A1_LDS = XCH + 4*3072

def a1_ids(a):
    a(f"s_lshr_b32 s20, s{S_I}, 4", f"s_lshl_b32 s21, s{S_X}, 1", "s_add_u32 s20, s20, s21")
    a(f"s_and_b32 s21, s{S_I}, 15")

def a1_weights(a, whole):
    a1_ids(a)
    a(f"s_mul_i32 s22, s21, {PQ_TASK}", f"s_add_u32 s22, s22, {PQ}")
    if whole: a("s_mov_b32 s23, 0")
    else: a(f"s_mul_i32 s23, s{S_WAVE}, {36*1024}", "s_add_u32 s22, s22, s23")
    dma_copy(a, VM(a), 144 if whole else 36, 22, 23)

def a1_wait(a, sL):
    a1_ids(a)
    a(f"s_cmp_eq_u32 s{S_WAVE}, 0", "s_cbranch_scc0 L_a1_go")
    a(f"v_mul_u32_u24 v6, 43, v{V_LANE}", "v_lshrrev_b32 v6, 8, v6", "v_mul_u32_u24 v7, 6, v6", f"v_sub_u32 v7, v{V_LANE}, v7", "v_min_u32 v6, 8, v6",
      "s_lshl_b32 s22, s20, 3", "s_sub_u32 s22, s22, 1", "v_add_u32 v6, s22, v6", "v_max_i32 v6, 0, v6", "v_lshlrev_b32 v6, 3, v6",
      "v_add_lshl_u32 v6, v6, v7, 2", f"s_add_u32 s22, s{sL['FL']}, {FL_R}")
    await_flags(a, 6, 22)
    a.label("L_a1_go")
    a("s_barrier")

def gen_a1(a, sL, pr, cp="sc1"):
    vm = VM(a)
    ACC, RING, NW = 32, 216, 8
    HA = ACC + 64
    VB = [V_L16, 4, 5]; VH = [[6, 7, 8], [9, 10, 11]]
    acc = lambda t, j: ACC + (2*t + j)*4
    pr.stamp("a1go")
    a("s_lshl_b32 s24, s20, 3", "s_sub_u32 s25, s24, 1", "s_max_i32 s25, s25, 0", f"s_mul_i32 s25, s25, {TILE}",
      f"s_lshl_b32 s26, s{S_WAVE}, 1", "s_add_u32 s24, s24, s26", f"s_mul_i32 s24, s24, {TILE}")
    a(f"s_add_u32 s26, s24, s{sL['XN']}", f"s_add_u32 s27, s26, {TILE}", f"s_add_u32 s28, s25, s{sL['XN']}")
    xt = []
    for k in range(18):
        if k % 4 == 0 and k: a("s_add_u32 s26, s26, 4096", "s_add_u32 s27, s27, 4096", "s_add_u32 s28, s28, 4096")
        for j in range(3):
            t = vm.op(f"buffer_load_dwordx4 a[{72*j+4*k}:{72*j+4*k+3}], v{V_L16}, {WS}, s{26+j} offen offset:{(k % 4)*1024} {cp}")
        xt.append(t)
    a(f"v_add_u32 v4, 0x10000, v{V_L16}", f"v_add_u32 v5, 0x20000, v{V_L16}")
    a(f"s_cmp_eq_u32 s{S_WAVE}, 3", f"s_cselect_b32 s29, 0, s{S_WAVE}", "s_lshl_b32 s30, s29, 10")
    for h, t0 in enumerate((2, 5)):
        a(f"s_add_u32 s31, s30, {t0*1024}")
        for n in range(3): a(f"v_add_u32 v{VH[h][n]}, s31, v{VB[n]}")
    a(f"v_and_b32 v12, 15, v{V_LANE}", f"v_lshrrev_b32 v13, 4, v{V_LANE}", "v_lshlrev_b32 v14, 2, v13", "v_sub_u32 v14, v12, v14")
    for r in range(4):
        a(f"v_subrev_u32 v15, {r}, v14", f"v_cmp_gt_u32 s[{52+2*r}:{53+2*r}], 8, v15", f"v_cmp_gt_i32 s[{44+2*r}:{45+2*r}], -8, v15")
    a("s_and_b32 s31, s20, 7", f"s_or_b32 s31, s31, s{S_WAVE}", "s_cmp_eq_u32 s31, 0")
    for r in range(4): a(f"s_cselect_b64 s[{60+2*r}:{61+2*r}], 0, s[{44+2*r}:{45+2*r}]")
    pr.stamp("a1iss")
    vm.wait(0); a("s_barrier")
    pr.stamp("a1bar")
    seq = []
    for k0 in range(0, 18, 2):
        for t in list(range(8)) + ["h0", "h1"]:
            seq += [(k0, t), (k0+1, t)]
    def rd(n):
        k, t = seq[n]; w = RING + 4*(n % NW)
        if isinstance(t, str):
            off = k*8192; base = VH[int(t[1])]
        else:
            off = (k*8 + t)*1024; base = VB
        return f"ds_read_b128 a[{w}:{w+3}], v{base[off // 65536]} offset:{off % 65536}"
    PF_ = 6
    for n in range(PF_): a(rd(n))
    issued = PF_
    for n in range(0, len(seq), 2):
        k0, t = seq[n]
        if t == 0: vm.wait(xt[k0+1])
        if t == 0: pr.stamp(f"a1k{k0}")
        a(f"s_waitcnt lgkmcnt({issued - n - 2})")
        jl = [2] if isinstance(t, str) else [0, 1]
        swapped = t == "h1" or (not isinstance(t, str) and t >= 5)
        cnt = 0
        for j in jl:
            d = HA + 4*int(t[1]) if isinstance(t, str) else acc(t, j)
            for c in range(2):
                w = f"a[{RING + 4*((n+c) % NW)}:{RING + 4*((n+c) % NW) + 3}]"
                x = f"a[{72*j + 4*(k0+c)}:{72*j + 4*(k0+c) + 3}]"
                A, B = (x, w) if swapped else (w, x)
                a(f"v_mfma_f32_16x16x32_bf16 v[{d}:{d+3}], {A}, {B}, {'0' if k0+c == 0 else f'v[{d}:{d+3}]'}")
                cnt += 1
                if (len(jl) == 1 or c == 1) and issued < len(seq):
                    a(rd(issued)); issued += 1
    pr.stamp('a1gemm')
    KP, K0, K1 = 104, 110, 116
    VV = [122, 128, 134]
    QO = [[140, 144], [148, 152]]
    HC, XR_ = 156, 160
    def cvt(dst, src): a(f"v_cvt_pk_bf16_f32 v{dst}, v{src}, v{src+1}", f"v_cvt_pk_bf16_f32 v{dst+1}, v{src+2}, v{src+3}")
    KT = [K0, K1]
    cvt(K1, acc(2, 1)); cvt(K1+4, acc(3, 1)); cvt(XR_, acc(4, 1))
    for n in range(3): cvt(VV[n]+4, acc(5+n, 1))
    cvt(HC, HA); cvt(HC+2, HA+4)
    a(f"v_lshlrev_b32 v14, 3, v{V_LANE}", f"s_mul_i32 s31, s{S_WAVE}, 3072", f"s_add_u32 s32, s31, {XCH}", "v_add_u32 v15, s32, v14")
    a("s_lshl_b32 s33, s29, 9", f"s_add_u32 s33, s33, {XCH}", "v_add_u32 v16, s33, v14")
    a(f"ds_write_b64 v16, v[{HC}:{HC+1}]", f"ds_write_b64 v16, v[{HC+2}:{HC+3}] offset:1536")
    a(f"s_cmp_eq_u32 s{S_WAVE}, 3", "s_cbranch_scc1 L_a1_noxch")
    for n, r in enumerate([K1, K1+4, XR_, VV[0]+4, VV[1]+4, VV[2]+4]):
        a(f"ds_write_b64 v15, v[{r}:{r+1}] offset:{3072 + 512*n}")
    a.label("L_a1_noxch")
    cvt(K0, acc(2, 0)); cvt(K0+4, acc(3, 0))
    for n in range(3): cvt(VV[n]+2, acc(5+n, 0))
    for j in range(2):
        q0, q1 = QO[j]; x = acc(4, j)
        cvt(q0, acc(0, j)); cvt(q1+2, acc(1, j))
        a(f"v_cvt_pk_bf16_f32 v{q0+2}, v{x}, v{x+1}", f"v_cvt_pk_bf16_f32 v{q1+1}, v{x+2}, v{x+3}",
          f"v_mov_b32 v{q0+3}, 0", f"v_mov_b32 v{q1}, 0", f"v_mov_b32 v{KT[j]+2}, 0", f"v_mov_b32 v{KT[j]+3}, 0")
        a(f"v_permlane16_swap_b32 v{q0+2}, v{KT[j]+2}", f"v_permlane16_swap_b32 v{q1+1}, v{KT[j]+3}")
    a(f"v_add_u32 v17, 16, v12", "v_add_u32 v18, 32, v12", f"v_cmp_gt_u32 vcc, 16, v{V_LANE}", "v_cndmask_b32 v17, v18, v17, vcc",
      "v_lshlrev_b32 v17, 3, v17", "v_add_u32 v17, s32, v17")
    a("s_waitcnt lgkmcnt(0)", "s_barrier")
    pr.stamp("a1xch")
    a(f"ds_read_b64 v[{KP}:{KP+1}], v15", f"ds_read_b64 v[{KP+4}:{KP+5}], v15 offset:512", f"ds_read_b64 v[{KP+2}:{KP+3}], v17 offset:1024")
    for n in range(3): a(f"ds_read_b64 v[{VV[n]}:{VV[n]+1}], v15 offset:{1536 + 512*n}")
    units = [(1, 0), (1, 1), (0, 0), (0, 1)]
    SS = lambda u: 32 + 8*u
    PP = lambda u: 64 + 4*u
    OO = lambda u: 80 + 8*u if u < 3 else 164
    for u, (j, h) in enumerate(units):
        if u == 2: a("s_waitcnt lgkmcnt(0)")
        prev = (K0 if j == 1 else KP) + 2*h; cur = KT[j] + 2*h; q = QO[j][h]
        a(f"v_mfma_f32_16x16x32_bf16 v[{SS(u)}:{SS(u)+3}], v[{prev}:{prev+3}], v[{q}:{q+3}], 0",
          f"v_mfma_f32_16x16x32_bf16 v[{SS(u)+4}:{SS(u)+7}], v[{cur}:{cur+3}], v[{q}:{q+3}], 0")
    a(f"v_mov_b32 v18, {f32(-3.0e38)}", f"s_mov_b32 s34, {f32(math.log2(math.e) / math.sqrt(DH))}")
    MX, TM, SM = 20, 24, 28
    for r in range(8):
        for u, (j, h) in enumerate(units):
            m = (52 + 2*(r-4)) if r >= 4 else ((44 if j == 1 else 60) + 2*r)
            a(f"v_cndmask_b32 v{SS(u)+r}, v18, v{SS(u)+r}, s[{m}:{m+1}]")
    for u in range(4): a(f"v_max3_f32 v{MX+u}, v{SS(u)}, v{SS(u)+1}, v{SS(u)+2}")
    for u in range(4): a(f"v_max3_f32 v{MX+u}, v{MX+u}, v{SS(u)+3}, v{SS(u)+4}")
    for u in range(4): a(f"v_max3_f32 v{MX+u}, v{MX+u}, v{SS(u)+5}, v{SS(u)+6}")
    for u in range(4): a(f"v_max_f32 v{MX+u}, v{MX+u}, v{SS(u)+7}")
    xreduce(a, [MX+u for u in range(4)], TM, op="v_max_f32")
    for u in range(4): a(f"v_mul_f32 v{MX+u}, s34, v{MX+u}")
    for r in range(8):
        for u in range(4): a(f"v_fma_f32 v{SS(u)+r}, v{SS(u)+r}, s34, -v{MX+u}")
        for u in range(4): a(f"v_exp_f32 v{SS(u)+r}, v{SS(u)+r}")
    for u in range(4): a(f"v_add_f32 v{SM+u}, v{SS(u)}, v{SS(u)+1}")
    for r in range(2, 8):
        for u in range(4): a(f"v_add_f32 v{SM+u}, v{SM+u}, v{SS(u)+r}")
    xreduce(a, [SM+u for u in range(4)], TM)
    for u in range(4): a(f"v_rcp_f32 v{SM+u}, v{SM+u}")
    for r in range(8):
        for u in range(4): a(f"v_mul_f32 v{SS(u)+r}, v{SS(u)+r}, v{SM+u}")
    for u in range(4):
        for d in range(4): a(f"v_cvt_pk_bf16_f32 v{PP(u)+d}, v{SS(u)+2*d}, v{SS(u)+2*d+1}")
    for u, (j, h) in enumerate(units):
        va = VV[h] + 2*j; vx = VV[2] + 2*j
        a(f"v_mfma_f32_16x16x32_bf16 v[{OO(u)}:{OO(u)+3}], v[{va}:{va+3}], v[{PP(u)}:{PP(u)+3}], 0",
          f"v_mfma_f32_16x16x32_bf16 v[{OO(u)+4}:{OO(u)+7}], v[{vx}:{vx+3}], v[{PP(u)}:{PP(u)+3}], 0")
    a("v_lshlrev_b32 v14, 4, v12", f"v_mov_b32 v15, {OOB}", f"v_cmp_gt_u32 vcc, 16, v{V_LANE}", "v_cndmask_b32 v14, v15, v14, vcc")
    a(f"s_add_u32 s26, s24, s{sL['OB']}", "s_lshl_b32 s27, s21, 10", "s_add_u32 s27, s27, s26",
      "s_lshr_b32 s28, s21, 1", "s_lshl_b32 s28, s28, 8", "s_and_b32 s30, s21, 1", "s_lshl_b32 s30, s30, 3", "s_add_u32 s28, s28, s30",
      f"s_add_u32 s28, s28, {64*256}", "s_add_u32 s28, s28, s26", f"s_add_u32 s30, s27, {TILE}", f"s_add_u32 s31, s28, {TILE}")
    for j in (1, 0):
        u0 = units.index((j, 0)); u1 = units.index((j, 1)); o = 172 + 8*j
        cvt(o, OO(u0)); cvt(o+2, OO(u1))
        a(f"v_cvt_pk_bf16_f32 v{o+4}, v{OO(u0)+4}, v{OO(u0)+5}", f"v_cvt_pk_bf16_f32 v{o+5}, v{OO(u1)+6}, v{OO(u1)+7}")
        vm.op(f"buffer_store_dwordx4 v[{o}:{o+3}], v{V_L16}, {WS}, s{30 if j else 27} offen {cp}")
        vm.op(f"buffer_store_dwordx2 v[{o+4}:{o+5}], v14, {WS}, s{31 if j else 28} offen {cp}")
    a("s_lshl_b32 s26, s20, 2", f"s_add_u32 s26, s26, s{S_WAVE}", "s_lshl_b32 s26, s26, 4", "s_add_u32 s26, s26, s21", "s_lshl_b32 s26, s26, 2",
      f"s_add_u32 s26, s26, s{sL['FL']}", f"s_add_u32 s26, s26, {FL_O}")
    pr.stamp('a1att')
    publish(a, 26)
    pr.stamp("a1end")
```

```python
from gen_common import *

def gen_a2(a, sL, pr, cp="sc1"):
    vm = VM(a)
    ACC, RES, RING, NW = 32, 56, 216, 8
    VU8, VLB = 4, 5
    a(f"s_lshr_b32 s20, s{S_I}, 3", f"s_lshl_b32 s21, s{S_X}, 2", "s_add_u32 s20, s20, s21", "s_lshl_b32 s20, s20, 2",
      f"s_add_u32 s20, s20, s{S_WAVE}")
    a(f"s_and_b32 s21, s{S_I}, 7")
    def poll():
        a("s_lshr_b32 s22, s20, 2", "s_lshl_b32 s22, s22, 7", f"s_add_u32 s22, s22, s{sL['FL']}", f"s_add_u32 s22, s22, {FL_O}",
          f"v_and_b32 v6, 31, v{V_LANE}", "v_lshlrev_b32 v6, 2, v6")
        await_flags(a, 6, 22)
    def prefetch():
        a(f"s_mul_i32 s22, s21, {PO_TASK}", f"s_sub_u32 s23, s{S_WAVE}, 1", f"s_mul_i32 s23, s23, {30*1024}", "s_add_u32 s22, s22, s23", f"s_add_u32 s22, s22, {PO}")
        dma_copy(a, VM(a), 30, 22, 23)
    poll_or_prefetch(a, "a2", poll, prefetch)
    pr.stamp("a2go")
    a(f"s_mul_i32 s24, s20, {TILE}", f"s_add_u32 s25, s24, s{sL['OB']}")
    xt = []
    for k in range(18):
        if k % 4 == 0 and k: a("s_add_u32 s25, s25, 4096")
        xt.append(vm.op(f"buffer_load_dwordx4 a[{4*k}:{4*k+3}], v{V_L16}, {WS}, s25 offen offset:{(k % 4)*1024} {cp}"))
    a(f"s_mul_i32 s26, s21, {9*256}", "s_add_u32 s26, s26, s24", f"s_add_u32 s27, s26, s{sL['XR']}")
    a(f"v_and_b32 v6, 15, v{V_LANE}", f"v_lshrrev_b32 v7, 4, v{V_LANE}", "v_lshlrev_b32 v8, 4, v6", "v_lshl_add_u32 v8, v7, 3, v8",
      "v_add_u32 v8, 2048, v8", f"v_mov_b32 v9, {OOB}", f"v_cmp_gt_u32 vcc, 32, v{V_LANE}", f"v_cndmask_b32 v{VU8}, v9, v8, vcc")
    rt = [vm.op(f"buffer_load_dwordx4 v[{RES}:{RES+3}], v{V_L16}, {WS}, s27 offen {cp}"),
          vm.op(f"buffer_load_dwordx4 v[{RES+4}:{RES+7}], v{V_L16}, {WS}, s27 offen offset:1024 {cp}"),
          vm.op(f"buffer_load_dwordx2 v[{RES+8}:{RES+9}], v{VU8}, {WS}, s27 offen {cp}")]
    a(f"v_add_u32 v{VLB}, 0x10000, v{V_L16}")
    pr.stamp("a2iss")
    vm.wait(0); a("s_barrier")
    pr.stamp("a2bar")
    order = [(k0 + c, t) for k0 in range(0, 18, 2) for t in range(5) for c in range(2)]
    def rd(n):
        k, t = order[n]; off = (k*5 + t)*1024; w = RING + 4*(n % NW)
        return f"ds_read_b128 a[{w}:{w+3}], v{V_L16 if off < 65536 else VLB} offset:{off % 65536}"
    PF_ = 6
    for n in range(PF_): a(rd(n))
    for n, (k, t) in enumerate(order):
        if n % 10 == 0: vm.wait(xt[k+1]); pr.stamp(f'a2k{k}')
        issued = min(len(order), n + PF_)
        if n % 2 == 0: a(f"s_waitcnt lgkmcnt({max(0, issued - n - 2)})")
        w = RING + 4*(n % NW); d = ACC + 4*t
        a(f"v_mfma_f32_16x16x32_bf16 v[{d}:{d+3}], a[{w}:{w+3}], a[{4*k}:{4*k+3}], {'0' if k == 0 else f'v[{d}:{d+3}]'}")
        if n + PF_ < len(order): a(rd(n + PF_))
    pr.stamp('a2gemm')
    vm.wait(rt[-1])
    for t in range(5):
        for h in range(2):
            r = RES + 2*t + h; d = ACC + 4*t + 2*h; u = 68 + 2*((2*t+h) % 4)
            a(f"v_lshlrev_b32 v{u}, 16, v{r}", f"v_and_b32 v{u+1}, 0xffff0000, v{r}",
              f"v_add_f32 v{d}, v{d}, v{u}", f"v_add_f32 v{d+1}, v{d+1}, v{u+1}")
    OUT = 80
    for t in range(5):
        for h in range(2): a(f"v_cvt_pk_bf16_f32 v{OUT+2*t+h}, v{ACC+4*t+2*h}, v{ACC+4*t+2*h+1}")
    a(f"s_add_u32 s27, s26, s{sL['X1']}")
    vm.op(f"buffer_store_dwordx4 v[{OUT}:{OUT+3}], v{V_L16}, {WS}, s27 offen {cp}")
    vm.op(f"buffer_store_dwordx4 v[{OUT+4}:{OUT+7}], v{V_L16}, {WS}, s27 offen offset:1024 {cp}")
    vm.op(f"buffer_store_dwordx2 v[{OUT+8}:{OUT+9}], v{VU8}, {WS}, s27 offen {cp}")
    a(f"v_add_f32 v10, v{ACC}, v{ACC+1}", f"v_mul_f32 v11, v{ACC}, v{ACC}", f"v_mul_f32 v13, v{ACC+1}, v{ACC+1}", "v_mov_b32 v12, 0")
    for e in range(2, 20, 2):
        a(f"v_add_f32 v10, v10, v{ACC+e}", f"v_add_f32 v12, v12, v{ACC+e+1}",
          f"v_fmac_f32 v11, v{ACC+e}, v{ACC+e}", f"v_fmac_f32 v13, v{ACC+e+1}, v{ACC+e+1}")
    a("v_add_f32 v10, v10, v12", "v_add_f32 v11, v11, v13")
    xreduce(a, [10, 11], 12)
    a("v_lshlrev_b32 v8, 3, v6", f"v_cmp_gt_u32 vcc, 16, v{V_LANE}", "v_cndmask_b32 v8, v9, v8, vcc")
    a("s_lshl_b32 s27, s20, 10", "s_lshl_b32 s28, s21, 7", "s_add_u32 s27, s27, s28", f"s_add_u32 s27, s27, s{sL['ST']}")
    vm.op(f"buffer_store_dwordx2 v[10:11], v8, {WS}, s27 offen {cp}")
    a("s_lshr_b32 s27, s20, 2", "s_lshl_b32 s27, s27, 3", "s_add_u32 s27, s27, s21", "s_lshl_b32 s27, s27, 2", f"s_add_u32 s27, s27, s{S_WAVE}",
      "s_lshl_b32 s27, s27, 2", f"s_add_u32 s27, s27, s{sL['FL']}", f"s_add_u32 s27, s27, {FL_X}")
    pr.stamp('a2st')
    publish(a, 27)
    pr.stamp("a2end")
```

```python
from asmlib import *
from layout import *

KA = dict(x=0, wqkv=8, wo=16, wg=32, wu=40, wd=48, out=56, dbg=64, ws=72)
WS = "s[8:11]"
S_WAVE = 4
S_X, S_I = 5, 6
V_LANE, V_L16 = 1, 2
OOB = 0x7ff00000

class VM:
    def __init__(self, a): self.a = a; self.n = 0
    def op(self, text):
        self.a(text); self.n += 1
        return self.n
    def count_after(self, tag): return self.n - tag
    def wait(self, tag):
        self.a(f"s_waitcnt vmcnt({min(63, self.n - tag)})")

def srd(a, dst, src, nbytes):
    a(f"s_mov_b32 s{dst}, s{src}", f"s_and_b32 s{dst+1}, s{src+1}, 0xffff",
      f"s_mov_b32 s{dst+2}, {nbytes}", f"s_mov_b32 s{dst+3}, 0x20000")

def entry(a, name, nwg, end):
    a(".p2align 8"); a(f".globl {name}"); a(f".type {name},@function"); a.label(name)
    a(f"s_cmp_ge_u32 s2, {nwg}", f"s_cbranch_scc1 {end}")

def common(a):
    a(f"s_load_dwordx2 s[12:13], s[0:1], {KA['ws']}")
    a(f"v_and_b32 v{V_LANE}, 63, v0", "v_lshrrev_b32 v3, 6, v0", f"v_lshlrev_b32 v{V_L16}, 4, v{V_LANE}")
    a(f"v_readfirstlane_b32 s{S_WAVE}, v3")
    a(f"s_and_b32 s{S_X}, s2, 7", f"s_lshr_b32 s{S_I}, s2, 3")
    a("s_waitcnt lgkmcnt(0)")
    srd(a, 8, 12, WS_BYTES)

def xreduce(a, regs, tmp, steps=("16", "32"), op="v_add_f32"):
    for st in steps:
        if st == "8":
            for r in regs: a(f"{op}_dpp v{r}, v{r}, v{r} row_ror:8 row_mask:0xf bank_mask:0xf")
            continue
        for n, r in enumerate(regs): a(f"v_mov_b32 v{tmp+n}, v{r}")
        for n, r in enumerate(regs): a(f"v_permlane{st}_swap_b32 v{r}, v{tmp+n}")
        for n, r in enumerate(regs): a(f"{op} v{r}, v{r}, v{tmp+n}")

_uid = [0]
def publish(a, s_addr):
    a(f"v_mov_b32 v14, {OOB}", f"v_cmp_eq_u32 vcc, 0, v{V_LANE}", "v_cndmask_b32 v14, v14, 0, vcc", "v_mov_b32 v15, 1")
    a("s_waitcnt vmcnt(0)", f"buffer_store_dword v15, v14, {WS}, s{s_addr} offen sc1")

def await_flags(a, v_off, s_base, wide=False):
    _uid[0] += 1; u = _uid[0]
    a("s_mov_b32 s52, 0"); a.label(f"L_poll{u}")
    if wide:
        a(f"buffer_load_dwordx2 v[14:15], v{v_off}, {WS}, s{s_base} offen sc1", "s_add_u32 s52, s52, 1", "s_waitcnt vmcnt(0)", "v_min_u32 v14, v14, v15")
    else:
        a(f"buffer_load_dword v14, v{v_off}, {WS}, s{s_base} offen sc1", "s_add_u32 s52, s52, 1", "s_waitcnt vmcnt(0)")
    a("v_cmp_ne_u32 vcc, 0, v14", "s_cmp_gt_u32 s52, 0x80000", f"s_cbranch_scc1 L_got{u}", "s_cmp_eq_u64 vcc, exec", f"s_cbranch_scc0 L_poll{u}")
    a.label(f"L_got{u}")

def dma_copy(a, vm, nfrag, s_src, s_lds, s_tmp=40, pol=""):
    tags = []
    for q0 in range(0, nfrag, 4):
        a(f"s_add_u32 m0, s{s_lds}, {q0*1024}", f"s_add_u32 s{s_tmp}, s{s_src}, {q0*1024}")
        for q in range(min(4, nfrag - q0)):
            tags.append(vm.op(f"buffer_load_dwordx4 v{V_L16}, {WS}, s{s_tmp} offen offset:{q*1024} lds {pol}"))
    return tags

def poll_or_prefetch(a, name, poll, prefetch):
    a(f"s_cmp_eq_u32 s{S_WAVE}, 0", f"s_cbranch_scc0 L_{name}_pre")
    poll()
    a(f"s_branch L_{name}_go")
    a.label(f"L_{name}_pre")
    prefetch()
    a.label(f"L_{name}_go")
    a("s_barrier")

def f32(x):
    import struct
    return "0x%08x" % struct.unpack("<I", struct.pack("<f", x))[0]

class Prof:
    regs = list(range(78, 100, 2)) + list(range(54, 70, 2)) + [100]
    sets = {1: "a1go a1k2 a1gemm a1end a2go a2gemm a2end fgo s18 s144 s162 s225 fst fend rgo rsum rend".split(),
            2: "fgo fiss fbar s0 s2 s4 s8 s12 s18 s36 s141 s144 s150 s156 s162 s171 rend".split(),
            3: "a1go a1iss a1bar a1k2 a1k8 a1gemm a1xch a1att a1end a2go a2iss a2bar a2k2 a2gemm a2st a2end rend".split()}
    def __init__(self, a, on): self.a = a; self.on = on; self.n = 0; self.names = []
    def stamp(self, name, cyc=False):
        if not self.on or (name not in self.sets[self.on] and name not in ("c0", "c1", "start")): return
        assert self.n < len(self.regs)
        r = self.regs[self.n]; self.n += 1; self.names.append(name)
        self.a(f"s_mem{'' if cyc else 'real'}time s[{r}:{r+1}]")
    def flush(self, s_slot):
        if not self.on: return
        a = self.a
        a("s_waitcnt lgkmcnt(0)", "v_mov_b32 v250, 0")
        for i in range(self.n): a(f"v_writelane_b32 v250, s{self.regs[i]}, {i}")
        a(f"s_lshl_b32 s100, s{s_slot}, 16", "s_lshl_b32 s101, s2, 8", "s_add_u32 s100, s100, s101", f"s_add_u32 s100, s100, {PROF}",
          f"v_lshlrev_b32 v251, 2, v0", f"v_mov_b32 v252, {OOB}", "v_cmp_gt_u32 vcc, 64, v0", "v_cndmask_b32 v251, v252, v251, vcc",
          f"buffer_store_dword v250, v251, {WS}, s100 offen")
```

```python
from gen_common import *
import math

STAGE, NS, PER = 24, 6, 6
SLOT0 = 4
F_LDS = STAGE * NS * 1024
NSTAGE = (486 + STAGE - 1) // STAGE
MF = "v_mfma_f32_16x16x32_bf16"

def cost(x):
    if callable(x) or isinstance(x, tuple): return 1
    return 2 if x.split()[0] in TRANS else 1

def gen_f(a, sL, tail, pr, cp="sc1", xcp="sc1", mapping=0):
    vm = VM(a); tag = {}
    VJ = [V_L16, 4, 5, 6]; VB = [V_L16, 7, 8]
    VODD, VFS, VFL, VFV = 9, 10, 11, 12
    XV, RING, NW = 16, 48, 8
    ACC = [80, 112]; HOWN, TMP, HS, CON = 144, 208, 224, 232
    OUT = 112
    sX, sW, sWd, sH, sM, sP, sF = 20, 21, 22, 24, 28, 31, 34
    if mapping == 0:
        a(f"s_and_b32 s40, s{S_X}, 1", "s_lshl_b32 s40, s40, 2", f"s_lshr_b32 s41, s{S_I}, 3", "s_add_u32 s40, s40, s41",
          f"s_lshr_b32 s41, s{S_X}, 1", "s_lshl_b32 s41, s41, 3", f"s_and_b32 s42, s{S_I}, 7", "s_add_u32 s41, s41, s42")
    else:
        a(f"s_lshr_b32 s40, s{S_I}, 2", f"s_lshl_b32 s41, s{S_X}, 2", f"s_and_b32 s42, s{S_I}, 3", "s_add_u32 s41, s41, s42")
    a("s_lshr_b32 s42, s41, 2", "s_and_b32 s43, s41, 3")
    a("s_lshl_b32 s44, s40, 4", f"s_lshl_b32 s45, s{S_WAVE}, 2", "s_add_u32 s44, s44, s45")
    a(f"s_mul_i32 s46, s44, {TILE}", f"s_add_u32 s{sX}, s46, s{sL['X1']}")
    a(f"s_mul_i32 s{sWd}, s{S_WAVE}, {PER*1024}", f"s_mul_i32 s{sW}, s41, {PF_TASK}", f"s_add_u32 s{sW}, s{sW}, s{sWd}", f"s_add_u32 s{sW}, s{sW}, {PF}")
    def xpoll():
        a("s_lshl_b32 s47, s40, 9", f"s_add_u32 s47, s47, s{sL['FL']}", f"s_add_u32 s47, s47, {FL_X}", f"v_lshlrev_b32 v13, 3, v{V_LANE}")
        await_flags(a, 13, 47, wide=True)
    def wpre():
        a(f"s_sub_u32 s47, s{S_WAVE}, 1", "s_lshl_b32 s47, s47, 14", f"s_sub_u32 s48, s{sW}, s{sWd}", "s_add_u32 s48, s48, s47",
          f"s_add_u32 s47, s47, {SLOT0*STAGE*1024}")
        dma_copy(a, VM(a), 16, 48, 47, s_tmp=23)
    poll_or_prefetch(a, "f", xpoll, wpre)
    pr.stamp("fgo")
    for j in range(1, 4): a(f"v_add_u32 v{VJ[j]}, {j*TILE}, v{V_L16}")
    a(f"v_and_b32 v13, 15, v{V_LANE}", f"v_lshrrev_b32 v14, 4, v{V_LANE}")
    a("v_lshlrev_b32 v15, 3, v13", "v_lshl_add_u32 v15, v14, 8, v15")
    a("s_lshl_b32 s47, s44, 10", f"s_add_u32 s47, s47, s{sL['ST']}")
    for j in range(4):
        for h in range(2):
            r = HOWN + 4*j + 2*h
            tag["st"] = vm.op(f"buffer_load_dwordx2 v[{r}:{r+1}], v15, {WS}, s47 offen offset:{j*1024 + h*128} {xcp}")
    def dma(stage):
        out = []
        slot = (stage + SLOT0) % NS
        for q0 in (0, 4):
            out += [f"s_add_u32 m0, s{sWd}, {slot*STAGE*1024 + q0*1024}", f"s_add_u32 s23, s{sW}, {stage*STAGE*1024 + q0*1024}"]
            out += [("vm", f"buffer_load_dwordx4 v{V_L16}, {WS}, s23 offen offset:{q*1024} lds", ("w", stage)) for q in range(min(4, PER - q0))]
        return out
    def xreg(k, j): return f"a[{(4*k+j)*4}:{(4*k+j)*4+3}]" if k < 16 else f"v[{XV + (4*(k-16)+j)*4}:{XV + (4*(k-16)+j)*4+3}]"
    def xload(k):
        out = [f"s_add_u32 s48, s{sX}, {(k >> 2)*4096}"] if k % 4 == 0 else []
        return out + [("vm", f"buffer_load_dwordx4 {xreg(k, j)}, v{VJ[j]}, {WS}, s48 offen offset:{(k & 3)*1024} {xcp}", ("x", k)) for j in range(4)]
    def emit(x):
        if callable(x): x()
        elif isinstance(x, tuple): tag[x[2]] = vm.op(x[1])
        else: a(x)
    tag[("w", 0)] = tag[("w", 1)] = 0
    for k in range(12):
        for x in xload(k): emit(x)
    a(f"v_add_u32 v{VB[1]}, 0x10000, v{V_L16}", f"v_add_u32 v{VB[2]}, 0x20000, v{V_L16}")
    a(f"v_and_b32 v{VODD}, 1, v14", f"v_mul_u32_u24 v{VODD}, {TILE}, v{VODD}", "v_lshrrev_b32 v15, 1, v14", "v_lshlrev_b32 v15, 8, v15",
      "v_lshl_add_u32 v15, v13, 4, v15", f"v_add_u32 v{VODD}, v{VODD}, v15")
    a(f"v_and_b32 v{VFL}, 3, v{V_LANE}", f"v_lshlrev_b32 v{VFL}, 2, v{VFL}", "s_lshl_b32 s49, s43, 2", f"v_mov_b32 v{VFS}, {OOB}",
      "v_mov_b32 v15, s49", f"v_cmp_eq_u32 vcc, 0, v{V_LANE}", f"v_cndmask_b32 v{VFS}, v{VFS}, v15, vcc")
    a("s_lshl_b32 s49, s40, 3", "s_add_u32 s49, s49, s42")
    a("s_lshl_b32 s50, s49, 2", f"s_add_u32 s50, s50, s{S_WAVE}", "s_lshl_b32 s50, s50, 6", f"s_add_u32 s{sF}, s50, s{sL['FL']}", f"s_add_u32 s{sF}, s{sF}, {FL_H}")
    a("s_lshl_b32 s49, s49, 4", "s_add_u32 s49, s49, s45", f"s_mul_i32 s49, s49, {TILE}", f"s_add_u32 s49, s49, s{sL['HB']}")
    for rel in range(4):
        a(f"s_add_u32 s50, s43, {rel}", "s_and_b32 s50, s50, 3", "s_mul_i32 s50, s50, 9", "s_add_u32 s50, s50, 1", "s_lshr_b32 s50, s50, 1",
          "s_lshl_b32 s50, s50, 10", f"s_add_u32 s{sH+rel}, s49, s50")
    a(f"s_add_u32 s{sM}, s49, {4*1024}", f"s_add_u32 s{sM+1}, s49, {13*1024}", "s_cmp_ge_u32 s43, 2", f"s_cselect_b32 s50, s{sM+1}, s{sM}",
      "s_and_b32 s51, s43, 1", "s_lshl_b32 s51, s51, 3", f"s_add_u32 s{sM+2}, s50, s51")
    a(f"s_mul_i32 s50, s42, {ACT}", "s_add_u32 s50, s50, s46", "s_mul_i32 s51, s43, 4608", "s_add_u32 s50, s50, s51",
      f"s_add_u32 s{sP}, s50, s{sL['PART']}", f"s_add_u32 s{sP+1}, s{sP}, 4096", f"s_add_u32 s{sP+2}, s{sP+1}, {2*TILE}")
    pr.stamp("fiss")
    vm.wait(tag["st"])
    sr = []
    for j in range(4):
        r = HOWN + 4*j
        a(f"v_add_f32 v{r}, v{r}, v{r+2}", f"v_add_f32 v{r+1}, v{r+1}, v{r+3}"); sr += [r, r+1]
    xreduce(a, sr, HOWN + 16)
    k1 = -2.0 * math.sqrt(2.0 / math.pi) * math.log2(math.e); k2 = k1 * 0.044715
    for j in range(4):
        r = HOWN + 4*j; c = CON + 3*j
        a(f"v_mul_f32 v{r}, {f32(1/576)}, v{r}", f"v_mul_f32 v{r+1}, {f32(1/576)}, v{r+1}", f"v_fma_f32 v{r+1}, -v{r}, v{r}, v{r+1}",
          f"v_max_f32 v{r+1}, 0, v{r+1}", f"v_add_f32 v{c+2}, {f32(1e-5)}, v{r+1}", f"v_rsq_f32 v{r}, v{c+2}")
    for j in range(4):
        r = HOWN + 4*j; c = CON + 3*j
        a(f"v_mul_f32 v{c}, {f32(k1)}, v{r}", f"v_mul_f32 v{r+1}, v{r}, v{r}", f"v_mul_f32 v{r+1}, v{r+1}, v{r}", f"v_mul_f32 v{c+1}, {f32(k2)}, v{r+1}")

    def gelu(pos):
        acc = ACC[pos % 2]; out = []
        for j in range(4):
            c = CON + 3*j
            for h in range(2):
                st = []
                for e in range(2):
                    g = acc + 4*j + 2*h + e; u = g + 16; t = TMP + 4*((2*j + h) % 2) + 2*e
                    st.append([f"v_mul_f32 v{t}, v{g}, v{g}", f"v_fma_f32 v{t}, v{t}, v{c+1}, v{c}", f"v_mul_f32 v{t}, v{t}, v{g}",
                               f"v_exp_f32 v{t}, v{t}", f"v_mul_f32 v{t+1}, v{g}, v{u}", f"v_fma_f32 v{t}, v{t}, v{c+2}, v{c+2}",
                               f"v_rcp_f32 v{t}, v{t}", f"v_mul_f32 v{t+1}, v{t+1}, v{t}"])
                for x, y in zip(*st): out += [x, y]
                t = TMP + 4*((2*j + h) % 2)
                dst = HS + 2*j + h if pos == 0 else HOWN + 16*((pos-1)//2) + 4*j + 2*((pos-1) % 2) + h
                out.append(f"v_cvt_pk_bf16_f32 v{dst}, v{t+1}, v{t+3}")
            if pos == 0:
                out.append(("vm", f"buffer_store_dwordx2 v[{HS+2*j}:{HS+2*j+1}], v{VJ[j]}, {WS}, s{sM+2} offen {cp}", ("hs", 0)))
            elif pos % 2 == 0:
                p = (pos-1)//2; r = HOWN + 16*p + 4*j
                out.append(("vm", f"buffer_store_dwordx4 v[{r}:{r+3}], v{VJ[j]}, {WS}, s{sH} offen offset:{p*1024} {cp}", ("hs", pos)))
        return out
    hreg = {0: ("v", HOWN), 1: ("v", HOWN+16), 2: ("v", HOWN+32), 11: ("v", HOWN+48)}
    for n, pos in enumerate(range(3, 10)): hreg[pos] = ("a", 16*n)
    hreg[10] = ("v", XV); hreg[12] = ("v", XV+16); hreg[13] = ("v", ACC[1]); hreg[14] = ("v", ACC[1]+16)
    hreg[15] = ("v", ACC[0]); hreg[16] = ("v", ACC[0]+16); hreg[17] = ("v", HOWN)
    def hfrag(pos, j):
        k, r = hreg[pos]; return f"{k}[{r+4*j}:{r+4*j+3}]"
    def hload(pos):
        rel, p = KPOS[pos]
        so, off = (f"s{sM+p}", 0) if rel == "mix" else (f"s{sH+rel}", p*1024)
        return [("vm", f"buffer_load_dwordx4 {hfrag(pos, j)}, v{VJ[j]}, {WS}, {so} offen offset:{off} {cp}", ("h", pos)) for j in range(4)]
    def set_flag(val):
        return [f"v_mov_b32 v{VFV}, {val}", ("vm", f"buffer_store_dword v{VFV}, v{VFS}, {WS}, s{sF} offen sc1", ("fs", val))]
    def poll(val):
        return [("vm", f"buffer_load_dword v13, v{VFL}, {WS}, s{sF} offen sc1", ("fl", val))]
    def check(val):
        def f():
            vm.wait(tag[("fl", val)])
            a(f"v_cmp_le_u32 vcc, {val}, v13", "s_nop 0", "s_cmp_eq_u64 vcc, exec", f"s_cbranch_scc0 L_f_slow{val}")
            a.label(f"L_f_back{val}")
            tail(f"L_f_slow{val}:", "s_mov_b32 s52, 0", f"L_f_spin{val}:", "s_sleep 1",
                 f"buffer_load_dword v13, v{VFL}, {WS}, s{sF} offen sc1", "s_add_u32 s52, s52, 1", "s_waitcnt vmcnt(0)",
                 f"v_cmp_le_u32 vcc, {val}, v13", "s_cmp_gt_u32 s52, 0x40000", f"s_cbranch_scc1 L_f_back{val}",
                 "s_cmp_eq_u64 vcc, exec", f"s_cbranch_scc0 L_f_spin{val}", f"s_branch L_f_back{val}")
        return f
    def epilogue(tiles):
        out = []
        if len(tiles) == 2:
            P = tiles[0] // 2
            for j in range(4):
                t = TMP + 8*(j % 2); pk = HS + 4*(j % 2)
                for n, tt in enumerate(tiles):
                    r = OUT + (tt*4 + j)*4
                    out += [f"v_accvgpr_read_b32 v{t+4*n+e}, a{r+e}" for e in range(4)]
                out += [f"v_cvt_pk_bf16_f32 v{pk+d}, v{t+2*d}, v{t+2*d+1}" for d in range(4)]
                out.append(("vm", f"buffer_store_dwordx4 v[{pk}:{pk+3}], v{VJ[j]}, {WS}, s{sP} offen offset:{P*1024} {xcp}", ("o", P)))
        else:
            for jp in range(2):
                t = TMP + 8*jp; pk = HS + 4*jp
                for n in range(2):
                    r = OUT + (8*4 + 2*jp + n)*4
                    out += [f"v_accvgpr_read_b32 v{t+4*n+e}, a{r+e}" for e in range(4)]
                out += [f"v_cvt_pk_bf16_f32 v{pk+d}, v{t+2*d}, v{t+2*d+1}" for d in range(4)]
                out += [f"v_permlane16_swap_b32 v{pk}, v{pk+2}", f"v_permlane16_swap_b32 v{pk+1}, v{pk+3}"]
                out.append(("vm", f"buffer_store_dwordx4 v[{pk}:{pk+3}], v{VODD}, {WS}, s{sP+1+jp} offen {xcp}", ("o", 4)))
        return out

    steps = []
    for pos in range(9):
        for kp in range(9):
            for mat in range(2):
                d = [f"v[{ACC[pos % 2] + 16*mat + 4*j}:{ACC[pos % 2] + 16*mat + 4*j + 3}]" for j in range(4)]
                steps.append(dict(d=d, b=[[xreg(2*kp + c, j) for c in range(2)] for j in range(4)], first=kp == 0,
                                  wait=("x", 2*kp+1) if pos == 0 and mat == 0 else None))
    P2 = len(steps)
    for start, n in KBLOCKS:
        for t in range(9):
            for c0 in range(0, n, 2):
                d = [f"a[{OUT + (t*4+j)*4}:{OUT + (t*4+j)*4 + 3}]" for j in range(4)]
                need_h = [p for p in (start+c0, start+c0+1) if KPOS[p][0] != 0]
                steps.append(dict(d=d, b=[[hfrag(start + c0 + c, j) for c in range(2)] for j in range(4)], first=start == 0,
                                  wait=("h", need_h[-1]) if need_h and t == 0 else None))
    NSTEP = len(steps)
    bstep = lambda b: (STAGE*b - 6) // 2
    memq = []; valq = []
    at_boundary = {}
    mem_at = {}; val_at = {}
    def add(d, s, items): d.setdefault(s, []).extend(items)
    for k in range(12, 18): add(mem_at, 0, xload(k))
    for st in (2, 3, 4): add(mem_at, 0, dma(st))
    for pos in range(9): add(val_at, 18*(pos+1), [(gelu(pos), 17 if pos < 8 else 11)])
    drain = {10: 1, 13: 2, 16: 3}
    pollb = {11: 1, 15: 2, 17: 3}
    add(mem_at, bstep(12) + 1, [check(1)])
    for n, pos in enumerate(range(3, 10)): add(mem_at, 18*8 + 2*(n//2) + 2, hload(pos))
    add(mem_at, P2, hload(10))
    add(mem_at, bstep(15) + 7, [check(2)] + hload(12) + hload(13) + hload(14))
    add(mem_at, bstep(17) + 7, [check(3)] + hload(15) + hload(16) + hload(17))
    fin = NSTEP - 18
    for P in range(4): add(val_at, fin + 4*P + 4, [(epilogue([2*P, 2*P+1]), 4 if P < 3 else 2)])
    def rd(n):
        off = ((n + SLOT0*STAGE) % (STAGE*NS))*1024; w = RING + 4*(n % NW)
        return f"ds_read_b128 v[{w}:{w+3}], v{VB[off // 65536]} offset:{off % 65536}"
    a("s_barrier")
    pr.stamp("fbar")
    for n in range(6): a(rd(n))
    issued = 6
    vrate = 0.0; vcredit = 0.0
    for s, st in enumerate(steps):
        memq += mem_at.get(s, [])
        for items, span in val_at.get(s, []):
            valq += items
            vrate = sum(cost(x) for x in valq) / (8.0*span); vcredit = -vrate*(3 if s < fin else 4)
        if st["wait"]: vm.wait(tag[st["wait"]])
        a(f"s_waitcnt lgkmcnt({issued - 2*s - 2})")
        pr.stamp(f"s{s}")
        burst = s < 9
        for n in range(8):
            j, c = n // 2, n % 2
            w = RING + 4*((2*s + c) % NW)
            a(f"{MF} {st['d'][j]}, v[{w}:{w+3}], {st['b'][j][c]}, {'0' if st['first'] and c == 0 else st['d'][j]}")
            room = 2 - (1 if n == 7 else 0)
            if n in (2, 6) and issued < 486:
                if issued % STAGE == 0:
                    b = issued // STAGE
                    while memq and any(isinstance(x, tuple) and x[2] == ("w", b) for x in memq): emit(memq.pop(0))
                    if b in drain: a("s_waitcnt vmcnt(0)")
                    else: vm.wait(tag[("w", b)])
                    a("s_barrier"); room -= 2
                    pre = []
                    if b in drain: pre += set_flag(drain[b])
                    if b in pollb: pre += poll(pollb[b])
                    for x in pre: emit(x)
                    if b + 4 < NSTAGE: memq = memq + dma(b + 4)
                a(rd(issued)); issued += 1; room -= 1
            if memq and (burst or (room > 0 and n % 2 == 1) or len(memq) > 12):
                emit(memq.pop(0)); room -= 1
                if burst and memq: emit(memq.pop(0)); room -= 1
            vcredit += vrate
            while valq and vcredit >= cost(valq[0]) - 0.5 and (room >= cost(valq[0]) or vcredit > 3):
                x = valq.pop(0); vcredit -= cost(x); room -= cost(x); emit(x)
        nxt = s + 1
        if nxt % 18 == 0 and nxt <= P2 or nxt == fin:
            while valq: emit(valq.pop(0))
    assert not memq, memq
    a("s_barrier")
    for x in valq + epilogue([8]): emit(x)
    a("s_lshl_b32 s47, s40, 2", f"s_add_u32 s47, s47, s{S_WAVE}", "s_lshl_b32 s47, s47, 5", "s_add_u32 s47, s47, s41", "s_lshl_b32 s47, s47, 2",
      f"s_add_u32 s47, s47, s{sL['FL']}", f"s_add_u32 s47, s47, {FL_P}")
    pr.stamp("fst")
    publish(a, 47)
    pr.stamp("fend")
```

```python
from gen_common import *

def gen_r(a, mode, layer, pr, cp="sc1", lds=0):
    vm = VM(a)
    VA, VN, T0 = 4, 5, 6
    DATA, SUM, PK = 16, 128, 152
    sT, sN = 20, 21
    a(f"v_and_b32 v6, 7, v{V_LANE}", f"v_lshrrev_b32 v7, 3, v{V_LANE}")
    a(f"s_mul_i32 s22, s{S_WAVE}, 24", "v_add_u32 v7, s22, v7")
    a(f"s_and_b32 s23, s{S_I}, 1", "s_lshl_b32 s23, s23, 3")
    a("v_add_u32 v8, s23, v6", "v_lshlrev_b32 v8, 4, v8", f"v_lshl_add_u32 v{VA}, v7, 8, v8")
    a(f"s_lshl_b32 s24, s{S_X}, 4", f"s_lshr_b32 s25, s{S_I}, 1", "s_add_u32 s24, s24, s25",
      f"s_mul_i32 s{sT}, s24, {TILE}")
    if mode != "mid":
        a(f"s_lshl_b32 s24, s{S_X}, 8", f"s_lshl_b32 s25, s{S_I}, 3", "s_add_u32 s24, s24, s25",
          "s_and_b32 s25, s24, 1023", "s_lshl_b32 s25, s25, 1", "s_lshr_b32 s24, s24, 10", "s_add_u32 s24, s24, s25",
          f"s_mul_i32 s{sN}, s24, 1152")
        a("v_mul_u32_u24 v8, 2304, v6", f"v_lshl_add_u32 v{VN}, v7, 4, v8")
        key = "x" if mode == "first" else "out"
        a(f"s_load_dwordx2 s[12:13], s[0:1], {KA[key]}", "s_waitcnt lgkmcnt(0)")
        srd(a, 16, 12, S * D * 2)
    tags = []
    if mode == "first":
        for j in range(3):
            tags.append(vm.op(f"buffer_load_dwordx4 v[{DATA+4*j}:{DATA+4*j+3}], v{VN}, s[16:19], s{sN} offen offset:{128*j}"))
        nsrc = 1
    else:
        nsrc = 9
        for s in range(9):
            base = X1[layer] if s == 0 else PART[layer] + (s-1) * ACT
            if s == 1:
                a(f"s_lshl_b32 s24, s{S_X}, 2", f"s_lshr_b32 s25, s{S_I}, 3", "s_add_u32 s24, s24, s25", "s_lshl_b32 s24, s24, 7",
                  f"s_add_u32 s24, s24, {FLAGS + layer*FL_LAYER + FL_P}", f"v_and_b32 v6, 31, v{V_LANE}", "v_lshlrev_b32 v6, 2, v6")
                await_flags(a, 6, 24)
                pr.stamp("rgo")
            a(f"s_add_u32 s24, s{sT}, {base}", "s_add_u32 s25, s24, 4096")
            for j in range(3):
                r = DATA + 12*s + 4*j
                so, off = ("s24", 2048*j) if j < 2 else ("s25", 0)
                tags.append(vm.op(f"buffer_load_dwordx4 v[{r}:{r+3}], v{VA}, {WS}, {so} offen offset:{off} {cp}"))
    for s in range(nsrc):
        for j in range(3):
            vm.wait(tags[3*s+j])
            for d in range(4):
                src = DATA + 12*s + 4*j + d; lo = SUM + 8*j + 2*d
                if s == 0:
                    a(f"v_lshlrev_b32 v{lo}, 16, v{src}", f"v_and_b32 v{lo+1}, 0xffff0000, v{src}")
                else:
                    t = T0 + 2*(d % 2)
                    a(f"v_lshlrev_b32 v{t}, 16, v{src}", f"v_and_b32 v{t+1}, 0xffff0000, v{src}",
                      f"v_add_f32 v{lo}, v{lo}, v{t}", f"v_add_f32 v{lo+1}, v{lo+1}, v{t+1}")
    pr.stamp("rsum")
    pk = DATA if mode == "first" else PK
    if mode != "first":
        for d in range(12): a(f"v_cvt_pk_bf16_f32 v{PK+d}, v{SUM+2*d}, v{SUM+2*d+1}")
    if mode == "last":
        for j in range(3):
            vm.op(f"buffer_store_dwordx4 v[{PK+4*j}:{PK+4*j+3}], v{VN}, s[16:19], s{sN} offen offset:{128*j}")
        return
    nl = 0 if mode == "first" else layer + 1
    a(f"s_add_u32 s24, s{sT}, {XR[nl]}", "s_add_u32 s25, s24, 4096")
    for j in range(3):
        so, off = ("s24", 2048*j) if j < 2 else ("s25", 0)
        vm.op(f"buffer_store_dwordx4 v[{pk+4*j}:{pk+4*j+3}], v{VA}, {WS}, {so} offen offset:{off} {cp}")
    a(f"v_add_f32 v6, v{SUM}, v{SUM+1}", f"v_mul_f32 v7, v{SUM}, v{SUM}", f"v_mul_f32 v9, v{SUM+1}, v{SUM+1}", "v_mov_b32 v8, 0")
    for e in range(2, 24, 2):
        a(f"v_add_f32 v6, v6, v{SUM+e}", f"v_add_f32 v8, v8, v{SUM+e+1}",
          f"v_fmac_f32 v7, v{SUM+e}, v{SUM+e}", f"v_fmac_f32 v9, v{SUM+e+1}, v{SUM+e+1}")
    a("v_add_f32 v6, v6, v8", "v_add_f32 v7, v7, v9")
    xreduce(a, [6, 7], 8, steps=("8", "16", "32"))
    a(f"v_and_b32 v10, 7, v{V_LANE}", "v_lshlrev_b32 v10, 3, v10", f"v_add_u32 v10, {lds}, v10", f"s_lshl_b32 s24, s{S_WAVE}, 6", "v_add_u32 v11, s24, v10")
    a("ds_write_b64 v11, v[6:7]", "s_waitcnt lgkmcnt(0)", "s_barrier")
    a("ds_read_b64 v[6:7], v10", "ds_read_b64 v[8:9], v10 offset:64", "ds_read_b64 v[12:13], v10 offset:128", "s_waitcnt lgkmcnt(0)")
    a("v_add_f32 v6, v6, v8", "v_add_f32 v7, v7, v9", "v_add_f32 v6, v6, v12", "v_add_f32 v7, v7, v13")
    a(f"v_mul_f32 v6, {f32(1/576)}, v6", f"v_mul_f32 v7, {f32(1/576)}, v7", "v_fma_f32 v7, -v6, v6, v7",
      "v_max_f32 v7, 0, v7", f"v_add_f32 v7, {f32(1e-5)}, v7", "v_rsq_f32 v7, v7")
    a("v_mul_f32 v6, v6, v7")
    for e in range(24): a(f"v_fma_f32 v{SUM+e}, v{SUM+e}, v7, -v6")
    XO = 168
    for d in range(12): a(f"v_cvt_pk_bf16_f32 v{XO+d}, v{SUM+2*d}, v{SUM+2*d+1}")
    a(f"s_add_u32 s24, s{sT}, {XN[nl]}", "s_add_u32 s25, s24, 4096")
    for j in range(3):
        so, off = ("s24", 2048*j) if j < 2 else ("s25", 0)
        vm.op(f"buffer_store_dwordx4 v[{XO+4*j}:{XO+4*j+3}], v{VA}, {WS}, {so} offen offset:{off} {cp}")
    if mode == "mid":
        a(f"s_lshl_b32 s24, s{S_X}, 4", f"s_lshr_b32 s25, s{S_I}, 1", "s_add_u32 s24, s24, s25", "s_lshl_b32 s24, s24, 3", f"s_and_b32 s25, s{S_I}, 1",
          "s_mul_i32 s25, s25, 3", "s_add_u32 s24, s24, s25", f"s_add_u32 s24, s24, s{S_WAVE}", "s_lshl_b32 s24, s24, 2",
          f"s_add_u32 s24, s24, {FLAGS + nl*FL_LAYER + FL_R}")
        publish(a, 24)
```

```python
import sys
from gen_common import *
from gen_r import gen_r
from gen_pack import gen_pack
from gen_a1 import gen_a1, a1_weights, a1_wait, A1_LDS, XCH
from gen_a2 import gen_a2
from gen_f import gen_f, F_LDS

NAME = "interleave_layers__sliding_local_dilated__glu_gated_geglu__prompt"
HEADER = open(f"/code/{NAME}.s.ref").read().split("; Override launch")[0]

SL = dict(XN=70, XR=71, OB=72, X1=73, ST=74, HB=75, PART=76, FL=77, LAYER=7)
def layer_regs(a, l):
    for k, v in (("XN", XN[l]), ("XR", XR[l]), ("OB", OB[l]), ("X1", X1[l]), ("ST", ST[l]), ("HB", HB[l]), ("PART", PART[l]),
                 ("FL", FLAGS + l*FL_LAYER), ("LAYER", l)):
        a(f"s_mov_b32 s{SL[k]}, {v}")

def finish(lines, name):
    st = []
    out = pad_hazards(lines, st)
    errs = check_waits(out, name)
    for e in errs[:20]: print("WAIT ERROR", e)
    assert not errs
    nins = sum(1 for l in out if not l.endswith(":") and not l.startswith((".", ";")))
    print(f"{name}: {nins} instructions, {len(st)} pads ({sum(x[0] for x in st)} states)", file=sys.stderr)
    return out

def build(opts):
    code = []; desc = []
    prof = opts.get("prof", 0)
    a = Asm()
    entry(a, "prep_kernel", 258, "L_prep_end"); common(a)
    a("s_cmp_ge_u32 s2, 256", "s_cbranch_scc1 L_prep_pack")
    a("s_lshl_b32 s20, s2, 10", f"s_add_u32 s20, s20, {FLAGS}", "v_lshlrev_b32 v4, 2, v0", "v_mov_b32 v5, 0",
      f"buffer_store_dword v5, v4, {WS}, s20 offen")
    a(f"s_cmp_eq_u32 s{S_WAVE}, 3", "s_cbranch_scc1 L_prep_idle")
    gen_r(a, "first", 0, Prof(a, 0), cp="")
    a("s_branch L_prep_pack")
    a.label("L_prep_idle"); a("s_barrier")
    a.label("L_prep_pack"); a("s_waitcnt vmcnt(0)")
    gen_pack(a, "L_prep_end")
    a.label("L_prep_end"); a("s_endpgm")
    code += finish(a.lines, "prep"); desc.append(descriptor("prep_kernel", 184, 184))

    a = Asm(); tail = Asm(); names = {}
    entry(a, "main_kernel", 256, "L_end"); common(a)
    layer_regs(a, 0)
    pr = Prof(a, prof)
    pr.stamp("c0", cyc=True); pr.stamp("start")
    a1_weights(a, False)
    a.label("L_layer")
    gen_a1(a, SL, pr)
    gen_a2(a, SL, pr)
    gen_f(a, SL, tail, pr, mapping=opts.get("mapping", 0))
    a(f"s_cmp_eq_u32 s{SL['LAYER']}, 1", "s_cbranch_scc1 L_last")
    n0 = pr.n; nm0 = list(pr.names)
    a(f"s_cmp_eq_u32 s{S_WAVE}, 3", "s_cbranch_scc1 L_r_side")
    gen_r(a, "mid", 0, pr, lds=XCH)
    pr.stamp("rend"); pr.stamp("c1", cyc=True)
    pr.flush(SL["LAYER"]); names[0] = list(pr.names)
    if prof: a("s_memtime s[78:79]", "s_memrealtime s[80:81]")
    a("s_branch L_r_done")
    a.label("L_r_side")
    a1_weights(a, True)
    a("s_barrier")
    a.label("L_r_done")
    layer_regs(a, 1)
    a1_wait(a, SL)
    a("s_branch L_layer")
    a.label("L_last")
    a(f"s_cmp_eq_u32 s{S_WAVE}, 3", "s_cbranch_scc1 L_end")
    pr.n = n0; pr.names = nm0
    gen_r(a, "last", 1, pr)
    if prof: a("s_waitcnt vmcnt(0)")
    pr.stamp("rend"); pr.stamp("c1", cyc=True)
    pr.flush(SL["LAYER"]); names[1] = list(pr.names)
    a.label("L_end"); a("s_endpgm")
    code += finish(a.lines, "main") + pad_hazards(tail.lines); desc.append(descriptor("main_kernel", 512, 256))

    launches = [("prep_kernel", 258, 256, 1024), ("main_kernel", 256, 256, A1_LDS)]
    s = HEADER
    if prof: s += "; PROF " + repr(names) + "\n"
    for k, g, b, lds in launches: s += f"; @launch kernel={k} grid=({g},1,1) block=({b},1,1) lds={lds}\n"
    s += '.amdgcn_target "amdgcn-amd-amdhsa--gfx950"\n.text\n' + "\n".join(code) + '\n.section .rodata,"a"\n' + "".join(desc)
    return s

if __name__ == "__main__":
    out = sys.argv[1] if len(sys.argv) > 1 else f"/code/{NAME}.s"
    opts = dict(kv.split("=") for kv in sys.argv[2:])
    opts = {k: int(v) for k, v in opts.items()}
    open(out, "w").write(build(opts))
```

```python
from gen_common import *
from gen_common import _uid
import math

XCH = 147456
A1_LDS = XCH + 4*3072

DIAG = [0]
A1R = [8]
def a1_ids(a):
    R = A1R[0]; lg = R.bit_length() - 1; hl = 5 - lg
    a(f"s_lshr_b32 s20, s{S_X}, {lg-1}", f"s_lshl_b32 s20, s20, {lg}", f"s_lshr_b32 s21, s{S_I}, {hl}", "s_add_u32 s20, s20, s21")
    a(f"s_and_b32 s21, s{S_X}, {R//2 - 1}", f"s_lshl_b32 s21, s21, {hl}", f"s_and_b32 s22, s{S_I}, {(1 << hl) - 1}", "s_add_u32 s21, s21, s22")

def warm_items(sL, dst):
    R = A1R[0]; hl = 5 - (R.bit_length() - 1)
    nq = -(-(PQ_TASK << hl) // (128*1024)); npo = -(-(8*PO_TASK) // (128*1024))
    out = [f"s_mul_i32 s48, s{sL['LAYER']}, {OOB}", f"s_lshl_b32 s49, s{S_I}, 2", f"s_add_u32 s49, s49, s{S_WAVE}",
           f"s_mul_i32 s50, s49, {npo*1024}", "s_add_u32 s50, s50, s48", f"s_add_u32 s50, s50, {PO}",
           f"s_mul_i32 s49, s49, {nq*1024}", "s_add_u32 s48, s48, s49", f"s_and_b32 s49, s{S_X}, {R//2 - 1}",
           f"s_mul_i32 s49, s49, {PQ_TASK << hl}", "s_add_u32 s48, s48, s49", f"s_add_u32 s48, s48, {PQ}"]
    for reg, n in ((48, nq), (50, npo)):
        for q in range(n):
            if q and q % 4 == 0: out.append(f"s_add_u32 s{reg}, s{reg}, 4096")
            out.append(("vm", f"buffer_load_dwordx4 v[{dst}:{dst+3}], v{V_L16}, {WS}, s{reg} offen offset:{(q % 4)*1024}", ("warm", 0)))
    return out

def a1_weights(a, split):
    a1_ids(a)
    a(f"s_mul_i32 s22, s21, {PQ_TASK}", f"s_add_u32 s22, s22, {PQ}", f"s_mul_i32 s23, s{S_WAVE}, {split*1024}", "s_add_u32 s22, s22, s23")
    a(dma_items(split, 22, 23))
    rest = 144 - 4*split
    if rest:
        _uid[0] += 1
        a(f"s_cmp_eq_u32 s{S_WAVE}, 3", f"s_cbranch_scc0 L_w{_uid[0]}", f"s_add_u32 s22, s22, {split*1024}", f"s_add_u32 s23, s23, {split*1024}")
        a(dma_items(rest, 22, 23)); a.label(f"L_w{_uid[0]}")

def gen_a1(a, sL, pr, cp="sc1"):
    vm = VM(a); outer_a = a
    ACC, RING, NW = 32, 216, 8
    HA = ACC + 64
    VB = [V_L16, 4, 5]; VH = [[6, 7, 8], [9, 10, 11]]
    acc = lambda t, j: ACC + (2*t + j)*4
    VHL = 19
    a1_ids(a)
    a("s_lshl_b32 s24, s20, 3", "s_sub_u32 s25, s24, 1", "s_max_i32 s35, s25, 0", f"s_mul_i32 s25, s35, {TILE}",
      f"s_lshl_b32 s26, s{S_WAVE}, 1", "s_add_u32 s36, s24, s26", f"s_mul_i32 s24, s36, {TILE}")
    a(f"s_add_u32 s26, s24, s{sL['XN']}", f"s_add_u32 s27, s26, {TILE}", f"s_add_u32 s28, s25, s{sL['XN']}")
    a(f"v_add_u32 v4, 0x10000, v{V_L16}", f"v_add_u32 v5, 0x20000, v{V_L16}")
    a(f"s_cmp_eq_u32 s{S_WAVE}, 3", f"s_cselect_b32 s29, 0, s{S_WAVE}", "s_cselect_b32 s31, 16, 9", "s_lshl_b32 s30, s29, 10")
    a(f"v_and_b32 v12, 15, v{V_LANE}", f"v_mov_b32 v13, {OOB}", "v_cmp_le_u32 vcc, s31, v12", f"v_cndmask_b32 v{VHL}, v13, v{V_L16}, vcc")
    for h, t0 in enumerate((2, 5)):
        a(f"s_add_u32 s31, s30, {t0*1024}")
        for n in range(3): a(f"v_add_u32 v{VH[h][n]}, s31, v{VB[n]}")
    _uid[0] += 1; u = _uid[0]
    a(f"s_cmp_eq_u32 s{sL['LAYER']}, 0", f"s_cbranch_scc1 L_a1go{u}")
    a(f"v_mul_u32_u24 v14, 43, v{V_LANE}", "v_lshrrev_b32 v14, 8, v14", "v_mul_u32_u24 v15, 6, v14", f"v_sub_u32 v15, v{V_LANE}, v15",
      "v_cmp_eq_u32 vcc, 1, v14", "v_mov_b32 v16, s36", "v_addc_co_u32 v16, vcc, 0, v16, vcc", "v_cmp_eq_u32 vcc, 2, v14", "v_mov_b32 v17, s35",
      "v_cndmask_b32 v16, v16, v17, vcc", "v_lshlrev_b32 v16, 3, v16", f"v_add_lshl_u32 v16, v16, v15, {FS}", f"s_add_u32 s22, s{sL['FL']}, {FL_R}")
    if DIAG[0] == 1: a(["s_sleep 127"]*2)
    await_flags(a, 16, 22)
    if DIAG[0] == 2: a(["s_sleep 127"]*2)
    a.label(f"L_a1go{u}")
    pr.stamp("a1go")
    xt = {}
    def xload(k):
        out = ["s_add_u32 s26, s26, 4096", "s_add_u32 s27, s27, 4096", "s_add_u32 s28, s28, 4096"] if k % 4 == 0 and k else []
        return out + [(k, f"buffer_load_dwordx4 a[{72*j+4*k}:{72*j+4*k+3}], v{V_L16 if j < 2 else VHL}, {WS}, s{26+j} offen offset:{(k % 4)*1024} {cp}") for j in range(3)]
    def emit(x):
        if isinstance(x, tuple): xt[x[0]] = vm.op(x[1])
        else: a(x)
    BURST = 8
    for k in range(BURST):
        for x in xload(k): emit(x)
    memq = [x for k in range(BURST, 18) for x in xload(k)]
    a(f"v_lshrrev_b32 v13, 4, v{V_LANE}", "v_lshlrev_b32 v14, 2, v13", "v_sub_u32 v14, v12, v14")
    for r in range(4):
        a(f"v_subrev_u32 v15, {r}, v14", f"v_cmp_gt_u32 s[{52+2*r}:{53+2*r}], 8, v15", f"v_cmp_gt_i32 s[{44+2*r}:{45+2*r}], -8, v15")
    a("s_and_b32 s31, s20, 7", f"s_or_b32 s31, s31, s{S_WAVE}", "s_cmp_eq_u32 s31, 0")
    for r in range(4): a(f"s_cselect_b64 s[{60+2*r}:{61+2*r}], 0, s[{44+2*r}:{45+2*r}]")
    pr.stamp("a1iss")
    a(f"s_cmp_eq_u32 s{sL['LAYER']}, 0", f"s_cbranch_scc0 L_a1w{u}")
    vm.wait(0); a("s_barrier")
    a.label(f"L_a1w{u}")
    pr.stamp("a1bar")
    seq = []
    for k0 in range(0, 18, 2):
        for t in list(range(8)) + ["h0", "h1"]:
            seq += [(k0, t), (k0+1, t)]
    def rd(n):
        k, t = seq[n]; w = RING + 4*(n % NW)
        if isinstance(t, str):
            off = k*8192; base = VH[int(t[1])]
        else:
            off = (k*8 + t)*1024; base = VB
        return f"ds_read_b128 a[{w}:{w+3}], v{base[off // 65536]} offset:{off % 65536}"
    PF_ = 6
    for n in range(PF_): a(rd(n))
    issued = PF_; nm = 0
    for n in range(0, len(seq), 2):
        k0, t = seq[n]
        if t == 0: vm.wait(xt[k0+1])
        if t == 0: pr.stamp(f"a1k{k0}")
        a(f"s_waitcnt lgkmcnt({issued - n - 2})")
        jl = [2] if isinstance(t, str) else [0, 1]
        swapped = t == "h1" or (not isinstance(t, str) and t >= 5)
        for j in jl:
            d = HA + 4*int(t[1]) if isinstance(t, str) else acc(t, j)
            for c in range(2):
                w = f"a[{RING + 4*((n+c) % NW)}:{RING + 4*((n+c) % NW) + 3}]"
                x = f"a[{72*j + 4*(k0+c)}:{72*j + 4*(k0+c) + 3}]"
                A, B = (x, w) if swapped else (w, x)
                a(f"v_mfma_f32_16x16x32_bf16 v[{d}:{d+3}], {A}, {B}, {'0' if k0+c == 0 else f'v[{d}:{d+3}]'}")
                nm += 1
                if (len(jl) == 1 or c == 1) and issued < len(seq):
                    a(rd(issued)); issued += 1
                if memq and nm % 4 == 1:
                    while not isinstance(memq[0], tuple): emit(memq.pop(0))
                    emit(memq.pop(0))
    pr.stamp('a1gemm')
    KP, K0, K1 = 104, 110, 116
    VV = [122, 128, 134]
    QO = [[140, 144], [148, 152]]
    HC, XR_ = 156, 160
    def cvt(dst, src): outer_a(f"v_cvt_pk_bf16_f32 v{dst}, v{src}, v{src+1}", f"v_cvt_pk_bf16_f32 v{dst+1}, v{src+2}, v{src+3}")
    KT = [K0, K1]
    cvt(K1, acc(2, 1)); cvt(K1+4, acc(3, 1)); cvt(XR_, acc(4, 1))
    for n in range(3): cvt(VV[n]+4, acc(5+n, 1))
    cvt(HC, HA); cvt(HC+2, HA+4)
    a(f"v_lshlrev_b32 v14, 3, v{V_LANE}", f"s_mul_i32 s31, s{S_WAVE}, 3072", f"s_add_u32 s32, s31, {XCH}", "v_add_u32 v15, s32, v14")
    a("s_lshl_b32 s33, s29, 9", f"s_add_u32 s33, s33, {XCH}", "v_add_u32 v16, s33, v14")
    a(f"s_cmp_eq_u32 s{S_WAVE}, 3", "s_cbranch_scc1 L_a1_noxch")
    a(f"ds_write_b64 v16, v[{HC}:{HC+1}]", f"ds_write_b64 v16, v[{HC+2}:{HC+3}] offset:1536")
    for n, r in enumerate([K1, K1+4, XR_, VV[0]+4, VV[1]+4, VV[2]+4]):
        a(f"ds_write_b64 v15, v[{r}:{r+1}] offset:{3072 + 512*n}")
    a.label("L_a1_noxch")
    cvt(K0, acc(2, 0)); cvt(K0+4, acc(3, 0))
    for n in range(3): cvt(VV[n]+2, acc(5+n, 0))
    for j in range(2):
        q0, q1 = QO[j]; x = acc(4, j)
        cvt(q0, acc(0, j)); cvt(q1+2, acc(1, j))
        a(f"v_cvt_pk_bf16_f32 v{q0+2}, v{x}, v{x+1}", f"v_cvt_pk_bf16_f32 v{q1+1}, v{x+2}, v{x+3}",
          f"v_mov_b32 v{q0+3}, 0", f"v_mov_b32 v{q1}, 0", f"v_mov_b32 v{KT[j]+2}, 0", f"v_mov_b32 v{KT[j]+3}, 0")
        a(f"v_permlane16_swap_b32 v{q0+2}, v{KT[j]+2}", f"v_permlane16_swap_b32 v{q1+1}, v{KT[j]+3}")
    a(f"v_add_u32 v17, 16, v12", "v_add_u32 v18, 32, v12", f"v_cmp_gt_u32 vcc, 16, v{V_LANE}", "v_cndmask_b32 v17, v18, v17, vcc",
      "v_lshlrev_b32 v17, 3, v17", "v_add_u32 v17, s32, v17")
    a("s_waitcnt lgkmcnt(0)", "s_barrier")
    pr.stamp("a1xch")
    a(f"ds_read_b64 v[{KP}:{KP+1}], v15", f"ds_read_b64 v[{KP+4}:{KP+5}], v15 offset:512", f"ds_read_b64 v[{KP+2}:{KP+3}], v17 offset:1024")
    for n in range(3): a(f"ds_read_b64 v[{VV[n]}:{VV[n]+1}], v15 offset:{1536 + 512*n}")
    units = [(1, 0), (1, 1), (0, 0), (0, 1)]
    SS = lambda u: 32 + 8*u
    PP = lambda u: 64 + 4*u
    OO = lambda u: 80 + 8*u if u < 3 else 164
    for u, (j, h) in enumerate(units):
        if u == 2: a("s_waitcnt lgkmcnt(0)")
        prev = (K0 if j == 1 else KP) + 2*h; cur = KT[j] + 2*h; q = QO[j][h]
        a(f"v_mfma_f32_16x16x32_bf16 v[{SS(u)}:{SS(u)+3}], v[{prev}:{prev+3}], v[{q}:{q+3}], 0",
          f"v_mfma_f32_16x16x32_bf16 v[{SS(u)+4}:{SS(u)+7}], v[{cur}:{cur+3}], v[{q}:{q+3}], 0")
    a(f"v_mov_b32 v18, {f32(-3.0e38)}", f"s_mov_b32 s34, {f32(math.log2(math.e) / math.sqrt(DH))}")
    MX, TM, SM = 20, 24, 28
    for r in range(8):
        for u, (j, h) in enumerate(units):
            m = (52 + 2*(r-4)) if r >= 4 else ((44 if j == 1 else 60) + 2*r)
            a(f"v_cndmask_b32 v{SS(u)+r}, v18, v{SS(u)+r}, s[{m}:{m+1}]")
    for u in range(4): a(f"v_max3_f32 v{MX+u}, v{SS(u)}, v{SS(u)+1}, v{SS(u)+2}")
    for u in range(4): a(f"v_max3_f32 v{MX+u}, v{MX+u}, v{SS(u)+3}, v{SS(u)+4}")
    for u in range(4): a(f"v_max3_f32 v{MX+u}, v{MX+u}, v{SS(u)+5}, v{SS(u)+6}")
    for u in range(4): a(f"v_max_f32 v{MX+u}, v{MX+u}, v{SS(u)+7}")
    xreduce(a, [MX+u for u in range(4)], TM, op="v_max_f32")
    for u in range(4): a(f"v_mul_f32 v{MX+u}, s34, v{MX+u}")
    for r in range(8):
        for u in range(4): a(f"v_fma_f32 v{SS(u)+r}, v{SS(u)+r}, s34, -v{MX+u}")
        for u in range(4): a(f"v_exp_f32 v{SS(u)+r}, v{SS(u)+r}")
    for u in range(4): a(f"v_add_f32 v{SM+u}, v{SS(u)}, v{SS(u)+1}")
    for r in range(2, 8):
        for u in range(4): a(f"v_add_f32 v{SM+u}, v{SM+u}, v{SS(u)+r}")
    xreduce(a, [SM+u for u in range(4)], TM)
    for u in range(4): a(f"v_rcp_f32 v{SM+u}, v{SM+u}")
    for r in range(8):
        for u in range(4): a(f"v_mul_f32 v{SS(u)+r}, v{SS(u)+r}, v{SM+u}")
    for u in range(4):
        for d in range(4): a(f"v_cvt_pk_bf16_f32 v{PP(u)+d}, v{SS(u)+2*d}, v{SS(u)+2*d+1}")
    for u, (j, h) in enumerate(units):
        va = VV[h] + 2*j; vx = VV[2] + 2*j
        a(f"v_mfma_f32_16x16x32_bf16 v[{OO(u)}:{OO(u)+3}], v[{va}:{va+3}], v[{PP(u)}:{PP(u)+3}], 0",
          f"v_mfma_f32_16x16x32_bf16 v[{OO(u)+4}:{OO(u)+7}], v[{vx}:{vx+3}], v[{PP(u)}:{PP(u)+3}], 0")
    a("v_lshlrev_b32 v14, 3, v12", f"v_mov_b32 v15, {OOB}", f"v_cmp_gt_u32 vcc, 16, v{V_LANE}", "v_cndmask_b32 v14, v15, v14, vcc")
    a(f"s_add_u32 s26, s24, s{sL['OB']}", "s_lshl_b32 s27, s21, 10", "s_add_u32 s27, s27, s26",
      "s_lshl_b32 s28, s21, 7", f"s_add_u32 s28, s28, {64*256}", "s_add_u32 s28, s28, s26", f"s_add_u32 s30, s27, {TILE}", f"s_add_u32 s31, s28, {TILE}")
    for j in (1, 0):
        u0 = units.index((j, 0)); u1 = units.index((j, 1)); o = 172 + 8*j
        cvt(o, OO(u0)); cvt(o+2, OO(u1))
        a(f"v_cvt_pk_bf16_f32 v{o+4}, v{OO(u0)+4}, v{OO(u0)+5}", f"v_cvt_pk_bf16_f32 v{o+5}, v{OO(u1)+6}, v{OO(u1)+7}")
        vm.op(f"buffer_store_dwordx4 v[{o}:{o+3}], v{V_L16}, {WS}, s{30 if j else 27} offen {cp}")
        vm.op(f"buffer_store_dwordx2 v[{o+4}:{o+5}], v14, {WS}, s{31 if j else 28} offen {cp}")
    a("s_lshl_b32 s26, s20, 2", f"s_add_u32 s26, s26, s{S_WAVE}", "s_lshl_b32 s26, s26, 4", "s_add_u32 s26, s26, s21", f"s_lshl_b32 s26, s26, {FS}",
      f"s_add_u32 s26, s26, s{sL['FL']}", f"s_add_u32 s26, s26, {FL_O}")
    pr.stamp('a1att')
    a(f"s_and_b32 s37, s{S_I}, 7", f"s_mul_i32 s37, s37, {PO_TASK}", f"s_mul_i32 s38, s{S_WAVE}, {23*1024}", "s_add_u32 s37, s37, s38", f"s_add_u32 s37, s37, {PO}")
    po = dma_items(23, 37, 38)
    publish(a, 26, po[:12])
    a(po[12:])
    pr.stamp("a1end")
```

```python
from gen_common import *

def gen_a2(a, sL, pr, cp="sc1"):
    vm = VM(a)
    ACC, RES, RING, NW = 32, 56, 216, 8
    VU8, VLB = 4, 5
    a(f"s_lshr_b32 s20, s{S_I}, 3", f"s_lshl_b32 s21, s{S_X}, 2", "s_add_u32 s20, s20, s21", "s_lshl_b32 s20, s20, 2",
      f"s_add_u32 s20, s20, s{S_WAVE}")
    a(f"s_and_b32 s21, s{S_I}, 7")
    a(f"s_mul_i32 s24, s20, {TILE}", f"s_add_u32 s25, s24, s{sL['OB']}")
    a(f"s_mul_i32 s26, s21, {9*256}", "s_add_u32 s26, s26, s24", f"s_add_u32 s27, s26, s{sL['XR']}")
    a(f"v_and_b32 v6, 15, v{V_LANE}", f"v_lshrrev_b32 v7, 4, v{V_LANE}", "v_lshlrev_b32 v8, 4, v6", "v_lshl_add_u32 v8, v7, 3, v8",
      "v_add_u32 v8, 2048, v8", f"v_mov_b32 v9, {OOB}", f"v_cmp_gt_u32 vcc, 32, v{V_LANE}", f"v_cndmask_b32 v{VU8}, v9, v8, vcc")
    a(f"v_add_u32 v{VLB}, 0x10000, v{V_L16}")
    a("s_lshr_b32 s22, s20, 1", f"s_lshl_b32 s22, s22, {4+FS}", f"s_add_u32 s22, s22, s{sL['FL']}", f"s_add_u32 s22, s22, {FL_O}", f"v_lshlrev_b32 v10, {FS}, v6")
    order = [(k0 + c, t) for k0 in range(0, 18, 2) for t in range(5) for c in range(2)]
    def rd(n):
        k, t = order[n]; off = (k*5 + t)*1024; w = RING + 4*(n % NW)
        return f"ds_read_b128 a[{w}:{w+3}], v{V_L16 if off < 65536 else VLB} offset:{off % 65536}"
    PF_ = 6
    a("v_lshlrev_b32 v11, 3, v6", "v_lshl_add_u32 v11, v7, 8, v11")
    await_flags(a, 10, 22)
    pr.stamp("a2go")
    xt = {}
    def xload(k):
        if k % 4 == 0 and k: a("s_add_u32 s25, s25, 4096")
        if k < 16: xt[k] = vm.op(f"buffer_load_dwordx4 a[{4*k}:{4*k+3}], v{V_L16}, {WS}, s25 offen offset:{(k % 4)*1024} {cp}")
        else:
            for h in range(2):
                xt[k] = vm.op(f"buffer_load_dwordx2 a[{4*k+2*h}:{4*k+2*h+1}], v11, {WS}, s25 offen offset:{(k % 4)*1024 + 128*h} {cp}")
    BURST = 12
    for k in range(BURST): xload(k)
    pr.stamp("a2iss")
    a("s_barrier")
    for n in range(PF_): a(rd(n))
    nxt = BURST
    res = [f"buffer_load_dwordx4 v[{RES}:{RES+3}], v{V_L16}, {WS}, s27 offen {cp}",
           f"buffer_load_dwordx4 v[{RES+4}:{RES+7}], v{V_L16}, {WS}, s27 offen offset:1024 {cp}",
           f"buffer_load_dwordx2 v[{RES+8}:{RES+9}], v{VU8}, {WS}, s27 offen {cp}"]
    for n, (k, t) in enumerate(order):
        if n % 10 == 0: vm.wait(xt[k+1]); pr.stamp(f'a2k{k}')
        issued = min(len(order), n + PF_)
        if n % 2 == 0: a(f"s_waitcnt lgkmcnt({max(0, issued - n - 2)})")
        w = RING + 4*(n % NW); d = ACC + 4*t
        a(f"v_mfma_f32_16x16x32_bf16 v[{d}:{d+3}], a[{w}:{w+3}], a[{4*k}:{4*k+3}], {'0' if k == 0 else f'v[{d}:{d+3}]'}")
        if n + PF_ < len(order): a(rd(n + PF_))
        if nxt < 18 and n % 4 == 1: xload(nxt); nxt += 1
        elif res and n % 4 == 1: rt = [vm.op(res.pop(0))]
    pr.stamp('a2gemm')
    vm.wait(rt[-1])
    for t in range(5):
        for h in range(2):
            r = RES + 2*t + h; d = ACC + 4*t + 2*h; u = 68 + 2*((2*t+h) % 4)
            a(f"v_lshlrev_b32 v{u}, 16, v{r}", f"v_and_b32 v{u+1}, 0xffff0000, v{r}",
              f"v_add_f32 v{d}, v{d}, v{u}", f"v_add_f32 v{d+1}, v{d+1}, v{u+1}")
    OUT = 80
    for t in range(5):
        for h in range(2): a(f"v_cvt_pk_bf16_f32 v{OUT+2*t+h}, v{ACC+4*t+2*h}, v{ACC+4*t+2*h+1}")
    a(f"s_add_u32 s27, s26, s{sL['X1']}")
    vm.op(f"buffer_store_dwordx4 v[{OUT}:{OUT+3}], v{V_L16}, {WS}, s27 offen {cp}")
    vm.op(f"buffer_store_dwordx4 v[{OUT+4}:{OUT+7}], v{V_L16}, {WS}, s27 offen offset:1024 {cp}")
    vm.op(f"buffer_store_dwordx2 v[{OUT+8}:{OUT+9}], v{VU8}, {WS}, s27 offen {cp}")
    a(f"v_add_f32 v10, v{ACC}, v{ACC+1}", f"v_mul_f32 v11, v{ACC}, v{ACC}", f"v_mul_f32 v13, v{ACC+1}, v{ACC+1}", "v_mov_b32 v12, 0")
    for e in range(2, 20, 2):
        a(f"v_add_f32 v10, v10, v{ACC+e}", f"v_add_f32 v12, v12, v{ACC+e+1}",
          f"v_fmac_f32 v11, v{ACC+e}, v{ACC+e}", f"v_fmac_f32 v13, v{ACC+e+1}, v{ACC+e+1}")
    a("v_add_f32 v10, v10, v12", "v_add_f32 v11, v11, v13")
    xreduce(a, [10, 11], 12)
    a("v_lshlrev_b32 v8, 3, v6", f"v_cmp_gt_u32 vcc, 16, v{V_LANE}", "v_cndmask_b32 v8, v9, v8, vcc")
    a("s_lshl_b32 s27, s20, 10", "s_lshl_b32 s28, s21, 7", "s_add_u32 s27, s27, s28", f"s_add_u32 s27, s27, s{sL['ST']}")
    vm.op(f"buffer_store_dwordx2 v[10:11], v8, {WS}, s27 offen {cp}")
    a("s_lshr_b32 s27, s20, 2", "s_lshl_b32 s27, s27, 3", "s_add_u32 s27, s27, s21", "s_lshl_b32 s27, s27, 2", f"s_add_u32 s27, s27, s{S_WAVE}",
      f"s_lshl_b32 s27, s27, {FS}", f"s_add_u32 s27, s27, s{sL['FL']}", f"s_add_u32 s27, s27, {FL_X}")
    pr.stamp('a2st')
    publish(a, 27)
    a("s_barrier")
    pr.stamp("a2end")
```

```python
from asmlib import *
from layout import *

KA = dict(x=0, wqkv=8, wo=16, wg=32, wu=40, wd=48, out=56, dbg=64, ws=72)
WS = "s[8:11]"
S_WAVE = 4
S_X, S_I = 5, 6
V_LANE, V_L16 = 1, 2
OOB = 0x7ff00000

class VM:
    def __init__(self, a): self.a = a; self.n = 0
    def op(self, text):
        self.a(text); self.n += 1
        return self.n
    def count_after(self, tag): return self.n - tag
    def wait(self, tag):
        self.a(f"s_waitcnt vmcnt({min(63, self.n - tag)})")

def srd(a, dst, src, nbytes):
    a(f"s_mov_b32 s{dst}, s{src}", f"s_and_b32 s{dst+1}, s{src+1}, 0xffff",
      f"s_mov_b32 s{dst+2}, {nbytes}", f"s_mov_b32 s{dst+3}, 0x20000")

def entry(a, name, nwg, end):
    a(".p2align 8"); a(f".globl {name}"); a(f".type {name},@function"); a.label(name)
    a(f"s_cmp_ge_u32 s2, {nwg}", f"s_cbranch_scc1 {end}")

def common(a):
    a(f"s_load_dwordx2 s[12:13], s[0:1], {KA['ws']}")
    a(f"v_and_b32 v{V_LANE}, 63, v0", "v_lshrrev_b32 v3, 6, v0", f"v_lshlrev_b32 v{V_L16}, 4, v{V_LANE}")
    a(f"v_readfirstlane_b32 s{S_WAVE}, v3")
    a(f"s_and_b32 s{S_X}, s2, 7", f"s_lshr_b32 s{S_I}, s2, 3")
    a("s_waitcnt lgkmcnt(0)")
    srd(a, 8, 12, WS_BYTES)

def xreduce(a, regs, tmp, steps=("16", "32"), op="v_add_f32"):
    for st in steps:
        if st == "8":
            for r in regs: a(f"{op}_dpp v{r}, v{r}, v{r} row_ror:8 row_mask:0xf bank_mask:0xf")
            continue
        for n, r in enumerate(regs): a(f"v_mov_b32 v{tmp+n}, v{r}")
        for n, r in enumerate(regs): a(f"v_permlane{st}_swap_b32 v{r}, v{tmp+n}")
        for n, r in enumerate(regs): a(f"{op} v{r}, v{r}, v{tmp+n}")

_uid = [0]
def publish(a, s_addr, between=()):
    a(f"v_mov_b32 v14, {OOB}", f"v_cmp_eq_u32 vcc, 0, v{V_LANE}", "v_cndmask_b32 v14, v14, 0, vcc", "v_mov_b32 v15, 1")
    a(list(between))
    a(f"s_waitcnt vmcnt({sum(x.startswith('buffer_') for x in between)})", f"buffer_store_dword v15, v14, {WS}, s{s_addr} offen sc1")

POLL = (253, 254, 255)
POLL_CFG = dict(depth=3, sleep=0)
def await_flags(a, v_off, s_base):
    _uid[0] += 1; u = _uid[0]; sl = POLL_CFG["sleep"]
    a("s_mov_b32 s52, 0")
    a.label(f"L_poll{u}")
    a(f"buffer_load_dword v{POLL[0]}, v{v_off}, {WS}, s{s_base} offen sc1", "s_add_u32 s52, s52, 1", "s_waitcnt vmcnt(0)",
      f"v_cmp_eq_u32 vcc, 0, v{POLL[0]}", "s_cmp_ge_u32 s52, 0x100000", f"s_cbranch_scc1 L_got{u}", "s_and_b64 exec, exec, vcc")
    if sl: a(f"s_cbranch_execz L_got{u}", f"s_sleep {sl}", f"s_branch L_poll{u}")
    else: a(f"s_cbranch_execnz L_poll{u}")
    a.label(f"L_got{u}")
    a("s_mov_b64 exec, -1")

def dma_items(nfrag, s_src, s_lds, s_tmp=40, pol=""):
    out = []
    for q0 in range(0, nfrag, 4):
        out += [f"s_add_u32 m0, s{s_lds}, {q0*1024}", f"s_add_u32 s{s_tmp}, s{s_src}, {q0*1024}"]
        out += [f"buffer_load_dwordx4 v{V_L16}, {WS}, s{s_tmp} offen offset:{q*1024} lds {pol}".strip() for q in range(min(4, nfrag - q0))]
    return out

def weave(a, main, side, start=0, every=1):
    side = list(side); n = 0
    for x in main:
        a(x); n += 1
        if side and n >= start and (n - start) % every == 0 and not x.startswith(("s_cmp", "v_cmp", "s_cbranch")) and not x.endswith(":"):
            while side and side[0].startswith("s_"): a(side.pop(0))
            if side: a(side.pop(0))
    for x in side: a(x)

def f32(x):
    import struct
    return "0x%08x" % struct.unpack("<I", struct.pack("<f", x))[0]

class Prof:
    regs = list(range(78, 100, 2)) + list(range(54, 70, 2)) + [100]
    sets = {1: "a1go a1k2 a1gemm a1end a2go a2gemm a2end fgo s18 s144 s162 s225 fst fend rgo rsum rend".split(),
            2: "fgo fiss fbar s0 s2 s4 s8 s12 s18 s36 s141 s144 s150 s156 s162 s171 rend".split(),
            3: "a1go a1iss a1bar a1k2 a1k8 a1gemm a1xch a1att a1end a2go a2iss a2bar a2k2 a2gemm a2st a2end rend".split(),
            5: "s225 fst fend rpre rgo r1 r4 rsum rxr rbar rst rw3 rw2 rw1 rw0 rend".split(),
            4: "s18 s36 s54 s72 s90 s108 s126 s144 s162 s171 s180 s189 s198 s207 s216 s225 fst".split()}
    def __init__(self, a, on): self.a = a; self.on = on; self.n = 0; self.names = []
    def stamp(self, name, cyc=False):
        if not self.on or (name not in self.sets[self.on] and name not in ("c0", "c1", "start")): return
        assert self.n < len(self.regs)
        r = self.regs[self.n]; self.n += 1; self.names.append(name)
        if self.on == 4: cyc = True
        self.a(f"s_mem{'' if cyc else 'real'}time s[{r}:{r+1}]")
    def flush(self, s_slot):
        if not self.on: return
        a = self.a
        a("s_waitcnt lgkmcnt(0)", "v_mov_b32 v250, 0")
        for i in range(self.n): a(f"v_writelane_b32 v250, s{self.regs[i]}, {i}")
        a(f"s_lshl_b32 s100, s{s_slot}, 18", "s_lshl_b32 s101, s2, 10", "s_add_u32 s100, s100, s101", f"s_lshl_b32 s101, s{S_WAVE}, 8",
          "s_add_u32 s100, s100, s101", f"s_add_u32 s100, s100, {PROF}", f"v_lshlrev_b32 v251, 2, v{V_LANE}",
          f"buffer_store_dword v250, v251, {WS}, s100 offen")
```

```python
from gen_common import *
from gen_a1 import warm_items
import math

STAGE, NS, PER = 24, 6, 6
NPRE = 4
F_LDS = STAGE * NS * 1024
NSTAGE = (486 + STAGE - 1) // STAGE
MF = "v_mfma_f32_16x16x32_bf16"

def cost(x):
    if callable(x): return 1
    if isinstance(x, tuple): return 2 if " 0 offen" in x[1] or "store" in x[1] else 3
    return 2 if x.split()[0] in TRANS else 1

_ins = {}
def ins_of(x):
    t = x[1] if isinstance(x, tuple) else x
    if t not in _ins: _ins[t] = Ins(t)
    return _ins[t]

def pick(q, fits, window=12):
    rd = set(); wr = set()
    for i, x in enumerate(q[:window]):
        I = ins_of(x)
        if fits(x) and not (I.rd & wr or I.wr & wr or I.wr & rd): return i
        rd |= I.rd; wr |= I.wr
    return None

def f_ids(a, opts):
    if opts.get("mapping", 1) == 0:
        a(f"s_and_b32 s40, s{S_X}, 1", "s_lshl_b32 s40, s40, 2", f"s_lshr_b32 s41, s{S_I}, 3", "s_add_u32 s40, s40, s41",
          f"s_lshr_b32 s41, s{S_X}, 1", "s_lshl_b32 s41, s41, 3", f"s_and_b32 s42, s{S_I}, 7", "s_add_u32 s41, s41, s42")
    else:
        a(f"s_lshr_b32 s40, s{S_I}, 2", f"s_lshl_b32 s41, s{S_X}, 2", f"s_and_b32 s42, s{S_I}, 3", "s_add_u32 s41, s41, s42")
    a("s_lshr_b32 s42, s41, 2", "s_and_b32 s43, s41, 3")

def gen_f(a, sL, tail, pr, opts, cp="sc1"):
    vm = VM(a); tag = {}
    VJ = [V_L16, 4, 5, 6]; VB = [V_L16, 7, 8]
    VODD, VFS, VFL, VFV, VW = 9, 10, 11, 12, 3
    VJH = [244, 245, 246, 247]
    XV, RING, NW = 16, 48, 8
    HOWN, TMP, HS, CON = 144, 208, 224, 232
    ACC = [80, 112, HOWN + 32]
    aset = lambda pos: ACC[[0, 1, 2, 0, 1, 0, 1, 0, 1][pos]]
    OUT = 112
    sX, sWd, sH, sM, sP, sF = 20, 22, 24, 28, 31, 34
    f_ids(a, opts)
    a(f"s_mul_i32 s{sWd}, s{S_WAVE}, {PER*1024}", f"s_mul_i32 s21, s41, {PF_TASK}", f"s_add_u32 s21, s21, s{sWd}", f"s_add_u32 s21, s21, {PF}",
      f"v_add_u32 v{VW}, s21, v{V_L16}")
    def dma(stage):
        out = []
        for q0 in (0, 4):
            out += [f"s_add_u32 m0, s{sWd}, {(stage % NS)*STAGE*1024 + q0*1024}"]
            if stage or q0: out += [f"v_add_u32 v{VW}, {4096 if q0 else STAGE*1024 - 4096}, v{VW}"]
            out += [("vm", f"buffer_load_dwordx4 v{VW}, {WS}, 0 offen offset:{q*1024} lds", ("w", stage)) for q in range(min(4, PER - q0))]
        return out
    def rd(n):
        off = (n % (STAGE*NS))*1024; w = RING + 4*(n % NW)
        return f"ds_read_b128 v[{w}:{w+3}], v{VB[off // 65536]} offset:{off % 65536}"
    def xreg(k, j): return f"a[{(4*k+j)*4}:{(4*k+j)*4+3}]" if k < 16 else f"v[{XV + (4*(k-16)+j)*4}:{XV + (4*(k-16)+j)*4+3}]"
    def xload(k):
        out = [f"s_add_u32 s48, s{sX}, {(k >> 2)*4096}"] if k % 4 == 0 else []
        return out + [("vm", f"buffer_load_dwordx4 {xreg(k, j)}, v{VJ[j]}, {WS}, s48 offen offset:{(k & 3)*1024} {cp}", ("x", k)) for j in range(4)]
    def emit(x):
        if callable(x): x()
        elif isinstance(x, tuple): tag[x[2]] = vm.op(x[1])
        else: a(x)
    for st in range(NPRE):
        for x in dma(st): emit(x)
    a("s_lshl_b32 s44, s40, 4", f"s_lshl_b32 s45, s{S_WAVE}, 2", "s_add_u32 s44, s44, s45")
    a(f"s_mul_i32 s46, s44, {TILE}", f"s_add_u32 s{sX}, s46, s{sL['X1']}")
    for j in range(1, 4): a(f"v_add_u32 v{VJ[j]}, {j*TILE}, v{V_L16}")
    a(f"v_lshlrev_b32 v{VJH[0]}, 3, v{V_LANE}")
    for j in range(1, 4): a(f"v_add_u32 v{VJH[j]}, {j*TILE}, v{VJH[0]}")
    a(f"v_and_b32 v13, 15, v{V_LANE}", f"v_lshrrev_b32 v14, 4, v{V_LANE}")
    a(f"v_add_u32 v{VB[1]}, 0x10000, v{V_L16}", f"v_add_u32 v{VB[2]}, 0x20000, v{V_L16}")
    a(f"v_and_b32 v{VODD}, 1, v14", f"v_mul_u32_u24 v{VODD}, {TILE}, v{VODD}", "v_lshrrev_b32 v15, 1, v14", "v_lshlrev_b32 v15, 8, v15",
      "v_lshl_add_u32 v15, v13, 4, v15", f"v_add_u32 v{VODD}, v{VODD}, v15")
    a(f"v_and_b32 v{VFL}, 3, v{V_LANE}", f"v_lshlrev_b32 v{VFL}, {FS}, v{VFL}", f"s_lshl_b32 s49, s43, {FS}", f"v_mov_b32 v{VFS}, {OOB}",
      "v_mov_b32 v15, s49", f"v_cmp_eq_u32 vcc, 0, v{V_LANE}", f"v_cndmask_b32 v{VFS}, v{VFS}, v15, vcc")
    a("s_lshl_b32 s49, s40, 3", "s_add_u32 s49, s49, s42")
    a("s_lshl_b32 s50, s49, 2", f"s_add_u32 s50, s50, s{S_WAVE}", f"s_lshl_b32 s50, s50, {2+FS}", f"s_add_u32 s{sF}, s50, s{sL['FL']}", f"s_add_u32 s{sF}, s{sF}, {FL_H}")
    a("s_lshl_b32 s49, s49, 4", "s_add_u32 s49, s49, s45", f"s_mul_i32 s49, s49, {TILE}", f"s_add_u32 s49, s49, s{sL['HB']}")
    for rel in range(4):
        a(f"s_add_u32 s50, s43, {rel}", "s_and_b32 s50, s50, 3", "s_mul_i32 s50, s50, 9", "s_add_u32 s50, s50, 1", "s_lshr_b32 s50, s50, 1",
          "s_lshl_b32 s50, s50, 10", f"s_add_u32 s{sH+rel}, s49, s50")
    a(f"s_add_u32 s{sM}, s49, {4*1024}", f"s_add_u32 s{sM+1}, s49, {13*1024}", "s_cmp_ge_u32 s43, 2", f"s_cselect_b32 s50, s{sM+1}, s{sM}",
      "s_and_b32 s51, s43, 1", "s_lshl_b32 s51, s51, 9", f"s_add_u32 s{sM+2}, s50, s51")
    a(f"s_mul_i32 s50, s42, {ACT}", "s_add_u32 s50, s50, s46", "s_mul_i32 s51, s43, 4608", "s_add_u32 s50, s50, s51",
      f"s_add_u32 s{sP}, s50, s{sL['PART']}", f"s_add_u32 s{sP+1}, s{sP}, 4096", f"s_add_u32 s{sP+2}, s{sP+1}, {2*TILE}")
    a("s_lshl_b32 s35, s40, 2", f"s_add_u32 s35, s35, s{S_WAVE}", "s_lshl_b32 s35, s35, 5", "s_add_u32 s35, s35, s41", f"s_lshl_b32 s35, s35, {FS}",
      f"s_add_u32 s35, s35, s{sL['FL']}", f"s_add_u32 s35, s35, {FL_P}")
    a("v_lshlrev_b32 v15, 3, v13", "v_lshl_add_u32 v15, v14, 8, v15", "s_lshl_b32 s47, s44, 10", f"s_add_u32 s47, s47, s{sL['ST']}")
    a(f"s_lshl_b32 s49, s44, {3+FS}", f"s_add_u32 s49, s49, s{sL['FL']}", f"s_add_u32 s49, s49, {FL_X}", f"v_and_b32 v16, 31, v{V_LANE}", f"v_lshlrev_b32 v16, {FS}, v16")
    await_flags(a, 16, 49)
    pr.stamp("fgo")
    BURST = 5
    for k in range(BURST):
        for x in xload(k): emit(x)
        if k == 1:
            for j in range(4):
                for h in range(2):
                    r = HOWN + 4*j + 2*h
                    tag["st"] = vm.op(f"buffer_load_dwordx2 v[{r}:{r+1}], v15, {WS}, s47 offen offset:{j*1024 + h*128} {cp}")
    pr.stamp("fiss")
    a("s_barrier")
    for n in range(6): a(rd(n))
    pr.stamp("fbar")

    def consts():
        b = Asm(); sr = []
        for j in range(4):
            r = HOWN + 4*j
            b(f"v_add_f32 v{r}, v{r}, v{r+2}", f"v_add_f32 v{r+1}, v{r+1}, v{r+3}"); sr += [r, r+1]
        xreduce(b, sr, HOWN + 16)
        k1 = -2.0 * math.sqrt(2.0 / math.pi) * math.log2(math.e); k2 = k1 * 0.044715
        rows = []
        for j in range(4):
            r = HOWN + 4*j; c = CON + 3*j
            rows.append([f"v_mul_f32 v{r}, {f32(1/576)}, v{r}", f"v_mul_f32 v{r+1}, {f32(1/576)}, v{r+1}", f"v_fma_f32 v{r+1}, -v{r}, v{r}, v{r+1}",
                         f"v_max_f32 v{r+1}, 0, v{r+1}", f"v_add_f32 v{c+2}, {f32(1e-5)}, v{r+1}", f"v_rsq_f32 v{r}, v{c+2}",
                         f"v_mul_f32 v{c}, {f32(k1)}, v{r}", f"v_mul_f32 v{r+1}, v{r}, v{r}", f"v_mul_f32 v{r+1}, v{r+1}, v{r}",
                         f"v_mul_f32 v{c+1}, {f32(k2)}, v{r+1}"])
        for col in zip(*rows): b(list(col))
        return b.lines
    def gelu(pos, tmp=TMP):
        acc = aset(pos); out = []
        for j in range(4):
            c = CON + 3*j
            for h in range(2):
                st = []
                for e in range(2):
                    g = acc + 4*j + 2*h + e; u = g + 16; t = tmp + 4*((2*j + h) % 2) + 2*e
                    st.append([f"v_mul_f32 v{t}, v{g}, v{g}", f"v_fma_f32 v{t}, v{t}, v{c+1}, v{c}", f"v_mul_f32 v{t}, v{t}, v{g}",
                               f"v_exp_f32 v{t}, v{t}", f"v_mul_f32 v{t+1}, v{g}, v{u}", f"v_fma_f32 v{t}, v{t}, v{c+2}, v{c+2}",
                               f"v_rcp_f32 v{t}, v{t}", f"v_mul_f32 v{t+1}, v{t+1}, v{t}"])
                for x, y in zip(*st): out += [x, y]
                t = tmp + 4*((2*j + h) % 2)
                dst = HS + 2*j + h if pos == 0 else HOWN + 16*((pos-1)//2) + 4*j + 2*((pos-1) % 2) + h
                out.append(f"v_cvt_pk_bf16_f32 v{dst}, v{t+1}, v{t+3}")
            if pos == 0:
                out.append(("vm", f"buffer_store_dwordx2 v[{HS+2*j}:{HS+2*j+1}], v{VJH[j]}, {WS}, s{sM+2} offen {cp}", ("hs", 0)))
            elif pos % 2 == 0:
                p = (pos-1)//2; r = HOWN + 16*p + 4*j
                out.append(("vm", f"buffer_store_dwordx4 v[{r}:{r+3}], v{VJ[j]}, {WS}, s{sH} offen offset:{p*1024} {cp}", ("hs", pos)))
        return out
    hreg = {0: ("v", HOWN), 1: ("v", HOWN+16), 2: ("v", HOWN+32), 11: ("v", HOWN+48)}
    for n, pos in enumerate(range(3, 10)): hreg[pos] = ("a", 16*n)
    hreg[10] = ("v", XV); hreg[12] = ("v", XV+16); hreg[13] = ("v", aset(7)); hreg[14] = ("v", aset(7)+16)
    hreg[15] = ("v", aset(8)); hreg[16] = ("v", aset(8)+16); hreg[17] = ("v", HOWN)
    def hfrag(pos, j):
        k, r = hreg[pos]; return f"{k}[{r+4*j}:{r+4*j+3}]"
    def hload(pos):
        rel, p = KPOS[pos]
        if rel == "mix":
            k, r = hreg[pos]
            return [("vm", f"buffer_load_dwordx2 {k}[{r+4*j+2*h}:{r+4*j+2*h+1}], v{VJH[j]}, {WS}, s{sM+p} offen offset:{512*h} {cp}", ("h", pos))
                    for j in range(4) for h in range(2)]
        return [("vm", f"buffer_load_dwordx4 {hfrag(pos, j)}, v{VJ[j]}, {WS}, s{sH+rel} offen offset:{p*1024} {cp}", ("h", pos)) for j in range(4)]
    done = set()
    def set_flag(val, keys):
        def w():
            assert all(k in done for k in keys), (val, keys)
            vm.wait(max(tag[("hs", k)] for k in keys))
        return [f"v_mov_b32 v{VFV}, {val}", w, ("vm", f"buffer_store_dword v{VFV}, v{VFS}, {WS}, s{sF} offen sc1", ("fs", val))]
    def poll(val):
        return [("vm", f"buffer_load_dword v13, v{VFL}, {WS}, s{sF} offen sc1", ("fl", val))]
    def check(val):
        def f():
            vm.wait(tag[("fl", val)])
            a(f"v_cmp_le_u32 vcc, {val}, v13", "s_nop 0", "s_cmp_eq_u64 vcc, exec", f"s_cbranch_scc0 L_f_slow{val}")
            a.label(f"L_f_back{val}")
            tail(f"L_f_slow{val}:", "s_mov_b32 s52, 0", f"L_f_spin{val}:",
                 f"buffer_load_dword v13, v{VFL}, {WS}, s{sF} offen sc1", "s_add_u32 s52, s52, 1", "s_waitcnt vmcnt(0)",
                 f"v_cmp_le_u32 vcc, {val}, v13", "s_cmp_gt_u32 s52, 0x100000", f"s_cbranch_scc1 L_f_back{val}",
                 "s_cmp_eq_u64 vcc, exec", f"s_cbranch_scc0 L_f_spin{val}", f"s_branch L_f_back{val}")
        return f
    def epilogue(tiles):
        out = []
        if len(tiles) == 2:
            P = tiles[0] // 2
            for j in range(4):
                t = TMP + 8*(j % 2); pk = HS + 4*(j % 2)
                for n, tt in enumerate(tiles):
                    r = OUT + (tt*4 + j)*4
                    out += [f"v_accvgpr_read_b32 v{t+4*n+e}, a{r+e}" for e in range(4)]
                out += [f"v_cvt_pk_bf16_f32 v{pk+d}, v{t+2*d}, v{t+2*d+1}" for d in range(4)]
                out.append(("vm", f"buffer_store_dwordx4 v[{pk}:{pk+3}], v{VJ[j]}, {WS}, s{sP} offen offset:{P*1024} {cp}", ("o", P)))
        else:
            for jp in range(2):
                t = TMP + 8*jp; pk = HS + 4*jp
                for n in range(2):
                    r = OUT + (8*4 + 2*jp + n)*4
                    out += [f"v_accvgpr_read_b32 v{t+4*n+e}, a{r+e}" for e in range(4)]
                out += [f"v_cvt_pk_bf16_f32 v{pk+d}, v{t+2*d}, v{t+2*d+1}" for d in range(4)]
                out += [f"v_permlane16_swap_b32 v{pk}, v{pk+2}", f"v_permlane16_swap_b32 v{pk+1}, v{pk+3}"]
                out.append(("vm", f"buffer_store_dwordx4 v[{pk}:{pk+3}], v{VODD}, {WS}, s{sP+1+jp} offen {cp}", ("o", 4)))
        return out

    steps = []
    def gstep(pos, kp, mat, wait=None):
        d = [f"v[{aset(pos) + 16*mat + 4*j}:{aset(pos) + 16*mat + 4*j + 3}]" for j in range(4)]
        steps.append(dict(d=d, b=[[xreg(2*kp + c, j) for c in range(2)] for j in range(4)], first=kp == 0, wait=wait))
    for kp in range(9):
        for pos in range(2):
            for mat in range(2): gstep(pos, kp, mat, ("x", 2*kp+1) if pos == 0 and mat == 0 else None)
    for pos in range(2, 9):
        for kp in range(9):
            for mat in range(2): gstep(pos, kp, mat)
    P2 = len(steps)
    for start, n in KBLOCKS:
        for t in range(9):
            for c0 in range(0, n, 2):
                d = [f"a[{OUT + (t*4+j)*4}:{OUT + (t*4+j)*4 + 3}]" for j in range(4)]
                need_h = [p for p in (start+c0, start+c0+1) if KPOS[p][0] != 0]
                steps.append(dict(d=d, b=[[hfrag(start + c0 + c, j) for c in range(2)] for j in range(4)], first=start == 0,
                                  wait=("h", need_h[-1]) if need_h and t == 0 else None))
    NSTEP = len(steps); fin = NSTEP - 18
    mem_at = {}
    def add(s, items): mem_at.setdefault(s, []).extend(items)
    for k in range(BURST, 18): add(0, xload(k))
    add(0, dma(4))
    add(121, set_flag(1, (0, 2, 4))); add(132, poll(1)); add(143, [check(1)])
    add(150, set_flag(2, (6,)))
    for n, pos in enumerate(range(3, 10)): add(max(147 + 2*(n//2), 147 + 3*n), hload(pos))
    add(170, poll(2)); add(172, hload(10)); add(187, set_flag(3, (8,)))
    add(181, [check(2)] + hload(12) + hload(13) + hload(14))
    add(198, poll(3)); add(208, [check(3)] + hload(15) + hload(16) + hload(17))
    if opts.get("warm", 1): add(opts.get("warm_at", 188), warm_items(sL, 248))
    jobs = [("c", consts(), 8, 30)]
    jobs += [(0, gelu(0), 36, 54), (1, gelu(1), 36, 72), (2, gelu(2, TMP + 8), 54, 115), (3, gelu(3), 72, 90)]
    jobs += [(p, gelu(p), 18*(p+1), 18*(p+2)) for p in range(4, 7)] + [(7, gelu(7), 144, 168), (8, gelu(8), 162, 181)]
    jobs += [(f"e{P}", epilogue([2*P, 2*P+1]), fin + 4*P + 4, min(NSTEP + 1, fin + 4*P + 8)) for P in range(4)]
    jobs = [dict(name=n, q=list(q), t0=t0, t1=t1) for n, q, t0, t1 in jobs]
    after = {5: 2, 8: 7}
    issued = 6; late = []; memq = []; gap = 4; pend_rd = 0; bar_next = False
    for s, st in enumerate(steps):
        memq += mem_at.get(s, [])
        for jb in jobs:
            if jb["t1"] == s:
                if jb["q"]: late.append((jb["name"], len(jb["q"])))
                while jb["q"]: emit(jb["q"].pop(0))
                done.add(jb["name"])
        if st["wait"]:
            while st["wait"] not in tag or any(isinstance(x, tuple) and x[2] == st["wait"] for x in memq):
                late.append(("mem", s)); emit(memq.pop(0))
            vm.wait(tag[st["wait"]])
        assert issued >= min(486, 2*s + 2)
        a(f"s_waitcnt lgkmcnt({issued - 2*s - 2})")
        pr.stamp(f"s{s}")
        for n in range(8):
            j, c = n // 2, n % 2
            w = RING + 4*((2*s + c) % NW)
            a(f"{MF} {st['d'][j]}, v[{w}:{w+3}], {st['b'][j][c]}, {'0' if st['first'] and c == 0 else st['d'][j]}")
            room = 2 - (1 if n == 7 else 0)
            gap += 1
            if n in (2, 5): pend_rd += 1
            if n == 0 and issued < 486 and issued % STAGE == 0:
                b = issued // STAGE
                while memq and any(isinstance(x, tuple) and x[2] == ("w", b) for x in memq): late.append(("dma", s)); emit(memq.pop(0))
                if b >= NPRE: vm.wait(tag[("w", b)]); room -= 1
                bar_next = True
            elif bar_next:
                a("s_barrier"); bar_next = False
                if b + 4 < NSTAGE: memq = memq + dma(b + 4)
                continue
            if pend_rd and issued < 486:
                a(rd(issued)); issued += 1; pend_rd -= 1; room -= 1
            xs = any(isinstance(x, tuple) and x[2][0] == "x" for x in memq)
            while memq and not isinstance(memq[0], tuple) and room > 0: emit(memq.pop(0)); room -= 1
            if memq and isinstance(memq[0], tuple) and gap >= 4 and (room == 2 or gap >= 7):
                room -= cost(memq[0]); emit(memq.pop(0)); gap = 0
            g = 8*s + n
            live = sorted((jb for jb in jobs if jb["q"] and 8*jb["t0"] + 3 <= g and after.get(jb["name"], "c") in done | {"c"}), key=lambda jb: jb["t1"])
            for jb in live:
                left = sum(cost(x) for x in jb["q"]); slots = 8*jb["t1"] - g - 2
                lazy = jb is live[-1] and isinstance(jb["name"], int) and jb["name"] in (6,) and left < 1.15*slots - 6
                while jb["q"] and not lazy:
                    urgent = left > 1.9*slots
                    i = pick(jb["q"], lambda x: urgent or (cost(x) <= room and not (isinstance(x, tuple) and gap < 2)))
                    if i is None: break
                    x = jb["q"].pop(i); cx = cost(x)
                    emit(x); room -= cx; left -= cx
                    if isinstance(x, tuple): gap = 0
                    if room <= 0: break
                if not jb["q"]: done.add(jb["name"])
                if room <= 0: break
    assert not memq, memq
    if any(x[1] > 8 for x in late): print("late items", late)
    a("s_barrier")
    for jb in jobs:
        for x in jb["q"]: emit(x)
    for x in epilogue([8]): emit(x)
    pr.stamp("fst")
    publish(a, 35)
    pr.stamp("fend")
```

```python
from gen_common import *

RAW, FR = 16, 80
VO, VO2 = 4, 5

def gather(a, rowoff, vsel=lambda k: VO):
    vm = VM(a)
    for k0 in range(0, 18, 6):
        tags = []
        for k in range(k0, k0+6):
            for i in range(8):
                so = rowoff(k, i)
                t = vm.op(f"buffer_load_ushort v{RAW + 8*(k-k0) + i}, v{vsel(k)}, s[16:19], {so} offen")
            tags.append(t)
        for k in range(k0, k0+6):
            vm.wait(tags[k-k0])
            for d in range(4):
                r = RAW + 8*(k-k0) + 2*d
                a(f"v_lshl_or_b32 v{FR + 4*k + d}, v{r+1}, 16, v{r}")
    return vm

def stores(a, vm, dest):
    for k in range(18):
        so = dest(k)
        vm.op(f"buffer_store_dwordx4 v[{FR+4*k}:{FR+4*k+3}], v{V_L16}, {WS}, {so} offen")

def load_srd(a, key, nbytes):
    a(f"s_load_dwordx2 s[12:13], s[0:1], {key}", "s_waitcnt lgkmcnt(0)")
    srd(a, 16, 12, nbytes)

def div(a, dst, src, d, maxv):
    sh = 16; m = (1 << sh) // d + 1
    assert all((v * m) >> sh == v // d for v in range(maxv)), (d, maxv)
    a(f"s_mul_i32 s{dst}, s{src}, {m}", f"s_lshr_b32 s{dst}, s{dst}, {sh}")

def const_off(a, base_reg):
    def f(val):
        a(f"s_add_u32 s40, s{base_reg}, {val}")
        return "s40"
    return f

def gen_pack(a, end):
    a("s_lshl_b32 s20, s2, 2", f"s_add_u32 s20, s20, s{S_WAVE}")
    a(f"v_and_b32 v6, 15, v{V_LANE}", f"v_lshrrev_b32 v7, 4, v{V_LANE}")
    a("v_lshrrev_b32 v8, 2, v6", "v_and_b32 v9, 3, v6", "v_lshl_add_u32 v10, v8, 3, v9")
    a("s_cmp_ge_u32 s20, 992", "s_cbranch_scc1 L_pack_o", "s_cmp_ge_u32 s20, 864", "s_cbranch_scc1 L_pack_q",
      "s_cmp_ge_u32 s20, 576", "s_cbranch_scc1 L_pack_d")
    div(a, 21, 2, 72, 144)
    a("s_mul_i32 s22, s21, 72", "s_sub_u32 s22, s2, s22")
    div(a, 23, 22, 9, 72)
    a("s_mul_i32 s24, s23, 9", "s_sub_u32 s24, s22, s24")
    a("s_lshl_b32 s24, s24, 2", f"s_add_u32 s24, s24, s{S_WAVE}")
    a(f"s_load_dwordx4 s[36:39], s[0:1], {KA['wg']}", "s_waitcnt lgkmcnt(0)", "s_cmp_eq_u32 s21, 0", "s_cselect_b64 s[12:13], s[36:37], s[38:39]")
    srd(a, 16, 12, D * DF * 2)
    a("s_lshr_b32 s26, s24, 1", "s_lshl_b32 s26, s26, 5", "s_and_b32 s27, s24, 1", "s_lshl_b32 s27, s27, 2",
      "s_add_u32 s26, s26, s27", "s_mul_i32 s27, s23, 576", "s_add_u32 s26, s26, s27")
    a("v_add_u32 v11, s26, v10", "v_lshlrev_b32 v11, 1, v11", f"v_mul_u32_u24 v12, {8*9216}, v7", f"v_add_u32 v{VO}, v11, v12")
    div(a, 27, 24, 9, 36)
    a("s_mul_i32 s28, s27, 9", "s_sub_u32 s28, s24, s28")
    a("s_add_u32 s29, s28, 1", "s_cmp_eq_u32 s29, 9", "s_cselect_b32 s29, 0, s29",
      "s_and_b32 s30, s27, 1", "s_cmp_eq_u32 s30, 0", "s_cselect_b32 s28, s29, s28")
    a("s_lshl_b32 s29, s23, 2", "s_add_u32 s29, s29, s27", f"s_mul_i32 s29, s29, {PF_TASK}",
      f"s_mul_i32 s30, s28, {36*1024}", "s_lshl_b32 s33, s28, 12", "s_cmp_lt_u32 s28, 2", "s_cselect_b32 s30, s33, s30", "s_cselect_b32 s32, 2, 1", "s_lshl_b32 s32, s32, 12",
      "s_add_u32 s29, s29, s30", "s_lshl_b32 s21, s21, 11", "s_add_u32 s29, s29, s21", f"s_add_u32 s29, s29, {PF}")
    def ro(k, i):
        a(f"s_mov_b32 s40, {(32*k+i)*9216}"); return "s40"
    vm = gather(a, ro)
    a("s_mov_b32 s31, 0x3f803f80", "v_mov_b32 v12, 0", "v_mov_b32 v13, 0")
    for r in range(72): a(f"v_dot2_f32_bf16 v{12 + r % 2}, v{FR+r}, s31, v{12 + r % 2}")
    a("s_nop 2", "v_add_f32 v12, v12, v13")
    xreduce(a, [12], 13)
    a(f"v_mul_f32 v12, {f32(1/576)}, v12")
    for r in range(72):
        t = RAW + 2*(r % 4)
        a(f"v_lshlrev_b32 v{t}, 16, v{FR+r}", f"v_and_b32 v{t+1}, 0xffff0000, v{FR+r}",
          f"v_sub_f32 v{t}, v{t}, v12", f"v_sub_f32 v{t+1}, v{t+1}, v12", f"v_cvt_pk_bf16_f32 v{FR+r}, v{t}, v{t+1}")
    def dst1(k):
        if k and k % 2 == 0: a("s_add_u32 s29, s29, s32")
        a(f"s_add_u32 s40, s29, {1024*(k & 1)}"); return "s40"
    stores(a, vm, dst1)
    a(f"s_branch {end}")
    a.label("L_pack_d")
    a("s_sub_u32 s20, s20, 576")
    div(a, 21, 20, 9, 288)
    a("s_mul_i32 s22, s21, 9", "s_sub_u32 s22, s20, s22")
    a("s_lshr_b32 s23, s21, 2", "s_and_b32 s24, s21, 3")
    load_srd(a, KA["wd"], D * DF * 2)
    a("s_lshr_b32 s25, s22, 1", "s_lshl_b32 s25, s25, 5", "s_and_b32 s26, s22, 1", "s_lshl_b32 s26, s26, 2", "s_add_u32 s25, s25, s26",
      "s_mul_i32 s26, s24, 144", "s_add_u32 s25, s25, s26")
    a("s_cmp_eq_u32 s22, 8", "s_cselect_b64 vcc, -1, 0", "v_cndmask_b32 v11, v10, v6, vcc")
    a("v_add_u32 v11, s25, v11", "v_lshlrev_b32 v11, 1, v11", f"v_mul_u32_u24 v12, {8*1152}, v7", f"v_add_u32 v{VO}, v11, v12")
    a(f"s_mul_i32 s26, s23, {576*1152}")
    for rel in range(4):
        a(f"s_add_u32 s27, s24, {rel}", "s_and_b32 s27, s27, 3", "s_mul_i32 s27, s27, 9", "s_add_u32 s27, s27, 1", "s_lshr_b32 s27, s27, 1",
          f"s_mul_i32 s27, s27, {32*1152}", f"s_add_u32 s{32+rel}, s26, s27")
    def ro(pos, i):
        rel, p = KPOS[pos]
        if rel == "mix": a(f"s_add_u32 s40, s26, {((4 if p == 0 else 13)*32 + i)*1152}")
        else: a(f"s_add_u32 s40, s{32+rel}, {(32*p + i)*1152}")
        return "s40"
    vm = gather(a, ro)
    a(f"s_mul_i32 s29, s21, {PF_TASK}", f"s_add_u32 s29, s29, {PF + 324*1024}")
    a("s_lshl_b32 s30, s22, 11", "s_add_u32 s30, s30, s29", "s_lshl_b32 s31, s22, 12", "s_add_u32 s31, s31, s29")
    def dst(pos):
        n = [b for b in KBLOCKS if b[0] <= pos < b[0]+b[1]][0][1]
        a(f"s_add_u32 s40, s{30 if n == 2 else 31}, {pd_index(pos, 0)*1024}")
        return "s40"
    stores(a, vm, dst)
    a(f"s_branch {end}")
    a.label("L_pack_q")
    a("s_sub_u32 s20, s20, 864", "s_lshr_b32 s21, s20, 3", "s_and_b32 s22, s20, 7")
    load_srd(a, KA["wqkv"], D * 3 * D * 2)
    a("s_mov_b32 s23, 0")
    for t, base in enumerate([0, 18, 576, 594, 16, 1152, 1170, 1168]):
        a(f"s_cmp_eq_u32 s22, {t}", f"s_cselect_b32 s23, {base}, s23")
    a("s_mul_i32 s24, s21, 36", "s_add_u32 s23, s23, s24")
    a("v_and_b32 v11, 1, v6", "v_bfe_u32 v12, v6, 1, 1", "v_mul_u32_u24 v12, 18, v12", "v_add_u32 v11, v11, v12",
      "v_mul_u32_u24 v12, 576, v8", "v_add_u32 v11, v11, v12")
    a("s_mov_b32 s24, 16", "s_cmp_eq_u32 s22, 4", "s_cselect_b32 s24, 8, s24", "s_cmp_eq_u32 s22, 7", "s_cselect_b32 s24, 4, s24",
      "s_cmp_lg_u32 s24, 16", "s_cselect_b64 vcc, -1, 0", "v_cndmask_b32 v11, v6, v11, vcc")
    a("v_add_u32 v11, s23, v11", "v_lshlrev_b32 v11, 1, v11", f"v_mul_u32_u24 v12, {8*3456}, v7", "v_add_u32 v11, v11, v12")
    a(f"v_mov_b32 v12, {OOB}", "v_cmp_gt_u32 vcc, s24, v6", f"v_cndmask_b32 v{VO}, v12, v11, vcc")
    def ro(k, i):
        a(f"s_mov_b32 s40, {(32*k+i)*3456}"); return "s40"
    vm = gather(a, ro)
    a(f"s_mul_i32 s29, s21, {PQ_TASK}", "s_lshl_b32 s30, s22, 10", "s_add_u32 s29, s29, s30", f"s_add_u32 s29, s29, {PQ}")
    co = const_off(a, 29)
    stores(a, vm, lambda k: co(8192*k))
    a(f"s_branch {end}")
    a.label("L_pack_o")
    a("s_sub_u32 s20, s20, 992")
    div(a, 21, 20, 5, 40)
    a("s_mul_i32 s22, s21, 5", "s_sub_u32 s22, s20, s22")
    load_srd(a, KA["wo"], D * D * 2)
    a("s_lshr_b32 s25, s22, 1", "s_lshl_b32 s25, s25, 5", "s_and_b32 s26, s22, 1", "s_lshl_b32 s26, s26, 2", "s_add_u32 s25, s25, s26",
      "s_mul_i32 s26, s21, 72", "s_add_u32 s25, s25, s26")
    a("s_cmp_eq_u32 s22, 4", "s_cselect_b64 vcc, -1, 0", "s_cselect_b32 s24, 8, 16", "v_cndmask_b32 v11, v10, v6, vcc")
    a("v_add_u32 v11, s25, v11", "v_lshlrev_b32 v11, 1, v11", f"v_mov_b32 v12, {OOB}", "v_cmp_gt_u32 vcc, s24, v6", "v_cndmask_b32 v11, v12, v11, vcc")
    a(f"v_mul_u32_u24 v12, {4*1152}, v7", f"v_add_u32 v{VO}, v11, v12", f"v_mul_u32_u24 v12, {72*1152}, v7", f"v_add_u32 v{VO2}, v11, v12")
    def ro(k, i):
        row = 36*k + 18*(i >> 2) + (i & 3) if k < 16 else 288*(k-16) + 36*(i >> 2) + [16, 17, 34, 35][i & 3]
        a(f"s_mov_b32 s40, {row*1152}"); return "s40"
    vm = gather(a, ro, lambda k: VO if k < 16 else VO2)
    a(f"s_mul_i32 s29, s21, {PO_TASK}", "s_lshl_b32 s30, s22, 10", "s_add_u32 s29, s29, s30", f"s_add_u32 s29, s29, {PO}")
    co = const_off(a, 29)
    stores(a, vm, lambda k: co(5120*k))
```

```python
from gen_common import *

def gen_r(a, mode, layer, pr, cp="sc1", lds=0):
    vm = VM(a)
    VA, VN, T0 = 4, 5, 6
    DATA, SUM, PK = 16, 128, 152
    sT, sN = 20, 21
    a(f"v_and_b32 v6, 7, v{V_LANE}", f"v_lshrrev_b32 v7, 3, v{V_LANE}")
    a(f"s_mul_i32 s22, s{S_WAVE}, 24", "v_add_u32 v7, s22, v7")
    a(f"s_and_b32 s23, s{S_I}, 1", "s_lshl_b32 s23, s23, 3")
    a("v_add_u32 v8, s23, v6", "v_lshlrev_b32 v8, 4, v8", f"v_lshl_add_u32 v{VA}, v7, 8, v8")
    a(f"s_lshl_b32 s24, s{S_X}, 4", f"s_lshr_b32 s25, s{S_I}, 1", "s_add_u32 s24, s24, s25",
      f"s_mul_i32 s{sT}, s24, {TILE}")
    if mode != "mid":
        a(f"s_lshl_b32 s24, s{S_X}, 8", f"s_lshl_b32 s25, s{S_I}, 3", "s_add_u32 s24, s24, s25",
          "s_and_b32 s25, s24, 1023", "s_lshl_b32 s25, s25, 1", "s_lshr_b32 s24, s24, 10", "s_add_u32 s24, s24, s25",
          f"s_mul_i32 s{sN}, s24, 1152")
        a("v_mul_u32_u24 v8, 2304, v6", f"v_lshl_add_u32 v{VN}, v7, 4, v8")
        key = "x" if mode == "first" else "out"
        a(f"s_load_dwordx2 s[12:13], s[0:1], {KA[key]}", "s_waitcnt lgkmcnt(0)")
        srd(a, 16, 12, S * D * 2)
    tags = []
    if mode == "first":
        for j in range(3):
            tags.append(vm.op(f"buffer_load_dwordx4 v[{DATA+4*j}:{DATA+4*j+3}], v{VN}, s[16:19], s{sN} offen offset:{128*j}"))
        nsrc = 1
    else:
        nsrc = 9
        for s in range(9):
            base = X1[layer] if s == 0 else PART[layer] + (s-1) * ACT
            if s == 1:
                a(f"s_lshl_b32 s24, s{S_X}, 2", f"s_lshr_b32 s25, s{S_I}, 3", "s_add_u32 s24, s24, s25", f"s_lshl_b32 s24, s24, {5+FS}",
                  f"s_add_u32 s24, s24, {FLAGS + layer*FL_LAYER + FL_P}", f"v_and_b32 v6, 31, v{V_LANE}", f"v_lshlrev_b32 v6, {FS}, v6")
                pr.stamp('rpre')
                await_flags(a, 6, 24)
                pr.stamp("rgo")
            a(f"s_add_u32 s24, s{sT}, {base}", "s_add_u32 s25, s24, 4096")
            for j in range(3):
                r = DATA + 12*s + 4*j
                so, off = ("s24", 2048*j) if j < 2 else ("s25", 0)
                tags.append(vm.op(f"buffer_load_dwordx4 v[{r}:{r+3}], v{VA}, {WS}, {so} offen offset:{off} {cp}"))
    for s in range(nsrc):
        for j in range(3):
            vm.wait(tags[3*s+j])
            if j == 0: pr.stamp(f'r{s}')
            for d in range(4):
                src = DATA + 12*s + 4*j + d; lo = SUM + 8*j + 2*d
                if s == 0:
                    a(f"v_lshlrev_b32 v{lo}, 16, v{src}", f"v_and_b32 v{lo+1}, 0xffff0000, v{src}")
                else:
                    t = T0 + 2*(d % 2)
                    a(f"v_lshlrev_b32 v{t}, 16, v{src}", f"v_and_b32 v{t+1}, 0xffff0000, v{src}",
                      f"v_add_f32 v{lo}, v{lo}, v{t}", f"v_add_f32 v{lo+1}, v{lo+1}, v{t+1}")
    pr.stamp("rsum")
    pk = DATA if mode == "first" else PK
    if mode != "first":
        for d in range(12): a(f"v_cvt_pk_bf16_f32 v{PK+d}, v{SUM+2*d}, v{SUM+2*d+1}")
    if mode == "last":
        for j in range(3):
            vm.op(f"buffer_store_dwordx4 v[{PK+4*j}:{PK+4*j+3}], v{VN}, s[16:19], s{sN} offen offset:{128*j}")
        return
    nl = 0 if mode == "first" else layer + 1
    a(f"s_add_u32 s24, s{sT}, {XR[nl]}", "s_add_u32 s25, s24, 4096")
    for j in range(3):
        so, off = ("s24", 2048*j) if j < 2 else ("s25", 0)
        vm.op(f"buffer_store_dwordx4 v[{pk+4*j}:{pk+4*j+3}], v{VA}, {WS}, {so} offen offset:{off} {cp}")
    a(f"v_add_f32 v6, v{SUM}, v{SUM+1}", f"v_mul_f32 v7, v{SUM}, v{SUM}", f"v_mul_f32 v9, v{SUM+1}, v{SUM+1}", "v_mov_b32 v8, 0")
    for e in range(2, 24, 2):
        a(f"v_add_f32 v6, v6, v{SUM+e}", f"v_add_f32 v8, v8, v{SUM+e+1}",
          f"v_fmac_f32 v7, v{SUM+e}, v{SUM+e}", f"v_fmac_f32 v9, v{SUM+e+1}, v{SUM+e+1}")
    a("v_add_f32 v6, v6, v8", "v_add_f32 v7, v7, v9")
    xreduce(a, [6, 7], 8, steps=("8", "16", "32"))
    a(f"v_and_b32 v10, 7, v{V_LANE}", "v_lshlrev_b32 v10, 3, v10", f"v_add_u32 v10, {lds}, v10", f"s_lshl_b32 s24, s{S_WAVE}, 6", "v_add_u32 v11, s24, v10")
    pr.stamp("rxr")
    a("ds_write_b64 v11, v[6:7]", "s_waitcnt lgkmcnt(0)", "s_barrier")
    pr.stamp("rbar")
    a("ds_read_b64 v[6:7], v10", "ds_read_b64 v[8:9], v10 offset:64", "ds_read_b64 v[12:13], v10 offset:128", "s_waitcnt lgkmcnt(0)")
    a("v_add_f32 v6, v6, v8", "v_add_f32 v7, v7, v9", "v_add_f32 v6, v6, v12", "v_add_f32 v7, v7, v13")
    a(f"v_mul_f32 v6, {f32(1/576)}, v6", f"v_mul_f32 v7, {f32(1/576)}, v7", "v_fma_f32 v7, -v6, v6, v7",
      "v_max_f32 v7, 0, v7", f"v_add_f32 v7, {f32(1e-5)}, v7", "v_rsq_f32 v7, v7")
    a("v_mul_f32 v6, v6, v7")
    for e in range(24): a(f"v_fma_f32 v{SUM+e}, v{SUM+e}, v7, -v6")
    XO = 168
    for d in range(12): a(f"v_cvt_pk_bf16_f32 v{XO+d}, v{SUM+2*d}, v{SUM+2*d+1}")
    a(f"s_add_u32 s24, s{sT}, {XN[nl]}", "s_add_u32 s25, s24, 4096")
    for j in range(3):
        so, off = ("s24", 2048*j) if j < 2 else ("s25", 0)
        vm.op(f"buffer_store_dwordx4 v[{XO+4*j}:{XO+4*j+3}], v{VA}, {WS}, {so} offen offset:{off} {cp}")
    if mode == "mid":
        a(f"s_lshl_b32 s24, s{S_X}, 4", f"s_lshr_b32 s25, s{S_I}, 1", "s_add_u32 s24, s24, s25", "s_lshl_b32 s24, s24, 3", f"s_and_b32 s25, s{S_I}, 1",
          "s_mul_i32 s25, s25, 3", "s_add_u32 s24, s24, s25", f"s_add_u32 s24, s24, s{S_WAVE}", f"s_lshl_b32 s24, s24, {FS}",
          f"s_add_u32 s24, s24, {FLAGS + nl*FL_LAYER + FL_R}")
        pr.stamp('rst')
        if pr.on == 5:
            a('s_waitcnt vmcnt(3)'); pr.stamp('rw3'); a('s_waitcnt vmcnt(2)'); pr.stamp('rw2'); a('s_waitcnt vmcnt(1)'); pr.stamp('rw1'); a('s_waitcnt vmcnt(0)'); pr.stamp('rw0')
        publish(a, 24)
```

```python
S, D, H, DH, DF = 2048, 576, 32, 18, 4608
TILE = 18432
ACT = 128 * TILE
WS_BYTES = 268435456

_off = 0
def _alloc(n):
    global _off
    o = _off
    _off += (n + 4095) // 4096 * 4096
    return o

import os
FS = int(os.environ.get('FS', 7))
FLAG_BYTES = 16 * 1024 << 8
FLAGS = _alloc(FLAG_BYTES)
FL_LAYER = 8 * 1024 << FS
FL_H, FL_O, FL_X, FL_P, FL_R, FL_K = [n * 1024 << FS for n in range(6)]
PQ_TASK = 144 * 1024
PQ = _alloc(16 * PQ_TASK)
PO_TASK = 90 * 1024
PO = _alloc(8 * PO_TASK + 8192)
PF_TASK = 486 * 1024
PF = _alloc(32 * PF_TASK + 32768)
XN = [_alloc(ACT) for _ in range(2)]
XR = [_alloc(ACT) for _ in range(2)]
OB = [_alloc(ACT) for _ in range(2)]
X1 = [_alloc(ACT) for _ in range(2)]
STAT_BYTES = 128 * 8 * 128
ST = [_alloc(STAT_BYTES) for _ in range(2)]
HB_BYTES = 8 * 8 * 16 * TILE
HB = [_alloc(HB_BYTES) for _ in range(2)]
PART = [_alloc(8 * ACT) for _ in range(2)]
PROF = _alloc(2 * 1024 * 256)
WS_USED = _off
assert WS_USED <= WS_BYTES

KPOS = [(0, 0), (0, 1), (0, 2), (1, 0), (2, 0), (3, 0), (1, 1), (2, 1), (3, 1), ("mix", 0), ("mix", 1), (0, 3),
        (1, 2), (2, 2), (3, 2), (1, 3), (2, 3), (3, 3)]
KBLOCKS = [(0, 2), (2, 2), (4, 2), (6, 2), (8, 2), (10, 2), (12, 2), (14, 4)]

def kbase(m): return (9 * m + 1) >> 1

def kstep_of(member, pos):
    rel, p = KPOS[pos]
    if rel == "mix": return 4 if p == 0 else 13
    return kbase((member + rel) & 3) + p

def pd_index(pos, t):
    for start, n in KBLOCKS:
        if start <= pos < start + n: return start * 9 + t * n + (pos - start)
```

```python
import sys
from gen_common import *
from gen_r import gen_r
from gen_pack import gen_pack
from gen_a1 import DIAG, A1R, gen_a1, a1_weights, A1_LDS, XCH
from gen_a2 import gen_a2
from gen_f import gen_f, F_LDS

NAME = "interleave_layers__sliding_local_dilated__glu_gated_geglu__prompt"
HEADER = open(f"/code/{NAME}.s.ref").read().split("; Override launch")[0]

SL = dict(XN=70, XR=71, OB=72, X1=73, ST=74, HB=75, PART=76, FL=77, LAYER=7)
def layer_regs(a, l):
    for k, v in (("XN", XN[l]), ("XR", XR[l]), ("OB", OB[l]), ("X1", X1[l]), ("ST", ST[l]), ("HB", HB[l]), ("PART", PART[l]),
                 ("FL", FLAGS + l*FL_LAYER), ("LAYER", l)):
        a(f"s_mov_b32 s{SL[k]}, {v}")

def finish(lines, name):
    st = []
    out = pad_hazards(lines, st)
    errs = check_waits(out, name)
    for e in errs[:20]: print("WAIT ERROR", e)
    assert not errs
    nins = sum(1 for l in out if not l.endswith(":") and not l.startswith((".", ";")))
    print(f"{name}: {nins} instructions, {len(st)} pads ({sum(x[0] for x in st)} states)", file=sys.stderr)
    return out

def build(opts):
    code = []; desc = []
    prof = opts.get("prof", 0)
    A1R[0] = opts.get("a1r", 8); DIAG[0] = opts.get("diag", 0)
    POLL_CFG.update(depth=opts.get("pd", 3), sleep=opts.get("ps", 0))
    a = Asm()
    entry(a, "prep_kernel", 258, "L_prep_end"); common(a)
    a("s_cmp_ge_u32 s2, 256", "s_cbranch_scc1 L_prep_pack")
    a(f"s_lshl_b32 s20, s2, {6+FS}", f"s_add_u32 s20, s20, {FLAGS}", f"v_lshlrev_b32 v4, {FS}, v{V_LANE}", "v_mov_b32 v5, 0",
      f"buffer_store_dword v5, v4, {WS}, s20 offen")
    a(f"s_cmp_eq_u32 s{S_WAVE}, 3", "s_cbranch_scc1 L_prep_idle")
    gen_r(a, "first", 0, Prof(a, 0), cp="")
    a("s_branch L_prep_pack")
    a.label("L_prep_idle")
    if opts.get("touch", 1):
        a(f"s_lshl_b32 s20, s{S_I}, 22", f"v_lshlrev_b32 v4, 16, v{V_LANE}", f"buffer_load_dword v5, v4, {WS}, s20 offen")
    a("s_barrier")
    a.label("L_prep_pack"); a("s_waitcnt vmcnt(0)")
    gen_pack(a, "L_prep_end")
    a.label("L_prep_end"); a("s_endpgm")
    code += finish(a.lines, "prep"); desc.append(descriptor("prep_kernel", 184, 184))

    a = Asm(); tail = Asm(); names = {}
    entry(a, "main_kernel", 256, "L_end"); common(a)
    layer_regs(a, 0)
    pr = Prof(a, prof)
    pr.stamp("c0", cyc=True); pr.stamp("start")
    if opts.get("cw", 0):
        a("s_getpc_b64 s[20:21]", f"s_lshl_b32 s22, s{S_I}, 2", f"s_add_u32 s22, s22, s{S_WAVE}", "s_lshl_b32 s22, s22, 9",
          "s_add_u32 s20, s20, s22", "s_addc_u32 s21, s21, 0", f"v_lshlrev_b32 v4, 3, v{V_LANE}", "v_mov_b32 v5, s21",
          "v_add_co_u32 v4, vcc, s20, v4", "v_addc_co_u32 v5, vcc, 0, v5, vcc",
          f"s_cmp_ge_u32 s22, {opts['cw']*1024}", "s_cbranch_scc1 L_cw", "global_load_dwordx2 v[248:249], v[4:5], off")
        a.label("L_cw")
    a1_weights(a, 36)
    a.label("L_layer")
    gen_a1(a, SL, pr)
    gen_a2(a, SL, pr)
    gen_f(a, SL, tail, pr, opts)
    a(f"s_cmp_eq_u32 s{SL['LAYER']}, 1", "s_cbranch_scc1 L_last")
    n0 = pr.n; nm0 = list(pr.names)
    a1_weights(a, 36)
    a(f"s_cmp_eq_u32 s{S_WAVE}, 3", "s_cbranch_scc1 L_r_side")
    gen_r(a, "mid", 0, pr, lds=XCH)
    pr.stamp("rend"); pr.stamp("c1", cyc=True)
    pr.flush(SL["LAYER"]); names[0] = list(pr.names)
    if prof: a("s_memtime s[78:79]", "s_memrealtime s[80:81]")
    a("s_branch L_r_done")
    a.label("L_r_side")
    a("s_barrier", "s_waitcnt vmcnt(0)")
    a.label("L_r_done")
    a("s_barrier")
    layer_regs(a, 1)
    a("s_branch L_layer")
    a.label("L_last")
    a(f"s_cmp_eq_u32 s{S_WAVE}, 3", "s_cbranch_scc1 L_end")
    pr.n = n0; pr.names = nm0
    gen_r(a, "last", 1, pr)
    if prof: a("s_waitcnt vmcnt(0)")
    pr.stamp("rend"); pr.stamp("c1", cyc=True)
    pr.flush(SL["LAYER"]); names[1] = list(pr.names)
    a.label("L_end"); a("s_endpgm")
    code += finish(a.lines, "main") + pad_hazards(tail.lines); desc.append(descriptor("main_kernel", 512, 256))

    launches = [("prep_kernel", 258, 256, 1024), ("main_kernel", 256, 256, A1_LDS)]
    s = HEADER
    if prof: s += "; PROF " + repr(names) + "\n"
    for k, g, b, lds in launches: s += f"; @launch kernel={k} grid=({g},1,1) block=({b},1,1) lds={lds}\n"
    s += '.amdgcn_target "amdgcn-amd-amdhsa--gfx950"\n.text\n' + "\n".join(code) + '\n.section .rodata,"a"\n' + "".join(desc)
    return s

if __name__ == "__main__":
    out = sys.argv[1] if len(sys.argv) > 1 else f"/code/{NAME}.s"
    opts = dict(kv.split("=") for kv in sys.argv[2:])
    opts = {k: int(v) for k, v in opts.items()}
    open(out, "w").write(build(opts))
```

```python
import re

TRANS = {"v_exp_f32", "v_log_f32", "v_rcp_f32", "v_rsq_f32", "v_sqrt_f32", "v_sin_f32", "v_cos_f32"}
REG = re.compile(r"^(-|abs\()?\|?([vas])(?:(\d+)|\[(\d+):(\d+)\])\|?\)?$")

def regs_of(tok):
    tok = tok.strip()
    if tok == "vcc": return {("s", "vcc")}
    if tok == "exec": return {("s", "exec")}
    if tok == "m0": return {("s", "m0")}
    m = REG.match(tok)
    if not m: return set()
    k = m.group(2)
    if m.group(3) is not None: return {(k, int(m.group(3)))}
    return {(k, i) for i in range(int(m.group(4)), int(m.group(5)) + 1)}

class Ins:
    __slots__ = ("text", "op", "kind", "wr", "rd", "srcc", "ab", "data", "lds", "states")
    def __init__(self, text):
        self.text = text
        body = text.split(";")[0].strip()
        parts = body.split(None, 1)
        self.op = op = parts[0] if parts else ""
        ops = []
        if len(parts) > 1:
            depth = 0; cur = ""
            for ch in parts[1]:
                if ch in "[(": depth += 1
                if ch in "])": depth -= 1
                if ch == "," and depth == 0: ops.append(cur.strip()); cur = ""
                else: cur += ch
            ops.append(cur.strip())
        last_mods = []
        if ops:
            sp = ops[-1].split()
            if sp:
                ops[-1] = sp[0]; last_mods = sp[1:]
        self.wr = set(); self.rd = set(); self.srcc = set(); self.ab = set(); self.data = set()
        self.lds = "lds" in last_mods
        self.states = 1
        R = [regs_of(o) for o in ops]
        if op.endswith(":") or op.startswith(".") or op == "":
            self.kind = "none"; self.states = 0
        elif op == "s_nop":
            self.kind = "nop"; self.states = int(ops[0], 0) + 1
        elif op.startswith("v_mfma"):
            self.kind = "mfma"; self.wr = R[0]; self.ab = R[1] | R[2]; self.srcc = R[3]; self.rd = self.ab | self.srcc
        elif op.startswith("v_cmp"):
            self.kind = "valu"; self.wr = R[0]; self.rd = set().union(*R[1:])
        elif op.startswith("v_permlane") and "swap" in op:
            self.kind = "valu"; self.wr = R[0] | R[1]; self.rd = R[0] | R[1]
        elif op.startswith("v_"):
            self.kind = "valu"; self.wr = R[0]; self.rd = set().union(*R[1:]) if len(R) > 1 else set()
            if op.startswith(("v_fmac", "v_dot2c", "v_pk_fmac")) or "dpp" in op or any(m.startswith(("row_", "quad_perm")) for m in last_mods):
                self.rd |= R[0]
            if op.startswith("v_cndmask") and len(ops) == 3: self.rd |= {("s", "vcc")}
            if "_co_" in op: self.wr |= R[1]; self.rd = set().union(*R[2:])
        elif op.startswith(("buffer_load", "global_load")):
            self.kind = "vmem"
            if self.lds: self.rd = set().union(*R) | {("s", "m0")}
            else:
                self.wr = R[0]; self.rd = set().union(*R[1:])
                if "d16" in op: self.rd |= set()
        elif op.startswith(("buffer_store", "buffer_atomic")):
            self.kind = "vmem"; self.data = R[0]; self.rd = set().union(*R)
        elif op.startswith(("global_store", "global_atomic")):
            self.kind = "vmem"; self.data = R[1]; self.rd = set().union(*R)
        elif op.startswith(("buffer_inv", "buffer_wbl2")):
            self.kind = "vmem"
        elif op.startswith(("ds_read", "ds_bpermute", "ds_permute", "ds_swizzle")):
            self.kind = "ds"; self.wr = R[0]; self.rd = set().union(*R[1:])
        elif op.startswith("ds_"):
            self.kind = "ds"; self.rd = set().union(*R)
        elif op.startswith(("s_load", "s_memtime", "s_memrealtime", "s_buffer_load")):
            self.kind = "smem"; self.wr = R[0]; self.rd = set().union(*R[1:]) if len(R) > 1 else set()
        elif op.startswith(("s_waitcnt", "s_barrier", "s_endpgm", "s_branch", "s_cbranch", "s_setprio", "s_sleep")):
            self.kind = "ctl"
        elif op.startswith("s_cmp"):
            self.kind = "salu"; self.rd = set().union(*R)
        elif op.startswith("s_"):
            self.kind = "salu"; self.wr = R[0]; self.rd = set().union(*R[1:]) if len(R) > 1 else set()
            if "saveexec" in op: self.wr |= {("s", "exec")}
        else:
            raise ValueError("unknown instruction: " + text)

    def is_dpp(self):
        return "row_" in self.text or "quad_perm" in self.text or self.op.startswith("v_permlane")

def need(p, c):
    n = 0
    vec = lambda s: {r for r in s if r[0] in "va"}
    sc = lambda s: {r for r in s if r[0] == "s"}
    if p.kind == "valu":
        pw = vec(p.wr); ps = sc(p.wr)
        if pw:
            if c.kind == "mfma" and pw & c.rd: n = max(n, 2)
            if c.kind == "valu" and c.is_dpp() and pw & c.rd: n = max(n, 2)
            if c.op.startswith(("v_readlane", "v_readfirstlane")) and pw & c.rd: n = max(n, 1)
            if p.op in TRANS and c.kind == "valu" and pw & c.rd: n = max(n, 1)
            if p.op.startswith("v_dot") and pw & (c.rd | c.wr) and not (c.op == p.op and not pw & c.rd - {max(c.rd, key=str)} and False): n = max(n, 3)
        if ps:
            if c.kind == "valu" and ps & c.rd: n = max(n, 4 if c.op.startswith(("v_readlane", "v_writelane")) else 2)
            if c.kind == "vmem" and ps & c.rd: n = max(n, 5)
            if c.kind in ("salu", "smem") and ps & c.rd: n = max(n, 1)
    if p.kind == "mfma":
        big = "32x32" in p.op
        d = p.wr
        if c.kind == "mfma":
            if d & c.ab: n = max(n, 12 if big else 8)
            if d & c.srcc and (d != c.srcc or p.op != c.op): n = max(n, 10 if big else 6)
            if d & c.wr and d != c.srcc: n = max(n, 10 if big else 6)
        elif c.kind in ("valu", "vmem", "ds") and d & (c.rd | c.wr): n = max(n, 12 if big else 8)
        if c.kind == "valu" and p.srcc & c.wr: n = max(n, 7 if big else 3)
    if p.kind == "salu" and ("s", "m0") in p.wr and c.kind == "vmem" and c.lds: n = max(n, 1)
    if p.kind == "vmem" and p.data and ("x4" in p.op or "x3" in p.op) and p.data & c.wr: n = max(n, 2)
    return n

class Asm:
    def __init__(self):
        self.lines = []
    def __call__(self, s, *more):
        for x in (s,) + more:
            if isinstance(x, (list, tuple)):
                for y in x: self(y)
            elif x is not None:
                for ln in x.split("\n"):
                    ln = ln.strip()
                    if ln: self.lines.append(ln)
    def label(self, name): self.lines.append(name + ":")

def pad_hazards(lines, stats=None):
    out = []; hist = []
    for ln in lines:
        if ln.startswith(";"): out.append(ln); continue
        ins = Ins(ln)
        if ins.kind == "none": out.append(ln); continue
        dist = 0; short = 0
        for p in reversed(hist):
            if dist >= 12: break
            k = need(p, ins)
            if k > dist: short = max(short, k - dist)
            dist += p.states
        if short:
            nop = f"s_nop {short-1}"
            out.append(nop); hist.append(Ins(nop))
            if stats is not None: stats.append((short, ln))
        out.append(ln); hist.append(ins)
        if len(hist) > 16: hist = hist[-16:]
    return out

def check_waits(lines, name=""):
    states = [([], [])]; stack = []; errs = []
    for n, ln in enumerate(lines):
        if ln.startswith("; @if"): stack.append([[(list(v), list(l)) for v, l in states], None]); continue
        if ln.startswith("; @else"): stack[-1][1] = states; states = stack[-1][0]; continue
        if ln.startswith("; @endif"):
            first, done = stack.pop()
            states = states + (done if done is not None else first)
            uniq = {(tuple(map(id, v)), tuple(map(id, l))): (v, l) for v, l in states}
            states = list(uniq.values()); continue
        if ln.startswith(";"): continue
        ins = Ins(ln)
        if ins.kind == "none": continue
        new = []
        for vm, lg in states:
            if ins.op == "s_waitcnt":
                m = re.search(r"vmcnt\((\d+)\)", ln)
                if m:
                    k = int(m.group(1)); assert k <= 63, ln
                    vm = vm[len(vm)-k:] if k and len(vm) > k else ([] if k == 0 else vm)
                m = re.search(r"lgkmcnt\((\d+)\)", ln)
                if m:
                    k = int(m.group(1)); assert k <= 15, ln
                    if k == 0: lg = []
                    else:
                        sm = [x for x in lg if x.kind == "smem"]; dd = [x for x in lg if x.kind != "smem"]
                        lg = sm + (dd[len(dd)-k:] if len(dd) > k else dd)
            else:
                touch = ins.rd | ins.wr
                for o in vm + lg:
                    hit = o.wr & touch
                    if hit and not (ins.kind == "vmem" and o.kind == "vmem" and ins.wr == o.wr and not (ins.rd & o.wr)):
                        errs.append(f"{name}:{n}: '{ln}' touches {sorted(hit)[:3]} of outstanding '{o.text}'")
                if ins.kind == "vmem": vm = (vm + [ins])[-63:]
                if ins.kind in ("ds", "smem"): lg = lg + [ins]
            new.append((vm, lg))
        uniq = {(tuple(map(id, v)), tuple(map(id, l))): (v, l) for v, l in new}
        states = list(uniq.values())
    return errs

def descriptor(name, vgpr, accum, sgpr=102):
    return f""".p2align 6
.amdhsa_kernel {name}
  .amdhsa_next_free_vgpr {vgpr}
  .amdhsa_next_free_sgpr {sgpr}
  .amdhsa_accum_offset {accum}
  .amdhsa_group_segment_fixed_size 0
  .amdhsa_kernarg_size 80
  .amdhsa_user_sgpr_count 2
  .amdhsa_user_sgpr_kernarg_segment_ptr 1
  .amdhsa_system_sgpr_workgroup_id_x 1
.end_amdhsa_kernel
"""
```

```python
from gen_common import *
from gen_common import _uid
import math

XCH = 147456
A1_LDS = XCH + 4*3072

DIAG = [0]
A1R = [8]
def a1_ids(a):
    R = A1R[0]; lg = R.bit_length() - 1; hl = 5 - lg
    a(f"s_lshr_b32 s20, s{S_X}, {lg-1}", f"s_lshl_b32 s20, s20, {lg}", f"s_lshr_b32 s21, s{S_I}, {hl}", "s_add_u32 s20, s20, s21")
    a(f"s_and_b32 s21, s{S_X}, {R//2 - 1}", f"s_lshl_b32 s21, s21, {hl}", f"s_and_b32 s22, s{S_I}, {(1 << hl) - 1}", "s_add_u32 s21, s21, s22")

def warm_items(sL, dst):
    R = A1R[0]; hl = 5 - (R.bit_length() - 1)
    nq = -(-(PQ_TASK << hl) // (128*1024)); npo = -(-(8*PO_TASK) // (128*1024))
    out = [f"s_mul_i32 s48, s{sL['LAYER']}, {OOB}", f"s_lshl_b32 s49, s{S_I}, 2", f"s_add_u32 s49, s49, s{S_WAVE}",
           f"s_mul_i32 s50, s49, {npo*1024}", "s_add_u32 s50, s50, s48", f"s_add_u32 s50, s50, {PO}",
           f"s_mul_i32 s49, s49, {nq*1024}", "s_add_u32 s48, s48, s49", f"s_and_b32 s49, s{S_X}, {R//2 - 1}",
           f"s_mul_i32 s49, s49, {PQ_TASK << hl}", "s_add_u32 s48, s48, s49", f"s_add_u32 s48, s48, {PQ}"]
    for reg, n in ((48, nq), (50, npo)):
        for q in range(n):
            if q and q % 4 == 0: out.append(f"s_add_u32 s{reg}, s{reg}, 4096")
            out.append(("vm", f"buffer_load_dwordx4 v[{dst}:{dst+3}], v{V_L16}, {WS}, s{reg} offen offset:{(q % 4)*1024}", ("warm", 0)))
    return out

def a1_weights(a, split):
    a1_ids(a)
    a(f"s_mul_i32 s22, s21, {PQ_TASK}", f"s_add_u32 s22, s22, {PQ}", f"s_mul_i32 s23, s{S_WAVE}, {split*1024}", "s_add_u32 s22, s22, s23")
    a(dma_items(split, 22, 23))
    rest = 144 - 4*split
    if rest:
        _uid[0] += 1
        a(f"s_cmp_eq_u32 s{S_WAVE}, 3", f"s_cbranch_scc0 L_w{_uid[0]}", f"s_add_u32 s22, s22, {split*1024}", f"s_add_u32 s23, s23, {split*1024}")
        a(dma_items(rest, 22, 23)); a.label(f"L_w{_uid[0]}")

ACC, RING, NW = 32, 216, 8
HA = ACC + 64
acc = lambda t, j: ACC + (2*t + j)*4

def gen_a1_front(a, sL, pr, layer, valq=(), stq=(), cp="sc1"):
    vm = VM(a); valq = list(valq); stq = list(stq)
    VB = [V_L16, 4, 5]; VH = [[6, 7, 8], [9, 10, 11]]
    VHL = 19
    a1_ids(a)
    a("s_lshl_b32 s24, s20, 3", "s_sub_u32 s25, s24, 1", "s_max_i32 s35, s25, 0", f"s_mul_i32 s25, s35, {TILE}",
      f"s_lshl_b32 s26, s{S_WAVE}, 1", "s_add_u32 s36, s24, s26", f"s_mul_i32 s24, s36, {TILE}")
    a(f"s_add_u32 s26, s24, s{sL['XN']}", f"s_add_u32 s27, s26, {TILE}", f"s_add_u32 s28, s25, s{sL['XN']}")
    a(f"v_add_u32 v4, 0x10000, v{V_L16}", f"v_add_u32 v5, 0x20000, v{V_L16}")
    a(f"s_cmp_eq_u32 s{S_WAVE}, 3", f"s_cselect_b32 s29, 0, s{S_WAVE}", "s_cselect_b32 s31, 16, 9", "s_lshl_b32 s30, s29, 10")
    a(f"v_and_b32 v12, 15, v{V_LANE}", f"v_mov_b32 v13, {OOB}", "v_cmp_le_u32 vcc, s31, v12", f"v_cndmask_b32 v{VHL}, v13, v{V_L16}, vcc")
    for h, t0 in enumerate((2, 5)):
        a(f"s_add_u32 s31, s30, {t0*1024}")
        for n in range(3): a(f"v_add_u32 v{VH[h][n]}, s31, v{VB[n]}")
    if layer == 0:
        a("s_lshr_b32 s22, s21, 1", "s_lshl_b32 s22, s22, 7", "s_and_b32 s23, s21, 1", "s_mul_i32 s23, s23, 48", "s_add_u32 s22, s22, s23",
          f"s_lshl_b32 s22, s22, {FS}", f"s_add_u32 s22, s22, {FLAGS + FL_Q}", f"v_min_u32 v16, 47, v{V_LANE}", f"v_lshlrev_b32 v16, {FS}, v16")
        await_flags(a, 16, 22)
        pr.stamp("qgo")
        a1_weights(a, 36)
        pr.stamp("wiss")
    a(f"v_mul_u32_u24 v14, 43, v{V_LANE}", "v_lshrrev_b32 v14, 8, v14", "v_mul_u32_u24 v15, 6, v14", f"v_sub_u32 v15, v{V_LANE}, v15",
      "v_cmp_eq_u32 vcc, 1, v14", "v_mov_b32 v16, s36", "v_addc_co_u32 v16, vcc, 0, v16, vcc", "v_cmp_eq_u32 vcc, 2, v14", "v_mov_b32 v17, s35",
      "v_cndmask_b32 v16, v16, v17, vcc", "v_lshlrev_b32 v16, 3, v16", f"v_add_lshl_u32 v16, v16, v15, {FS}", f"s_add_u32 s22, s{sL['FL']}, {FL_R}")
    if layer == 0:
        a(f"s_and_b32 s23, s{S_I}, 7", "s_lshl_b32 s23, s23, 7", "s_add_u32 s23, s23, 64", f"v_min_u32 v17, 61, v{V_LANE}", "v_add_u32 v17, s23, v17",
          f"v_lshlrev_b32 v17, {FS}, v17", f"v_add_u32 v17, {FL_Q - FL_R}, v17", f"v_cmp_lt_u32 vcc, 31, v{V_LANE}", "v_cndmask_b32 v16, v16, v17, vcc")
    await_flags(a, 16, 22)
    pr.stamp("a1go")
    xt = {}
    def xload(k):
        out = ["s_add_u32 s26, s26, 4096", "s_add_u32 s27, s27, 4096", "s_add_u32 s28, s28, 4096"] if k % 4 == 0 and k else []
        return out + [(k, f"buffer_load_dwordx4 a[{72*j+4*k}:{72*j+4*k+3}], v{V_L16 if j < 2 else VHL}, {WS}, s{26+j} offen offset:{(k % 4)*1024} {cp}") for j in range(3)]
    def emit(x):
        if isinstance(x, tuple): xt[x[0]] = vm.op(x[1])
        else: a(x)
    BURST = 8
    for k in range(BURST):
        for x in xload(k): emit(x)
    memq = [x for k in range(BURST, 18) for x in xload(k)]
    a(f"v_lshrrev_b32 v13, 4, v{V_LANE}", "v_lshlrev_b32 v14, 2, v13", "v_sub_u32 v14, v12, v14")
    for r in range(4):
        a(f"v_subrev_u32 v15, {r}, v14", f"v_cmp_gt_u32 s[{52+2*r}:{53+2*r}], 8, v15", f"v_cmp_gt_i32 s[{44+2*r}:{45+2*r}], -8, v15")
    a("s_and_b32 s31, s20, 7", f"s_or_b32 s31, s31, s{S_WAVE}", "s_cmp_eq_u32 s31, 0")
    for r in range(4): a(f"s_cselect_b64 s[{60+2*r}:{61+2*r}], 0, s[{44+2*r}:{45+2*r}]")
    pr.stamp("a1iss")
    if layer == 0: a("s_barrier")
    pr.stamp("a1bar")
    seq = []
    for k0 in range(0, 18, 2):
        for t in list(range(8)) + ["h0", "h1"]:
            seq += [(k0, t), (k0+1, t)]
    def rd(n):
        k, t = seq[n]; w = RING + 4*(n % NW)
        if isinstance(t, str):
            off = k*8192; base = VH[int(t[1])]
        else:
            off = (k*8 + t)*1024; base = VB
        return f"ds_read_b128 a[{w}:{w+3}], v{base[off // 65536]} offset:{off % 65536}"
    PF_ = 6
    for n in range(PF_): a(rd(n))
    issued = PF_; nm = 0
    for n in range(0, len(seq), 2):
        k0, t = seq[n]
        if t == 0: vm.wait(xt[k0+1])
        if t == 0: pr.stamp(f"a1k{k0}")
        a(f"s_waitcnt lgkmcnt({issued - n - 2})")
        jl = [2] if isinstance(t, str) else [0, 1]
        swapped = t == "h1" or (not isinstance(t, str) and t >= 5)
        for j in jl:
            d = HA + 4*int(t[1]) if isinstance(t, str) else acc(t, j)
            for c in range(2):
                w = f"a[{RING + 4*((n+c) % NW)}:{RING + 4*((n+c) % NW) + 3}]"
                x = f"a[{72*j + 4*(k0+c)}:{72*j + 4*(k0+c) + 3}]"
                A, B = (x, w) if swapped else (w, x)
                a(f"v_mfma_f32_16x16x32_bf16 v[{d}:{d+3}], {A}, {B}, {'0' if k0+c == 0 else f'v[{d}:{d+3}]'}")
                nm += 1; room = 2 - (1 if j == jl[-1] and c == 1 else 0)
                if (len(jl) == 1 or c == 1) and issued < len(seq):
                    a(rd(issued)); issued += 1; room -= 1
                if memq and nm % 4 == 1:
                    while not isinstance(memq[0], tuple): emit(memq.pop(0))
                    emit(memq.pop(0)); room = 0
                elif not memq and stq and nm % 4 == 1 and len(valq) <= 20*(len(stq) - 1):
                    vm.op(stq.pop(0)); room = 1
                while valq and room > 0: a(valq.pop(0)); room -= 1
    assert not valq, len(valq)
    for x in stq: vm.op(x)
    pr.stamp('a1gemm')

def gen_a1_tail(a, sL, pr, cp="sc1"):
    vm = VM(a); outer_a = a
    KP, K0, K1 = 104, 110, 116
    VV = [122, 128, 134]
    QO = [[140, 144], [148, 152]]
    HC, XR_ = 156, 160
    def cvt(dst, src): outer_a(f"v_cvt_pk_bf16_f32 v{dst}, v{src}, v{src+1}", f"v_cvt_pk_bf16_f32 v{dst+1}, v{src+2}, v{src+3}")
    KT = [K0, K1]
    cvt(K1, acc(2, 1)); cvt(K1+4, acc(3, 1)); cvt(XR_, acc(4, 1))
    for n in range(3): cvt(VV[n]+4, acc(5+n, 1))
    cvt(HC, HA); cvt(HC+2, HA+4)
    a(f"v_lshlrev_b32 v14, 3, v{V_LANE}", f"s_mul_i32 s31, s{S_WAVE}, 3072", f"s_add_u32 s32, s31, {XCH}", "v_add_u32 v15, s32, v14")
    a("s_lshl_b32 s33, s29, 9", f"s_add_u32 s33, s33, {XCH}", "v_add_u32 v16, s33, v14")
    a(f"s_cmp_eq_u32 s{S_WAVE}, 3", "s_cbranch_scc1 L_a1_noxch")
    a(f"ds_write_b64 v16, v[{HC}:{HC+1}]", f"ds_write_b64 v16, v[{HC+2}:{HC+3}] offset:1536")
    for n, r in enumerate([K1, K1+4, XR_, VV[0]+4, VV[1]+4, VV[2]+4]):
        a(f"ds_write_b64 v15, v[{r}:{r+1}] offset:{3072 + 512*n}")
    a.label("L_a1_noxch")
    cvt(K0, acc(2, 0)); cvt(K0+4, acc(3, 0))
    for n in range(3): cvt(VV[n]+2, acc(5+n, 0))
    for j in range(2):
        q0, q1 = QO[j]; x = acc(4, j)
        cvt(q0, acc(0, j)); cvt(q1+2, acc(1, j))
        a(f"v_cvt_pk_bf16_f32 v{q0+2}, v{x}, v{x+1}", f"v_cvt_pk_bf16_f32 v{q1+1}, v{x+2}, v{x+3}",
          f"v_mov_b32 v{q0+3}, 0", f"v_mov_b32 v{q1}, 0", f"v_mov_b32 v{KT[j]+2}, 0", f"v_mov_b32 v{KT[j]+3}, 0")
        a(f"v_permlane16_swap_b32 v{q0+2}, v{KT[j]+2}", f"v_permlane16_swap_b32 v{q1+1}, v{KT[j]+3}")
    a(f"v_add_u32 v17, 16, v12", "v_add_u32 v18, 32, v12", f"v_cmp_gt_u32 vcc, 16, v{V_LANE}", "v_cndmask_b32 v17, v18, v17, vcc",
      "v_lshlrev_b32 v17, 3, v17", "v_add_u32 v17, s32, v17")
    a("s_waitcnt lgkmcnt(0)", "s_barrier")
    pr.stamp("a1xch")
    a(f"ds_read_b64 v[{KP}:{KP+1}], v15", f"ds_read_b64 v[{KP+4}:{KP+5}], v15 offset:512", f"ds_read_b64 v[{KP+2}:{KP+3}], v17 offset:1024")
    for n in range(3): a(f"ds_read_b64 v[{VV[n]}:{VV[n]+1}], v15 offset:{1536 + 512*n}")
    units = [(1, 0), (1, 1), (0, 0), (0, 1)]
    SS = lambda u: 32 + 8*u
    PP = lambda u: 64 + 4*u
    OO = lambda u: 80 + 8*u if u < 3 else 164
    for u, (j, h) in enumerate(units):
        if u == 2: a("s_waitcnt lgkmcnt(0)")
        prev = (K0 if j == 1 else KP) + 2*h; cur = KT[j] + 2*h; q = QO[j][h]
        a(f"v_mfma_f32_16x16x32_bf16 v[{SS(u)}:{SS(u)+3}], v[{prev}:{prev+3}], v[{q}:{q+3}], 0",
          f"v_mfma_f32_16x16x32_bf16 v[{SS(u)+4}:{SS(u)+7}], v[{cur}:{cur+3}], v[{q}:{q+3}], 0")
    a(f"v_mov_b32 v18, {f32(-3.0e38)}", f"s_mov_b32 s34, {f32(math.log2(math.e) / math.sqrt(DH))}")
    MX, TM, SM = 20, 24, 28
    for r in range(8):
        for u, (j, h) in enumerate(units):
            m = (52 + 2*(r-4)) if r >= 4 else ((44 if j == 1 else 60) + 2*r)
            a(f"v_cndmask_b32 v{SS(u)+r}, v18, v{SS(u)+r}, s[{m}:{m+1}]")
    for u in range(4): a(f"v_max3_f32 v{MX+u}, v{SS(u)}, v{SS(u)+1}, v{SS(u)+2}")
    for u in range(4): a(f"v_max3_f32 v{MX+u}, v{MX+u}, v{SS(u)+3}, v{SS(u)+4}")
    for u in range(4): a(f"v_max3_f32 v{MX+u}, v{MX+u}, v{SS(u)+5}, v{SS(u)+6}")
    for u in range(4): a(f"v_max_f32 v{MX+u}, v{MX+u}, v{SS(u)+7}")
    xreduce(a, [MX+u for u in range(4)], TM, op="v_max_f32")
    for u in range(4): a(f"v_mul_f32 v{MX+u}, s34, v{MX+u}")
    for r in range(8):
        for u in range(4): a(f"v_fma_f32 v{SS(u)+r}, v{SS(u)+r}, s34, -v{MX+u}")
        for u in range(4): a(f"v_exp_f32 v{SS(u)+r}, v{SS(u)+r}")
    for u in range(4): a(f"v_add_f32 v{SM+u}, v{SS(u)}, v{SS(u)+1}")
    for r in range(2, 8):
        for u in range(4): a(f"v_add_f32 v{SM+u}, v{SM+u}, v{SS(u)+r}")
    xreduce(a, [SM+u for u in range(4)], TM)
    for u in range(4): a(f"v_rcp_f32 v{SM+u}, v{SM+u}")
    for r in range(8):
        for u in range(4): a(f"v_mul_f32 v{SS(u)+r}, v{SS(u)+r}, v{SM+u}")
    for u in range(4):
        for d in range(4): a(f"v_cvt_pk_bf16_f32 v{PP(u)+d}, v{SS(u)+2*d}, v{SS(u)+2*d+1}")
    for u, (j, h) in enumerate(units):
        va = VV[h] + 2*j; vx = VV[2] + 2*j
        a(f"v_mfma_f32_16x16x32_bf16 v[{OO(u)}:{OO(u)+3}], v[{va}:{va+3}], v[{PP(u)}:{PP(u)+3}], 0",
          f"v_mfma_f32_16x16x32_bf16 v[{OO(u)+4}:{OO(u)+7}], v[{vx}:{vx+3}], v[{PP(u)}:{PP(u)+3}], 0")
    a("v_lshlrev_b32 v14, 3, v12", f"v_mov_b32 v15, {OOB}", f"v_cmp_gt_u32 vcc, 16, v{V_LANE}", "v_cndmask_b32 v14, v15, v14, vcc")
    a(f"s_add_u32 s26, s24, s{sL['OB']}", "s_lshl_b32 s27, s21, 10", "s_add_u32 s27, s27, s26",
      "s_lshl_b32 s28, s21, 7", f"s_add_u32 s28, s28, {64*256}", "s_add_u32 s28, s28, s26", f"s_add_u32 s30, s27, {TILE}", f"s_add_u32 s31, s28, {TILE}")
    for j in (1, 0):
        u0 = units.index((j, 0)); u1 = units.index((j, 1)); o = 172 + 8*j
        cvt(o, OO(u0)); cvt(o+2, OO(u1))
        a(f"v_cvt_pk_bf16_f32 v{o+4}, v{OO(u0)+4}, v{OO(u0)+5}", f"v_cvt_pk_bf16_f32 v{o+5}, v{OO(u1)+6}, v{OO(u1)+7}")
        vm.op(f"buffer_store_dwordx4 v[{o}:{o+3}], v{V_L16}, {WS}, s{30 if j else 27} offen {cp}")
        vm.op(f"buffer_store_dwordx2 v[{o+4}:{o+5}], v14, {WS}, s{31 if j else 28} offen {cp}")
    a("s_lshl_b32 s26, s20, 2", f"s_add_u32 s26, s26, s{S_WAVE}", "s_lshl_b32 s26, s26, 4", "s_add_u32 s26, s26, s21", f"s_lshl_b32 s26, s26, {FS}",
      f"s_add_u32 s26, s26, s{sL['FL']}", f"s_add_u32 s26, s26, {FL_O}")
    pr.stamp('a1att')
    a(f"s_and_b32 s37, s{S_I}, 7", f"s_mul_i32 s37, s37, {PO_TASK}", f"s_mul_i32 s38, s{S_WAVE}, {23*1024}", "s_add_u32 s37, s37, s38", f"s_add_u32 s37, s37, {PO}")
    po = dma_items(23, 37, 38)
    publish(a, 26, po[:12])
    a(po[12:])
    pr.stamp("a1end")
```

```python
from gen_common import *

def gen_a2(a, sL, pr, cp="sc1"):
    vm = VM(a)
    ACC, RES, RING, NW = 32, 56, 216, 8
    VU8, VLB = 4, 5
    a(f"s_lshr_b32 s20, s{S_I}, 3", f"s_lshl_b32 s21, s{S_X}, 2", "s_add_u32 s20, s20, s21", "s_lshl_b32 s20, s20, 2",
      f"s_add_u32 s20, s20, s{S_WAVE}")
    a(f"s_and_b32 s21, s{S_I}, 7")
    a(f"s_mul_i32 s24, s20, {TILE}", f"s_add_u32 s25, s24, s{sL['OB']}")
    a(f"s_mul_i32 s26, s21, {9*256}", "s_add_u32 s26, s26, s24", f"s_add_u32 s27, s26, s{sL['XR']}")
    a(f"v_and_b32 v6, 15, v{V_LANE}", f"v_lshrrev_b32 v7, 4, v{V_LANE}", "v_lshlrev_b32 v8, 4, v6", "v_lshl_add_u32 v8, v7, 3, v8",
      "v_add_u32 v8, 2048, v8", f"v_mov_b32 v9, {OOB}", f"v_cmp_gt_u32 vcc, 32, v{V_LANE}", f"v_cndmask_b32 v{VU8}, v9, v8, vcc")
    a(f"v_add_u32 v{VLB}, 0x10000, v{V_L16}")
    a("s_lshr_b32 s22, s20, 1", f"s_lshl_b32 s22, s22, {4+FS}", f"s_add_u32 s22, s22, s{sL['FL']}", f"s_add_u32 s22, s22, {FL_O}", f"v_lshlrev_b32 v10, {FS}, v6")
    order = [(k0 + c, t) for k0 in range(0, 18, 2) for t in range(5) for c in range(2)]
    def rd(n):
        k, t = order[n]; off = (k*5 + t)*1024; w = RING + 4*(n % NW)
        return f"ds_read_b128 a[{w}:{w+3}], v{V_L16 if off < 65536 else VLB} offset:{off % 65536}"
    PF_ = 6
    div(a, 30, 2, 9, 256)
    a("s_mul_i32 s31, s30, 9", "s_sub_u32 s31, s2, s31", "s_lshr_b32 s32, s30, 3", "s_and_b32 s30, s30, 7", "s_mul_i32 s32, s32, 9", "s_add_u32 s31, s31, s32",
      "s_lshl_b32 s30, s30, 5", "s_add_u32 s30, s30, s31", f"s_lshl_b32 s39, s30, {FS}", f"s_add_u32 s39, s39, {FLAGS + FL_K}",
      f"s_or_b32 s30, s{S_WAVE}, s{sL['LAYER']}", "s_cmp_lg_u32 s30, 0", f"s_cselect_b32 s39, {OOB}, s39", "s_cmp_ge_u32 s2, 216", f"s_cselect_b32 s39, {OOB}, s39")
    a("v_lshlrev_b32 v11, 3, v6", "v_lshl_add_u32 v11, v7, 8, v11")
    await_flags(a, 10, 22)
    pr.stamp("a2go")
    xt = {}
    def xload(k):
        if k % 4 == 0 and k: a("s_add_u32 s25, s25, 4096")
        if k < 16: xt[k] = vm.op(f"buffer_load_dwordx4 a[{4*k}:{4*k+3}], v{V_L16}, {WS}, s25 offen offset:{(k % 4)*1024} {cp}")
        else:
            for h in range(2):
                xt[k] = vm.op(f"buffer_load_dwordx2 a[{4*k+2*h}:{4*k+2*h+1}], v11, {WS}, s25 offen offset:{(k % 4)*1024 + 128*h} {cp}")
    BURST = 12
    for k in range(BURST): xload(k)
    pr.stamp("a2iss")
    a("s_barrier")
    for n in range(PF_): a(rd(n))
    flag_store(a, 39, vm=vm)
    nxt = BURST
    res = [f"buffer_load_dwordx4 v[{RES}:{RES+3}], v{V_L16}, {WS}, s27 offen {cp}",
           f"buffer_load_dwordx4 v[{RES+4}:{RES+7}], v{V_L16}, {WS}, s27 offen offset:1024 {cp}",
           f"buffer_load_dwordx2 v[{RES+8}:{RES+9}], v{VU8}, {WS}, s27 offen {cp}"]
    for n, (k, t) in enumerate(order):
        if n % 10 == 0: vm.wait(xt[k+1]); pr.stamp(f'a2k{k}')
        issued = min(len(order), n + PF_)
        if n % 2 == 0: a(f"s_waitcnt lgkmcnt({max(0, issued - n - 2)})")
        w = RING + 4*(n % NW); d = ACC + 4*t
        a(f"v_mfma_f32_16x16x32_bf16 v[{d}:{d+3}], a[{w}:{w+3}], a[{4*k}:{4*k+3}], {'0' if k == 0 else f'v[{d}:{d+3}]'}")
        if n + PF_ < len(order): a(rd(n + PF_))
        if nxt < 18 and n % 4 == 1: xload(nxt); nxt += 1
        elif res and n % 4 == 1: rt = [vm.op(res.pop(0))]
    pr.stamp('a2gemm')
    vm.wait(rt[-1])
    for t in range(5):
        for h in range(2):
            r = RES + 2*t + h; d = ACC + 4*t + 2*h; u = 68 + 2*((2*t+h) % 4)
            a(f"v_lshlrev_b32 v{u}, 16, v{r}", f"v_and_b32 v{u+1}, 0xffff0000, v{r}",
              f"v_add_f32 v{d}, v{d}, v{u}", f"v_add_f32 v{d+1}, v{d+1}, v{u+1}")
    OUT = 80
    for t in range(5):
        for h in range(2): a(f"v_cvt_pk_bf16_f32 v{OUT+2*t+h}, v{ACC+4*t+2*h}, v{ACC+4*t+2*h+1}")
    a(f"s_add_u32 s27, s26, s{sL['X1']}")
    vm.op(f"buffer_store_dwordx4 v[{OUT}:{OUT+3}], v{V_L16}, {WS}, s27 offen {cp}")
    vm.op(f"buffer_store_dwordx4 v[{OUT+4}:{OUT+7}], v{V_L16}, {WS}, s27 offen offset:1024 {cp}")
    vm.op(f"buffer_store_dwordx2 v[{OUT+8}:{OUT+9}], v{VU8}, {WS}, s27 offen {cp}")
    a(f"v_add_f32 v10, v{ACC}, v{ACC+1}", f"v_mul_f32 v11, v{ACC}, v{ACC}", f"v_mul_f32 v13, v{ACC+1}, v{ACC+1}", "v_mov_b32 v12, 0")
    for e in range(2, 20, 2):
        a(f"v_add_f32 v10, v10, v{ACC+e}", f"v_add_f32 v12, v12, v{ACC+e+1}",
          f"v_fmac_f32 v11, v{ACC+e}, v{ACC+e}", f"v_fmac_f32 v13, v{ACC+e+1}, v{ACC+e+1}")
    a("v_add_f32 v10, v10, v12", "v_add_f32 v11, v11, v13")
    xreduce(a, [10, 11], 12)
    a("v_lshlrev_b32 v8, 3, v6", f"v_cmp_gt_u32 vcc, 16, v{V_LANE}", "v_cndmask_b32 v8, v9, v8, vcc")
    a("s_lshl_b32 s27, s20, 10", "s_lshl_b32 s28, s21, 7", "s_add_u32 s27, s27, s28", f"s_add_u32 s27, s27, s{sL['ST']}")
    vm.op(f"buffer_store_dwordx2 v[10:11], v8, {WS}, s27 offen {cp}")
    a("s_lshr_b32 s27, s20, 2", "s_lshl_b32 s27, s27, 3", "s_add_u32 s27, s27, s21", "s_lshl_b32 s27, s27, 2", f"s_add_u32 s27, s27, s{S_WAVE}",
      f"s_lshl_b32 s27, s27, {FS}", f"s_add_u32 s27, s27, s{sL['FL']}", f"s_add_u32 s27, s27, {FL_X}")
    pr.stamp('a2st')
    publish(a, 27)
    a("s_barrier")
    pr.stamp("a2end")
```

```python
from asmlib import *
from layout import *

KA = dict(x=0, wqkv=8, wo=16, wg=32, wu=40, wd=48, out=56, dbg=64, ws=72)
WS = "s[8:11]"
S_WAVE = 4
S_X, S_I = 5, 6
V_LANE, V_L16 = 1, 2
OOB = 0x7ff00000

class VM:
    def __init__(self, a): self.a = a; self.n = 0
    def op(self, text):
        self.a(text); self.n += 1
        return self.n
    def count_after(self, tag): return self.n - tag
    def wait(self, tag):
        self.a(f"s_waitcnt vmcnt({min(63, self.n - tag)})")

def srd(a, dst, src, nbytes):
    a(f"s_mov_b32 s{dst}, s{src}", f"s_and_b32 s{dst+1}, s{src+1}, 0xffff",
      f"s_mov_b32 s{dst+2}, {nbytes}", f"s_mov_b32 s{dst+3}, 0x20000")

def entry(a, name, nwg, end):
    a(".p2align 8"); a(f".globl {name}"); a(f".type {name},@function"); a.label(name)
    a(f"s_cmp_ge_u32 s2, {nwg}", f"s_cbranch_scc1 {end}")

def common(a):
    a(f"s_load_dwordx2 s[12:13], s[0:1], {KA['ws']}")
    a(f"v_and_b32 v{V_LANE}, 63, v0", "v_lshrrev_b32 v3, 6, v0", f"v_lshlrev_b32 v{V_L16}, 4, v{V_LANE}")
    a(f"v_readfirstlane_b32 s{S_WAVE}, v3")
    a(f"s_and_b32 s{S_X}, s2, 7", f"s_lshr_b32 s{S_I}, s2, 3")
    a("s_waitcnt lgkmcnt(0)")
    srd(a, 8, 12, WS_BYTES)

def xreduce(a, regs, tmp, steps=("16", "32"), op="v_add_f32"):
    for st in steps:
        if st == "8":
            for r in regs: a(f"{op}_dpp v{r}, v{r}, v{r} row_ror:8 row_mask:0xf bank_mask:0xf")
            continue
        for n, r in enumerate(regs): a(f"v_mov_b32 v{tmp+n}, v{r}")
        for n, r in enumerate(regs): a(f"v_permlane{st}_swap_b32 v{r}, v{tmp+n}")
        for n, r in enumerate(regs): a(f"{op} v{r}, v{r}, v{tmp+n}")

_uid = [0]
NONCE = 68
def flag_store(a, s_addr, setup=True, vm=None):
    if setup: flag_regs(a)
    (vm.op if vm else a)(f"buffer_store_dwordx2 v[14:15], v13, {WS}, s{s_addr} offen sc1")

def flag_regs(a):
    a(f"v_mov_b32 v13, {OOB}", f"v_cmp_eq_u32 vcc, 0, v{V_LANE}", f"v_mov_b32 v14, s{NONCE}", f"v_mov_b32 v15, s{NONCE+1}", "v_cndmask_b32 v13, v13, 0, vcc")

def publish(a, s_addr, between=()):
    flag_regs(a)
    a(list(between))
    a(f"s_waitcnt vmcnt({sum(x.startswith('buffer_') for x in between)})")
    for s in (s_addr if isinstance(s_addr, (list, tuple)) else [s_addr]): flag_store(a, s, False)

POLL_CFG = dict(sleep=0)
def await_flags(a, v_off, s_base):
    _uid[0] += 1; u = _uid[0]; sl = POLL_CFG["sleep"]
    a("s_mov_b32 s52, 0")
    a.label(f"L_poll{u}")
    a(f"buffer_load_dwordx2 v[14:15], v{v_off}, {WS}, s{s_base} offen sc1", "s_add_u32 s52, s52, 1", "s_waitcnt vmcnt(0)",
      f"v_cmp_ne_u64 vcc, s[{NONCE}:{NONCE+1}], v[14:15]", "s_cmp_ge_u32 s52, 0x100000", f"s_cbranch_scc1 L_got{u}", "s_and_b64 exec, exec, vcc")
    if sl: a(f"s_cbranch_execz L_got{u}", f"s_sleep {sl}", f"s_branch L_poll{u}")
    else: a(f"s_cbranch_execnz L_poll{u}")
    a.label(f"L_got{u}")
    a("s_mov_b64 exec, -1")

def div(a, dst, src, d, maxv):
    sh = 16; m = (1 << sh) // d + 1
    assert all((v * m) >> sh == v // d for v in range(maxv)), (d, maxv)
    a(f"s_mul_i32 s{dst}, s{src}, {m}", f"s_lshr_b32 s{dst}, s{dst}, {sh}")

def dma_items(nfrag, s_src, s_lds, s_tmp=40, pol="sc1"):
    out = []
    for q0 in range(0, nfrag, 4):
        out += [f"s_add_u32 m0, s{s_lds}, {q0*1024}", f"s_add_u32 s{s_tmp}, s{s_src}, {q0*1024}"]
        out += [f"buffer_load_dwordx4 v{V_L16}, {WS}, s{s_tmp} offen offset:{q*1024} {pol} lds" for q in range(min(4, nfrag - q0))]
    return out

def weave(a, main, side, start=0, every=1):
    side = list(side); n = 0
    for x in main:
        a(x); n += 1
        if side and n >= start and (n - start) % every == 0 and not x.startswith(("s_cmp", "v_cmp", "s_cbranch")) and not x.endswith(":"):
            while side and side[0].startswith("s_"): a(side.pop(0))
            if side: a(side.pop(0))
    for x in side: a(x)

def f32(x):
    import struct
    return "0x%08x" % struct.unpack("<I", struct.pack("<f", x))[0]

class Prof:
    regs = list(range(78, 100, 2)) + list(range(54, 68, 2)) + [100]
    sets = {1: "a1go a1k2 a1gemm a1end a2go a2gemm a2end fgo s36 s162 fst fend rgo rsum rend".split(),
            6: "piss px pst pend pperm qgo wiss a1go a1gemm a1att a1end a2go a2end fgo s36 rend".split(),
            7: "p1 p2 pep pxr pga piss px pst pend rend".split(),
            8: "p1 p2 piss px pst pend pperm qgo rend".split(),
            2: "fgo fiss fbar s0 s2 s4 s8 s12 s18 s36 s141 s144 s150 s156 s162 rend".split(),
            3: "a1go a1iss a1bar a1k2 a1k8 a1gemm a1xch a1att a1end a2go a2iss a2k2 a2gemm a2st a2end rend".split(),
            5: "s225 fst fend rpre rgo r1 r4 rsum rxr rbar rst rw3 rw2 rw1 rw0 rend".split(),
            4: "s18 s36 s54 s72 s90 s108 s126 s144 s162 s171 s180 s189 s198 s207 s223 fst".split()}
    def __init__(self, a, on): self.a = a; self.on = on; self.n = 0; self.names = []
    def stamp(self, name, cyc=False):
        if not self.on or (name not in self.sets[self.on] and name not in ("c0", "c1", "start")): return
        assert self.n < len(self.regs)
        r = self.regs[self.n]; self.n += 1; self.names.append(name)
        if self.on == 4: cyc = True
        self.a(f"s_mem{'' if cyc else 'real'}time s[{r}:{r+1}]")
    def to_debug(self, wg, first, idx):
        a = self.a; _uid[0] += 1; u = _uid[0]
        a("s_waitcnt lgkmcnt(0)", f"s_cmp_eq_u32 s2, {wg}", f"s_cbranch_scc0 L_nd{u}", f"s_cmp_eq_u32 s{S_WAVE}, 0", f"s_cbranch_scc0 L_nd{u}",
          f"s_load_dwordx2 s[12:13], s[0:1], {KA['dbg']}", "v_mov_b32 v250, 0", "s_waitcnt lgkmcnt(0)")
        srd(a, 44, 12, 256)
        for n, i in enumerate(idx): a(f"s_sub_u32 s40, s{self.regs[i]}, s3", f"v_writelane_b32 v250, s40, {n}")
        a(f"v_lshlrev_b32 v251, 2, v{V_LANE}", f"v_mov_b32 v252, {OOB}", f"v_cmp_gt_u32 vcc, {len(idx)}, v{V_LANE}", "v_cndmask_b32 v251, v252, v251, vcc",
          f"buffer_store_dword v250, v251, s[44:47], 0 offen offset:{4*first}")
        a.label(f"L_nd{u}")
    def flush(self, s_slot):
        if not self.on: return
        a = self.a
        a("s_waitcnt lgkmcnt(0)", "v_mov_b32 v250, 0")
        for i in range(self.n): a(f"v_writelane_b32 v250, s{self.regs[i]}, {i}")
        a(f"s_lshl_b32 s100, s{s_slot}, 18", "s_lshl_b32 s101, s2, 10", "s_add_u32 s100, s100, s101", f"s_lshl_b32 s101, s{S_WAVE}, 8",
          "s_add_u32 s100, s100, s101", f"s_add_u32 s100, s100, {PROF}", f"v_lshlrev_b32 v251, 2, v{V_LANE}",
          f"buffer_store_dword v250, v251, {WS}, s100 offen")
```

```python
from gen_common import *
from gen_a1 import warm_items
import math

STAGE, NS, PER = 24, 6, 6
NPRE = 4
F_LDS = STAGE * NS * 1024
NSTAGE = (486 + STAGE - 1) // STAGE
MF = "v_mfma_f32_16x16x32_bf16"

def cost(x):
    if callable(x): return 1
    if isinstance(x, tuple): return 2 if " 0 offen" in x[1] or "store" in x[1] else 3
    return 2 if x.split()[0] in TRANS else 1

_ins = {}
def ins_of(x):
    t = x[1] if isinstance(x, tuple) else x
    if t not in _ins: _ins[t] = Ins(t)
    return _ins[t]

def pick(q, fits, window=12):
    rd = set(); wr = set()
    for i, x in enumerate(q[:window]):
        I = ins_of(x)
        if fits(x) and not (I.rd & wr or I.wr & wr or I.wr & rd): return i
        rd |= I.rd; wr |= I.wr
    return None

def f_ids(a, opts):
    if opts.get("mapping", 1) == 0:
        a(f"s_and_b32 s40, s{S_X}, 1", "s_lshl_b32 s40, s40, 2", f"s_lshr_b32 s41, s{S_I}, 3", "s_add_u32 s40, s40, s41",
          f"s_lshr_b32 s41, s{S_X}, 1", "s_lshl_b32 s41, s41, 3", f"s_and_b32 s42, s{S_I}, 7", "s_add_u32 s41, s41, s42")
    else:
        a(f"s_lshr_b32 s40, s{S_I}, 2", f"s_lshl_b32 s41, s{S_X}, 2", f"s_and_b32 s42, s{S_I}, 3", "s_add_u32 s41, s41, s42")
    a("s_lshr_b32 s42, s41, 2", "s_and_b32 s43, s41, 3")

def gen_f(a, sL, tail, pr, opts, cp="sc1"):
    vm = VM(a); tag = {}
    VJ = [V_L16, 4, 5, 6]; VB = [V_L16, 7, 8]
    VODD, VFS, VFL, VFV, VW, VQ = 9, 10, 11, 12, 3, 252
    VJH = [244, 245, 246, 247]
    XV, RING, NW = 16, 48, 8
    HOWN, TMP, HS, CON = 144, 208, 224, 232
    ACC = [80, 112, HOWN + 32]
    aset = lambda pos: ACC[[0, 1, 2, 0, 1, 0, 1, 0, 1][pos]]
    OUT = 112
    sX, sWd, sH, sM, sP, sF, sPJ = 20, 22, 24, 28, 31, 34, 36
    f_ids(a, opts)
    a(f"s_mul_i32 s{sWd}, s{S_WAVE}, {PER*1024}", f"s_mul_i32 s21, s41, {PF_TASK}", f"s_add_u32 s21, s21, s{sWd}", f"s_add_u32 s21, s21, {PF}",
      f"v_add_u32 v{VW}, s21, v{V_L16}")
    def dma(stage):
        out = []
        for q0 in (0, 4):
            out += [f"s_add_u32 m0, s{sWd}, {(stage % NS)*STAGE*1024 + q0*1024}"]
            if stage or q0: out += [f"v_add_u32 v{VW}, {4096 if q0 else STAGE*1024 - 4096}, v{VW}"]
            out += [("vm", f"buffer_load_dwordx4 v{VW}, {WS}, 0 offen offset:{q*1024} sc1 lds", ("w", stage)) for q in range(min(4, PER - q0))]
        return out
    def rd(n):
        off = (n % (STAGE*NS))*1024; w = RING + 4*(n % NW)
        return f"ds_read_b128 v[{w}:{w+3}], v{VB[off // 65536]} offset:{off % 65536}"
    def xreg(k, j): return f"a[{(4*k+j)*4}:{(4*k+j)*4+3}]" if k < 16 else f"v[{XV + (4*(k-16)+j)*4}:{XV + (4*(k-16)+j)*4+3}]"
    def xload(k):
        out = [f"s_add_u32 s48, s{sX}, {(k >> 2)*4096}"] if k % 4 == 0 else []
        return out + [("vm", f"buffer_load_dwordx4 {xreg(k, j)}, v{VJ[j]}, {WS}, s48 offen offset:{(k & 3)*1024} {cp}", ("x", k)) for j in range(4)]
    def emit(x):
        if callable(x): x()
        elif isinstance(x, tuple): tag[x[2]] = vm.op(x[1])
        else: a(x)
    a(f"s_cmp_eq_u32 s{sL['LAYER']}, 0", "s_cbranch_scc0 L_f_packed")
    a(f"s_lshl_b32 s47, s42, {5+FS}", f"s_add_u32 s47, s47, {FLAGS + FL_K}", f"v_min_u32 v16, 26, v{V_LANE}", f"v_lshlrev_b32 v16, {FS}, v16")
    await_flags(a, 16, 47)
    a.label("L_f_packed")
    for st in range(NPRE):
        for x in dma(st): emit(x)
    a("s_lshl_b32 s44, s40, 4", f"s_lshl_b32 s45, s{S_WAVE}, 2", "s_add_u32 s44, s44, s45")
    a(f"s_mul_i32 s46, s44, {TILE}", f"s_add_u32 s{sX}, s46, s{sL['X1']}")
    for j in range(1, 4): a(f"v_add_u32 v{VJ[j]}, {j*TILE}, v{V_L16}")
    a(f"v_lshlrev_b32 v{VJH[0]}, 3, v{V_LANE}")
    for j in range(1, 4): a(f"v_add_u32 v{VJH[j]}, {j*TILE}, v{VJH[0]}")
    a(f"v_and_b32 v13, 15, v{V_LANE}", f"v_lshrrev_b32 v14, 4, v{V_LANE}")
    a(f"v_add_u32 v{VB[1]}, 0x10000, v{V_L16}", f"v_add_u32 v{VB[2]}, 0x20000, v{V_L16}")
    a(f"v_and_b32 v{VODD}, 1, v14", f"v_mul_u32_u24 v{VODD}, {TILE}, v{VODD}", "v_lshrrev_b32 v15, 1, v14", "v_lshlrev_b32 v15, 8, v15",
      "v_lshl_add_u32 v15, v13, 4, v15", f"v_add_u32 v{VODD}, v{VODD}, v15")
    a(f"v_and_b32 v{VFL}, 3, v{V_LANE}", f"v_lshlrev_b32 v{VFL}, {FS}, v{VFL}", f"s_lshl_b32 s49, s43, {FS}", f"v_mov_b32 v{VFS}, {OOB}",
      "v_mov_b32 v15, s49", f"v_cmp_eq_u32 vcc, 0, v{V_LANE}", f"v_cndmask_b32 v{VFS}, v{VFS}, v15, vcc")
    a("s_lshl_b32 s49, s40, 3", "s_add_u32 s49, s49, s42")
    a("s_lshl_b32 s50, s49, 2", f"s_add_u32 s50, s50, s{S_WAVE}", f"s_lshl_b32 s50, s50, {2+FS}", f"s_add_u32 s{sF}, s50, s{sL['FL']}", f"s_add_u32 s{sF}, s{sF}, {FL_H}")
    a("s_lshl_b32 s49, s49, 4", "s_add_u32 s49, s49, s45", f"s_mul_i32 s49, s49, {TILE}", f"s_add_u32 s49, s49, s{sL['HB']}")
    for rel in range(4):
        a(f"s_add_u32 s50, s43, {rel}", "s_and_b32 s50, s50, 3", "s_mul_i32 s50, s50, 9", "s_add_u32 s50, s50, 1", "s_lshr_b32 s50, s50, 1",
          "s_lshl_b32 s50, s50, 10", f"s_add_u32 s{sH+rel}, s49, s50")
    a(f"s_add_u32 s{sM}, s49, {4*1024}", f"s_add_u32 s{sM+1}, s49, {13*1024}", "s_cmp_ge_u32 s43, 2", f"s_cselect_b32 s50, s{sM+1}, s{sM}",
      "s_and_b32 s51, s43, 1", "s_lshl_b32 s51, s51, 9", f"s_add_u32 s{sM+2}, s50, s51")
    a(f"s_mul_i32 s50, s42, {ACT}", "s_add_u32 s50, s50, s46", "s_mul_i32 s51, s43, 4608", "s_add_u32 s50, s50, s51",
      f"s_add_u32 s{sP}, s50, s{sL['PART']}", f"s_add_u32 s{sP+1}, s{sP}, 4096", f"s_add_u32 s{sP+2}, s{sP+1}, {2*TILE}")
    for j in range(4): a(f"s_add_u32 s{sPJ+j}, s{sP}, {j*TILE}")
    a(f"v_lshlrev_b32 v{VQ}, 4, v13", f"v_lshl_add_u32 v{VQ}, v14, 9, v{VQ}")
    a("s_lshl_b32 s35, s40, 2", f"s_add_u32 s35, s35, s{S_WAVE}", "s_lshl_b32 s35, s35, 5", "s_add_u32 s35, s35, s41", f"s_lshl_b32 s35, s35, {FS}",
      f"s_add_u32 s35, s35, s{sL['FL']}", f"s_add_u32 s35, s35, {FL_P}")
    a("v_lshlrev_b32 v17, 3, v13", "v_lshl_add_u32 v17, v14, 8, v17", "s_lshl_b32 s47, s44, 10", f"s_add_u32 s47, s47, s{sL['ST']}")
    a(f"s_lshl_b32 s49, s44, {3+FS}", f"s_add_u32 s49, s49, s{sL['FL']}", f"s_add_u32 s49, s49, {FL_X}", f"v_and_b32 v16, 31, v{V_LANE}", f"v_lshlrev_b32 v16, {FS}, v16")
    await_flags(a, 16, 49)
    pr.stamp("fgo")
    BURST = 5
    for k in range(BURST):
        for x in xload(k): emit(x)
        if k == 1:
            for j in range(4):
                for h in range(2):
                    r = HOWN + 4*j + 2*h
                    tag["st"] = vm.op(f"buffer_load_dwordx2 v[{r}:{r+1}], v17, {WS}, s47 offen offset:{j*1024 + h*128} {cp}")
    pr.stamp("fiss")
    a("s_barrier")
    for n in range(6): a(rd(n))
    pr.stamp("fbar")

    def consts():
        b = Asm(); sr = []
        for j in range(4):
            r = HOWN + 4*j
            b(f"v_add_f32 v{r}, v{r}, v{r+2}", f"v_add_f32 v{r+1}, v{r+1}, v{r+3}"); sr += [r, r+1]
        xreduce(b, sr, HOWN + 16)
        k1 = -2.0 * math.sqrt(2.0 / math.pi) * math.log2(math.e); k2 = k1 * 0.044715
        rows = []
        for j in range(4):
            r = HOWN + 4*j; c = CON + 3*j
            rows.append([f"v_mul_f32 v{r}, {f32(1/576)}, v{r}", f"v_mul_f32 v{r+1}, {f32(1/576)}, v{r+1}", f"v_fma_f32 v{r+1}, -v{r}, v{r}, v{r+1}",
                         f"v_max_f32 v{r+1}, 0, v{r+1}", f"v_add_f32 v{c+2}, {f32(1e-5)}, v{r+1}", f"v_rsq_f32 v{r}, v{c+2}",
                         f"v_mul_f32 v{c}, {f32(k1)}, v{r}", f"v_mul_f32 v{r+1}, v{r}, v{r}", f"v_mul_f32 v{r+1}, v{r+1}, v{r}",
                         f"v_mul_f32 v{c+1}, {f32(k2)}, v{r+1}"])
        for col in zip(*rows): b(list(col))
        return b.lines
    def gelu(pos, tmp=TMP):
        acc = aset(pos); out = []
        for j in range(4):
            c = CON + 3*j
            for h in range(2):
                st = []
                for e in range(2):
                    g = acc + 4*j + 2*h + e; u = g + 16; t = tmp + 4*((2*j + h) % 2) + 2*e
                    st.append([f"v_mul_f32 v{t}, v{g}, v{g}", f"v_fma_f32 v{t}, v{t}, v{c+1}, v{c}", f"v_mul_f32 v{t}, v{t}, v{g}",
                               f"v_exp_f32 v{t}, v{t}", f"v_mul_f32 v{t+1}, v{g}, v{u}", f"v_fma_f32 v{t}, v{t}, v{c+2}, v{c+2}",
                               f"v_rcp_f32 v{t}, v{t}", f"v_mul_f32 v{t+1}, v{t+1}, v{t}"])
                for x, y in zip(*st): out += [x, y]
                t = tmp + 4*((2*j + h) % 2)
                dst = HS + 2*j + h if pos == 0 else HOWN + 16*((pos-1)//2) + 4*j + 2*((pos-1) % 2) + h
                out.append(f"v_cvt_pk_bf16_f32 v{dst}, v{t+1}, v{t+3}")
            if pos == 0:
                out.append(("vm", f"buffer_store_dwordx2 v[{HS+2*j}:{HS+2*j+1}], v{VJH[j]}, {WS}, s{sM+2} offen {cp}", ("hs", 0)))
            elif pos % 2 == 0:
                p = (pos-1)//2; r = HOWN + 16*p + 4*j
                out.append(("vm", f"buffer_store_dwordx4 v[{r}:{r+3}], v{VJ[j]}, {WS}, s{sH} offen offset:{p*1024} {cp}", ("hs", pos)))
        return out
    hreg = {0: ("v", HOWN), 1: ("v", HOWN+16), 2: ("v", HOWN+32), 11: ("v", HOWN+48)}
    for n, pos in enumerate(range(3, 10)): hreg[pos] = ("a", 16*n)
    hreg[10] = ("v", XV); hreg[12] = ("v", XV+16); hreg[13] = ("v", aset(7)); hreg[14] = ("v", aset(7)+16)
    hreg[15] = ("v", aset(8)); hreg[16] = ("v", aset(8)+16); hreg[17] = ("v", HOWN)
    def hfrag(pos, j):
        k, r = hreg[pos]; return f"{k}[{r+4*j}:{r+4*j+3}]"
    def hload(pos):
        rel, p = KPOS[pos]
        if rel == "mix":
            k, r = hreg[pos]
            return [("vm", f"buffer_load_dwordx2 {k}[{r+4*j+2*h}:{r+4*j+2*h+1}], v{VJH[j]}, {WS}, s{sM+p} offen offset:{512*h} {cp}", ("h", pos))
                    for j in range(4) for h in range(2)]
        return [("vm", f"buffer_load_dwordx4 {hfrag(pos, j)}, v{VJ[j]}, {WS}, s{sH+rel} offen offset:{p*1024} {cp}", ("h", pos)) for j in range(4)]
    done = set()
    def set_flag(val, keys):
        def w():
            assert all(k in done for k in keys), (val, keys)
            vm.wait(max(tag[("hs", k)] for k in keys))
        return [f"v_mov_b32 v{VFV}, s{NONCE}", f"v_mov_b32 v{VFV+1}, s{NONCE+1}", f"s_add_u32 s53, s{sF}, {(val-1) << (10+FS)}", w,
                ("vm", f"buffer_store_dwordx2 v[{VFV}:{VFV+1}], v{VFS}, {WS}, s53 offen sc1", ("fs", val))]
    def poll(val):
        return [f"s_add_u32 s23, s{sF}, {(val-1) << (10+FS)}", ("vm", f"buffer_load_dwordx2 v[14:15], v{VFL}, {WS}, s23 offen sc1", ("fl", val))]
    def check(val):
        def f():
            vm.wait(tag[("fl", val)])
            a(f"v_cmp_eq_u64 vcc, s[{NONCE}:{NONCE+1}], v[14:15]", "s_nop 0", "s_cmp_eq_u64 vcc, exec", f"s_cbranch_scc0 L_f_slow{val}")
            a.label(f"L_f_back{val}")
            tail(f"L_f_slow{val}:", "s_mov_b32 s52, 0", f"L_f_spin{val}:",
                 f"buffer_load_dwordx2 v[14:15], v{VFL}, {WS}, s23 offen sc1", "s_add_u32 s52, s52, 1", "s_waitcnt vmcnt(0)",
                 f"v_cmp_eq_u64 vcc, s[{NONCE}:{NONCE+1}], v[14:15]", "s_cmp_gt_u32 s52, 0x100000", f"s_cbranch_scc1 L_f_back{val}",
                 "s_cmp_eq_u64 vcc, exec", f"s_cbranch_scc0 L_f_spin{val}", f"s_branch L_f_back{val}")
        return f
    def epilogue(tiles):
        out = []
        if len(tiles) == 4:
            Q = tiles[0] // 4
            for j in range(4):
                for h in range(2):
                    t = TMP + 8*h; pk = HS + 4*h
                    out += [f"v_accvgpr_read_b32 v{t + 4*rr + jj}, a{OUT + ((4*Q + jj)*4 + j)*4 + 2*h + rr}" for rr in range(2) for jj in range(4)]
                    out += [f"v_cvt_pk_bf16_f32 v{pk+d}, v{t+2*d}, v{t+2*d+1}" for d in range(4)]
                    out.append(("vm", f"buffer_store_dwordx4 v[{pk}:{pk+3}], v{VQ}, {WS}, s{sPJ+j} offen offset:{Q*2048 + h*256} {cp}", ("o", Q)))
        else:
            for jp in range(2):
                t = TMP + 8*jp; pk = HS + 4*jp
                for n in range(2):
                    r = OUT + (8*4 + 2*jp + n)*4
                    out += [f"v_accvgpr_read_b32 v{t+4*n+e}, a{r+e}" for e in range(4)]
                out += [f"v_cvt_pk_bf16_f32 v{pk+d}, v{t+2*d}, v{t+2*d+1}" for d in range(4)]
                out += [f"v_permlane16_swap_b32 v{pk}, v{pk+2}", f"v_permlane16_swap_b32 v{pk+1}, v{pk+3}"]
                out.append(("vm", f"buffer_store_dwordx4 v[{pk}:{pk+3}], v{VODD}, {WS}, s{sP+1+jp} offen {cp}", ("o", 4)))
        return out

    steps = []
    def gstep(pos, kp, mat, wait=None):
        d = [f"v[{aset(pos) + 16*mat + 4*j}:{aset(pos) + 16*mat + 4*j + 3}]" for j in range(4)]
        steps.append(dict(d=d, b=[[xreg(2*kp + c, j) for c in range(2)] for j in range(4)], first=kp == 0, wait=wait))
    for kp in range(9):
        for pos in range(2):
            for mat in range(2): gstep(pos, kp, mat, ("x", 2*kp+1) if pos == 0 and mat == 0 else None)
    for pos in range(2, 9):
        for kp in range(9):
            for mat in range(2): gstep(pos, kp, mat)
    P2 = len(steps)
    for start, n, tiles in KBLOCKS:
        for t in tiles:
            for c0 in range(0, n, 2):
                d = [f"a[{OUT + (t*4+j)*4}:{OUT + (t*4+j)*4 + 3}]" for j in range(4)]
                need_h = [p for p in (start+c0, start+c0+1) if KPOS[p][0] != 0]
                steps.append(dict(d=d, b=[[hfrag(start + c0 + c, j) for c in range(2)] for j in range(4)], first=start == 0,
                                  wait=("h", need_h[-1]) if need_h and t == 0 else None))
    NSTEP = len(steps); fin = NSTEP - 20
    mem_at = {}
    def add(s, items): mem_at.setdefault(s, []).extend(items)
    for k in range(BURST, 18): add(0, xload(k))
    add(0, dma(4))
    add(121, set_flag(1, (0, 2, 4))); add(132, poll(1)); add(143, [check(1)])
    add(150, set_flag(2, (6,)))
    for n, pos in enumerate(range(3, 10)): add(max(147 + 2*(n//2), 147 + 3*n), hload(pos))
    add(170, poll(2)); add(172, hload(10)); add(187, set_flag(3, (8,)))
    add(181, [check(2)] + hload(12) + hload(13) + hload(14))
    add(197, poll(3)); add(206, [check(3)] + hload(15) + hload(16) + hload(17))
    if opts.get("warm", 1): add(opts.get("warm_at", 188), warm_items(sL, 248))
    jobs = [("c", consts(), 8, 30)]
    jobs += [(0, gelu(0), 36, 54), (1, gelu(1), 36, 72), (2, gelu(2, TMP + 8), 54, 115), (3, gelu(3), 72, 90)]
    jobs += [(p, gelu(p), 18*(p+1), 18*(p+2)) for p in range(4, 7)] + [(7, gelu(7), 144, 168), (8, gelu(8), 162, 181)]
    jobs += [(f"e{Q}", epilogue(range(4*Q, 4*Q + 4)), fin + 8*Q + 8, min(NSTEP + 1, fin + 8*Q + 16)) for Q in range(2)]
    jobs = [dict(name=n, q=list(q), t0=t0, t1=t1) for n, q, t0, t1 in jobs]
    after = {5: 2, 8: 7}
    issued = 6; late = []; memq = []; gap = 4; pend_rd = 0; bar_next = False
    for s, st in enumerate(steps):
        memq += mem_at.get(s, [])
        for jb in jobs:
            if jb["t1"] == s:
                if jb["q"]: late.append((jb["name"], len(jb["q"])))
                while jb["q"]: emit(jb["q"].pop(0))
                done.add(jb["name"])
        if st["wait"]:
            while st["wait"] not in tag or any(isinstance(x, tuple) and x[2] == st["wait"] for x in memq):
                late.append(("mem", s)); emit(memq.pop(0))
            vm.wait(tag[st["wait"]])
        assert issued >= min(486, 2*s + 2)
        a(f"s_waitcnt lgkmcnt({issued - 2*s - 2})")
        pr.stamp(f"s{s}")
        for n in range(8):
            j, c = n // 2, n % 2
            w = RING + 4*((2*s + c) % NW)
            a(f"{MF} {st['d'][j]}, v[{w}:{w+3}], {st['b'][j][c]}, {'0' if st['first'] and c == 0 else st['d'][j]}")
            room = 2 - (1 if n == 7 else 0)
            gap += 1
            if n in (2, 5): pend_rd += 1
            if n == 0 and issued < 486 and issued % STAGE == 0:
                b = issued // STAGE
                while memq and any(isinstance(x, tuple) and x[2] == ("w", b) for x in memq): late.append(("dma", s)); emit(memq.pop(0))
                if b >= NPRE: vm.wait(tag[("w", b)]); room -= 1
                bar_next = True
            elif bar_next:
                a("s_barrier"); bar_next = False
                if b + 4 < NSTAGE: memq = memq + dma(b + 4)
                continue
            if pend_rd and issued < 486:
                a(rd(issued)); issued += 1; pend_rd -= 1; room -= 1
            xs = any(isinstance(x, tuple) and x[2][0] == "x" for x in memq)
            while memq and not isinstance(memq[0], tuple) and room > 0: emit(memq.pop(0)); room -= 1
            if memq and isinstance(memq[0], tuple) and gap >= 4 and (room == 2 or gap >= 7):
                room -= cost(memq[0]); emit(memq.pop(0)); gap = 0
            g = 8*s + n
            live = sorted((jb for jb in jobs if jb["q"] and 8*jb["t0"] + 3 <= g and after.get(jb["name"], "c") in done | {"c"}), key=lambda jb: jb["t1"])
            for jb in live:
                left = sum(cost(x) for x in jb["q"]); slots = 8*jb["t1"] - g - 2
                lazy = jb is live[-1] and isinstance(jb["name"], int) and jb["name"] in (6,) and left < 1.15*slots - 6
                while jb["q"] and not lazy:
                    urgent = left > 1.9*slots
                    i = pick(jb["q"], lambda x: urgent or (cost(x) <= room and not (isinstance(x, tuple) and gap < 2)))
                    if i is None: break
                    x = jb["q"].pop(i); cx = cost(x)
                    emit(x); room -= cx; left -= cx
                    if isinstance(x, tuple): gap = 0
                    if room <= 0: break
                if not jb["q"]: done.add(jb["name"])
                if room <= 0: break
    assert not memq, memq
    if any(x[1] > 8 for x in late): print("late items", late)
    a("s_barrier")
    for jb in jobs:
        for x in jb["q"]: emit(x)
    for x in epilogue([8]): emit(x)
    pr.stamp("fst")
    publish(a, 35)
    pr.stamp("fend")
```

```python
from gen_common import *
from gen_common import _uid
from gen_r import gen_r

GR, RAW, AD, PKD, MU = 52, 76, 156, 176, 20
NRAW = 48
LX = 147456 + 1024

def gathers(a, vm):
    a(f"s_lshl_b32 s40, s{S_I}, 2", f"s_add_u32 s40, s40, s{S_WAVE}")
    a(f"v_and_b32 v6, 15, v{V_LANE}", f"v_lshrrev_b32 v7, 4, v{V_LANE}", "v_lshrrev_b32 v8, 2, v6", f"v_mov_b32 v12, {OOB}")
    a(f"s_lshl_b32 s39, s{S_X}, 7", "s_add_u32 s39, s39, s40", f"s_lshl_b32 s39, s39, {FS}", f"s_add_u32 s39, s39, {FLAGS + FL_Q}")
    a("s_cmp_ge_u32 s40, 96", "s_cbranch_scc1 L_g_o"); a("; @if")
    n0 = vm.n
    srd(a, 44, 58, D * 3 * D * 2)
    a("s_cmp_ge_u32 s40, 48", "s_cselect_b32 s41, 1, 0", "s_mul_i32 s42, s41, 48", "s_sub_u32 s40, s40, s42", "s_mul_i32 s40, s40, 3",
      f"s_lshl_b32 s42, s{S_X}, 1", "s_add_u32 s41, s41, s42")
    a(f"s_mul_i32 s38, s41, {PQ_TASK}", "s_lshl_b32 s42, s40, 10", "s_add_u32 s38, s38, s42", f"s_add_u32 s38, s38, {PQ}", "s_mul_i32 s41, s41, 36")
    a("v_and_b32 v9, 1, v6", "v_bfe_u32 v10, v6, 1, 1", "v_mul_u32_u24 v10, 18, v10", "v_add_u32 v9, v9, v10",
      "v_mul_u32_u24 v10, 576, v8", "v_add_u32 v9, v9, v10", f"v_mul_u32_u24 v10, {8*3456}, v7")
    for f in range(3):
        a(f"s_add_u32 s42, s40, {f}", "s_and_b32 s43, s42, 7", "s_lshr_b32 s42, s42, 3", f"s_mul_i32 s42, s42, {32*3456}")
        a("s_mov_b32 s35, 0")
        for t, base in enumerate([0, 18, 576, 594, 16, 1152, 1170, 1168]):
            if base: a(f"s_cmp_eq_u32 s43, {t}", f"s_cselect_b32 s35, {base}, s35")
        a("s_add_u32 s35, s35, s41", "s_mov_b32 s36, 16", "s_cmp_eq_u32 s43, 4", "s_cselect_b32 s36, 8, s36", "s_cmp_eq_u32 s43, 7", "s_cselect_b32 s36, 4, s36",
          "s_cmp_lg_u32 s36, 16", "s_cselect_b64 vcc, -1, 0", "v_cndmask_b32 v11, v6, v9, vcc", "v_add_u32 v11, s35, v11", "v_lshl_add_u32 v11, v11, 1, v10",
          "v_cmp_gt_u32 vcc, s36, v6", "v_cndmask_b32 v11, v12, v11, vcc")
        for i in range(8):
            vm.op(f"buffer_load_ushort v{GR + 8*f + i}, v11, s[44:47], s42 offen")
            if i < 7: a("s_add_u32 s42, s42, 3456")
    a("s_branch L_g_done")
    a("; @else"); a.label("L_g_o")
    vm.n = n0
    srd(a, 44, 60, D * D * 2)
    a("s_sub_u32 s40, s40, 96", "s_mul_i32 s40, s40, 3")
    a(f"s_mul_i32 s38, s{S_X}, {PO_TASK}", "s_lshl_b32 s42, s40, 10", "s_add_u32 s38, s38, s42", f"s_add_u32 s38, s38, {PO}",
      "s_cmp_ge_u32 s40, 90", f"s_cselect_b32 s38, {OOB}, s38", f"s_mul_i32 s41, s{S_X}, 72")
    a("v_and_b32 v9, 3, v6", "v_lshl_add_u32 v9, v8, 3, v9")
    for f in range(3):
        a(f"s_add_u32 s42, s40, {f}")
        div(a, 43, 42, 5, 100)
        a("s_mul_i32 s35, s43, 5", "s_sub_u32 s42, s42, s35")
        a("s_lshr_b32 s35, s42, 1", "s_lshl_b32 s35, s35, 5", "s_and_b32 s36, s42, 1", "s_lshl_b32 s36, s36, 2", "s_add_u32 s35, s35, s36", "s_add_u32 s35, s35, s41")
        a("s_cmp_eq_u32 s42, 4", "s_cselect_b64 vcc, -1, 0", "s_cselect_b32 s36, 8, 16", "v_cndmask_b32 v11, v9, v6, vcc", "v_add_u32 v11, s35, v11")
        a(f"s_mul_i32 s35, s43, {36*1152}", "s_sub_u32 s37, s43, 16", f"s_mul_i32 s37, s37, {288*1152}", "s_cmp_lt_u32 s43, 16",
          "s_cselect_b32 s35, s35, s37", "s_cselect_b32 s37, 4, 72", "s_cselect_b32 s34, 0, 1", "s_mul_i32 s37, s37, 1152",
          "v_mul_lo_u32 v10, s37, v7", "v_lshl_add_u32 v11, v11, 1, v10", "v_cmp_gt_u32 vcc, s36, v6", "v_cndmask_b32 v11, v12, v11, vcc")
        for i in range(8):
            ra = 18*(i >> 2) + (i & 3); rb = 36*(i >> 2) + [16, 17, 34, 35][i & 3]
            a(f"s_mul_i32 s42, s34, {(rb - ra)*1152}", f"s_add_u32 s42, s42, {ra*1152}", "s_add_u32 s42, s42, s35")
            vm.op(f"buffer_load_ushort v{GR + 8*f + i}, v11, s[44:47], s42 offen")
    a("; @endif"); a.label("L_g_done")
    return vm.n

def ffn_loads(a, vm):
    n0 = vm.n
    a("s_cmp_ge_u32 s2, 144", "s_cbranch_scc1 L_l_d"); a("; @if")
    div(a, 40, 2, 72, 144)
    a("s_mul_i32 s41, s40, 72", "s_sub_u32 s41, s2, s41", "s_cmp_eq_u32 s40, 0", "s_cselect_b64 s[12:13], s[64:65], s[66:67]")
    srd(a, 48, 12, D * DF * 2)
    a("s_lshl_b32 s41, s41, 7", "v_lshlrev_b32 v9, 3, v6", f"v_mul_u32_u24 v10, {8*9216}, v7", "v_add3_u32 v9, v9, v10, s41")
    a(f"s_and_b32 s42, s{S_WAVE}, 1", "s_cmp_eq_u32 s42, 1", "s_cselect_b64 vcc, -1, 0", "v_cndmask_b32 v10, v9, v12, vcc")
    a(f"s_mul_i32 s42, s{S_WAVE}, 9", "s_add_u32 s42, s42, 1", "s_lshr_b32 s42, s42, 1", f"s_mul_i32 s42, s42, {32*9216}")
    for kk in range(5):
        for i in range(8):
            r = RAW + 16*kk + 2*i
            vm.op(f"buffer_load_dwordx2 v[{r}:{r+1}], v{9 if kk < 4 else 10}, s[48:51], s42 offen")
            a(f"s_add_u32 s42, s42, {9216 if i < 7 else 25*9216}")
    for n in range(NRAW - 40): vm.op(f"buffer_load_dword v3, v12, s[48:51], 0 offen")
    a("s_branch L_l_done")
    a("; @else"); a.label("L_l_d")
    vm.n = n0
    srd(a, 48, 62, D * DF * 2)
    a("s_sub_u32 s40, s2, 144", f"s_mul_i32 s42, s40, {64*1152}", f"s_mul_i32 s41, s{S_WAVE}, 288")
    a(f"v_mul_u32_u24 v10, {16*1152}, v7", "v_add_u32 v10, s41, v10", "v_lshl_add_u32 v9, v6, 3, v10", "v_lshl_add_u32 v10, v6, 1, v10")
    for kk in range(2):
        for i in range(8):
            a(f"s_add_u32 s43, s42, {(4*(i & 3) + 2*kk + (i >> 2))*1152}")
            for Q in range(2):
                r = RAW + 40*kk + 16*Q + 2*i
                vm.op(f"buffer_load_dwordx2 v[{r}:{r+1}], v9, s[48:51], s43 offen offset:{128*Q}")
            vm.op(f"buffer_load_ushort v{RAW + 40*kk + 32 + i}, v10, s[48:51], s43 offen offset:256")
    a("; @endif"); a.label("L_l_done")
    assert vm.n == n0 + NRAW

def quad_perm(a, raw, dst):
    for j in range(4):
        for d in range(4):
            a(f"v_perm_b32 v{dst + 4*j + d}, v{raw + 4*d + 2 + (j >> 1)}, v{raw + 4*d + (j >> 1)}, s{34 + (j & 1)}")

def ffn_transpose(a):
    a("s_mov_b32 s34, 0x05040100", "s_mov_b32 s35, 0x07060302")
    a("s_cmp_ge_u32 s2, 144", "s_cbranch_scc1 L_t_d"); a("; @if")
    for r in range(4): a(f"v_mov_b32 v{68+r}, 0x3f803f80")
    for kk in range(5):
        quad_perm(a, RAW + 16*kk, PKD + 16*kk)
    for kk in range(5):
        for j in range(4):
            r = PKD + 16*kk + 4*j; d = 52 + 4*j
            a(f"v_mfma_f32_16x16x32_bf16 v[{d}:{d+3}], v[68:71], v[{r}:{r+3}], {'0' if kk == 0 else f'v[{d}:{d+3}]'}")
    div(a, 40, 2, 72, 144)
    a("s_mul_i32 s41, s40, 72", "s_sub_u32 s41, s2, s41")
    div(a, 42, 41, 9, 72)
    a("s_mul_i32 s43, s42, 9", "s_sub_u32 s41, s41, s43", "s_lshl_b32 s41, s41, 2", "s_lshl_b32 s42, s42, 2", "s_lshl_b32 s40, s40, 11",
      f"s_add_u32 s40, s40, {PF}")
    a(f"s_mul_i32 s43, s{S_WAVE}, 9", "s_add_u32 s43, s43, 1", "s_lshr_b32 s43, s43, 1")
    a(f"v_and_b32 v6, 15, v{V_LANE}", "v_lshlrev_b32 v6, 4, v6", f"v_add_u32 v6, {LX}, v6", f"s_lshl_b32 s44, s{S_WAVE}, 2", "v_add_u32 v7, s44, v6")
    for j in range(4): a(f"ds_write_b32 v7, v{52 + 4*j} offset:{256*j}")
    for j in range(4):
        a(f"s_add_u32 s44, s41, {j}")
        div(a, 45, 44, 9, 36)
        a("s_mul_i32 s46, s45, 9", "s_sub_u32 s44, s44, s46", "s_add_u32 s46, s44, 1", "s_cmp_eq_u32 s46, 9", "s_cselect_b32 s46, 0, s46",
          "s_bitcmp0_b32 s45, 0", "s_cselect_b32 s44, s46, s44")
        a("s_add_u32 s45, s45, s42", f"s_mul_i32 s45, s45, {PF_TASK}", "s_add_u32 s45, s45, s40", f"s_mul_i32 s46, s44, {36*1024}",
          "s_lshl_b32 s47, s44, 12", "s_cmp_lt_u32 s44, 2", "s_cselect_b32 s46, s47, s46", "s_cselect_b32 s47, 13, 12", "s_add_u32 s45, s45, s46")
        for kk in range(5):
            a(f"s_add_u32 s44, s43, {kk}", "s_lshr_b32 s46, s44, 1", "s_lshl_b32 s46, s46, s47", "s_and_b32 s44, s44, 1", "s_lshl_b32 s44, s44, 10",
              "s_add_u32 s44, s44, s46", "s_add_u32 s44, s44, s45")
            if kk == 4: a(f"s_bitcmp1_b32 s{S_WAVE}, 0", f"s_cselect_b32 s44, {OOB}, s44")
            a(f"v_add_u32 v{AD + 4*kk + j}, s44, v{V_L16}")
    a("s_waitcnt lgkmcnt(0)", "s_barrier")
    for j in range(4): a(f"ds_read_b128 v[{52+4*j}:{55+4*j}], v6 offset:{256*j}")
    a("s_waitcnt lgkmcnt(0)")
    for j in range(4): a(f"v_add_f32 v{52+4*j}, v{52+4*j}, v{53+4*j}", f"v_add_f32 v{54+4*j}, v{54+4*j}, v{55+4*j}")
    for j in range(4): a(f"v_add_f32 v{52+4*j}, v{52+4*j}, v{54+4*j}")
    for j in range(4): a(f"v_mul_f32 v{MU+j}, {f32(1/576)}, v{52+4*j}")
    a("s_branch L_t_done")
    a("; @else"); a.label("L_t_d")
    for j in range(4): a(f"v_mov_b32 v{MU+j}, 0")
    for kk in range(2):
        for Q in range(2): quad_perm(a, RAW + 40*kk + 16*Q, PKD + 36*kk + 16*Q)
        for d in range(4):
            r = RAW + 40*kk + 32 + 2*d
            a(f"v_lshl_or_b32 v{PKD + 36*kk + 32 + d}, v{r+1}, 16, v{r}")
    a("s_sub_u32 s40, s2, 144")
    div(a, 41, 40, 9, 112)
    a("s_mul_i32 s42, s41, 9", "s_sub_u32 s40, s40, s42", "s_lshl_b32 s41, s41, 2", f"s_add_u32 s41, s41, s{S_WAVE}",
      f"s_mul_i32 s41, s41, {PF_TASK}", f"s_add_u32 s41, s41, {PF + 324*1024}", "s_cmp_ge_u32 s2, 216", f"s_cselect_b32 s41, {OOB}, s41")
    for kk in range(2):
        a("s_lshl_b32 s42, s40, 1", f"s_add_u32 s42, s42, {kk}", "s_mov_b32 s43, 0")
        for lim in (5, 9, 14): a(f"s_cmp_ge_u32 s42, {lim}", "s_addc_u32 s43, s43, 0")
        a("s_mul_i32 s44, s43, 9", "s_add_u32 s44, s44, 1", "s_lshr_b32 s44, s44, 1", "s_sub_u32 s44, s42, s44")
        a(f"s_sub_u32 s43, s43, s{S_WAVE}", "s_and_b32 s43, s43, 3")
        a("s_mul_i32 s45, s44, 3", "s_add_u32 s45, s45, 2", "s_cmp_ge_u32 s44, 2", "s_cselect_b32 s46, 3, 0", "s_add_u32 s45, s45, s46", "s_add_u32 s45, s45, s43")
        a("s_cmp_eq_u32 s44, 3", "s_cselect_b32 s46, 11, s44", "s_cmp_eq_u32 s43, 0", "s_cselect_b32 s45, s46, s45")
        a("s_cmp_eq_u32 s42, 4", "s_cselect_b32 s45, 9, s45", "s_cmp_eq_u32 s42, 13", "s_cselect_b32 s45, 10, s45")
        a("s_and_b32 s46, s45, 1", "s_and_b32 s47, s45, 30", "s_mul_i32 s43, s47, 9", "s_lshl_b32 s44, s47, 3", "s_add_u32 s44, s44, 10",
          "s_cmp_lt_u32 s45, 10", "s_cselect_b32 s43, s43, s44", "s_add_u32 s43, s43, s46", "s_add_u32 s44, s45, 108",
          "s_cmp_lt_u32 s45, 14", "s_cselect_b32 s43, s43, s44", "s_cselect_b32 s46, 2, 4", "s_lshl_b32 s46, s46, 10")
        a("s_add_u32 s44, s43, 16", "s_add_u32 s47, s45, 144", "s_cmp_lt_u32 s45, 10", "s_cselect_b32 s44, s44, s47")
        a("s_lshl_b32 s43, s43, 10", "s_add_u32 s43, s43, s41", "s_lshl_b32 s44, s44, 10", "s_add_u32 s44, s44, s41")
        for t in range(8):
            a(f"v_add_u32 v{AD + 9*kk + t}, s43, v{V_L16}")
            if t < 7: a("s_add_u32 s43, s43, s46")
        a(f"v_add_u32 v{AD + 9*kk + 8}, s44, v{V_L16}")
    a(f"v_mov_b32 v{AD+18}, {OOB}", f"v_mov_b32 v{AD+19}, {OOB}")
    a("; @endif"); a.label("L_t_done")

def center_items(n):
    out = []
    for d in range(4):
        r = PKD + 4*n + d; t = 24 + 2*(d % 4); mu = MU + (n & 3)
        out += [f"v_lshlrev_b32 v{t}, 16, v{r}", f"v_and_b32 v{t+1}, 0xffff0000, v{r}", f"v_sub_f32 v{t}, v{t}, v{mu}",
                f"v_sub_f32 v{t+1}, v{t+1}, v{mu}", f"v_cvt_pk_bf16_f32 v{r}, v{t}, v{t+1}"]
    return out

def store_item(n): return f"buffer_store_dwordx4 v[{PKD+4*n}:{PKD+4*n+3}], v{AD+n}, {WS}, 0 offen sc1"

NPRE_CENTER = 8
def gen_p0(a, pr, code_bytes, lds):
    vm = VM(a)
    a("s_getpc_b64 s[40:41]")
    a.label("L_warm_pc")
    a("s_lshr_b32 s42, s2, 3", "s_lshl_b32 s42, s42, 11", "v_lshlrev_b32 v10, 3, v0", "v_add_u32 v10, s42, v10", f"v_min_u32 v10, {code_bytes}, v10",
      "v_mov_b32 v11, s41", "v_add_co_u32 v10, vcc, s40, v10", "v_addc_co_u32 v11, vcc, 0, v11, vcc")
    vm.op("global_load_dwordx2 a[0:1], v[10:11], off")
    a("v_add_co_u32 v10, vcc, 0x10000, v10", "v_addc_co_u32 v11, vcc, 0, v11, vcc", f"s_add_u32 s42, s42, {0x10000 + 2048}", f"s_cmp_le_u32 s42, {code_bytes}")
    a("s_cbranch_scc0 L_warm_done", "global_load_dwordx2 a[2:3], v[10:11], off")
    a.label("L_warm_done")
    a(f"s_load_dwordx4 s[56:59], s[0:1], {KA['x']}", f"s_load_dwordx2 s[60:61], s[0:1], {KA['wo']}",
      f"s_load_dwordx4 s[64:67], s[0:1], {KA['wg']}", f"s_load_dwordx2 s[62:63], s[0:1], {KA['wd']}",
      f"s_load_dwordx2 s[26:27], s[0:1], {KA['dbg']}")
    common(a)
    pr.stamp("c0", cyc=True); pr.stamp("start")
    srd(a, 16, 56, S * D * 2)
    a(f"v_mov_b32 v3, {EPOCH}")
    ep = vm.op(f"buffer_load_dwordx2 v[14:15], v3, {WS}, 0 offen sc1")
    gt = []
    def rest():
        pr.stamp("p1")
        gt.append(gathers(a, vm))
        pr.stamp("p2")
        if pr.on == 7: vm.wait(ep); pr.stamp("pep"); vm.wait(5); pr.stamp("pxr"); vm.wait(gt[0]); pr.stamp("pga")
        ffn_loads(a, vm)
        vm.wait(ep)
        a("v_readfirstlane_b32 s40, v14", "v_readfirstlane_b32 s41, v15", f"s_add_u32 s{NONCE}, s40, 1", f"s_addc_u32 s{NONCE+1}, s41, 0")
        pr.stamp("piss")
    gen_r(a, "first", 0, pr, lds=lds, vm=vm, after_issue=rest)
    pr.stamp("px")
    vm.wait(gt[0])
    for f in range(3):
        for d in range(4): a(f"v_lshl_or_b32 v{GR + 8*f + d}, v{GR + 8*f + 2*d + 1}, 16, v{GR + 8*f + 2*d}")
        vm.op(f"buffer_store_dwordx4 v[{GR+8*f}:{GR+8*f+3}], v{V_L16}, {WS}, s38 offen offset:{1024*f} sc1")
    pr.stamp("pst")
    publish(a, [24, 39])
    srd(a, 44, 26, 256)
    a(f"s_cmp_eq_u32 s{S_WAVE}, 0", "s_cselect_b32 s40, 0, 4096", "v_mov_b32 v3, 1", "buffer_atomic_add v3, v13, s[44:47], s40 offen sc1")
    pr.stamp("pend")
    ffn_transpose(a)
    for n in range(NPRE_CENTER): a(center_items(n))
    pr.stamp("pperm")

def gen_epoch(a):
    a("s_cmp_lg_u32 s2, 0", "s_cbranch_scc1 L_end", f"s_load_dwordx2 s[12:13], s[0:1], {KA['dbg']}", "s_waitcnt lgkmcnt(0)")
    srd(a, 44, 12, 256)
    a("v_mov_b32 v3, 0", "s_mov_b32 s52, 0")
    a.label("L_ep")
    a("buffer_load_dword v4, v3, s[44:47], 0 offen sc1", "s_add_u32 s52, s52, 1", "s_waitcnt vmcnt(0)", "v_readfirstlane_b32 s40, v4",
      "s_cmp_ge_u32 s52, 0x100000", "s_cbranch_scc1 L_end", "s_cmp_lt_u32 s40, 256", "s_cbranch_scc1 L_ep")
    a(f"s_mov_b32 s40, {EPOCH}")
    flag_store(a, 40)
    a("s_branch L_end")
```

```python
from gen_common import *

def gen_r(a, mode, layer, pr, cp="sc1", lds=0, vm=None, after_issue=None):
    vm = vm or VM(a)
    VA, VN, T0 = 4, 5, 6
    DATA, SUM, PK, XO = (16, 28, None, 16) if mode == 'first' else (16, 128, 152, 168)
    sT, sN = 20, 21
    a(f"v_and_b32 v6, 7, v{V_LANE}", f"v_lshrrev_b32 v7, 3, v{V_LANE}")
    a(f"s_mul_i32 s22, s{S_WAVE}, 24", "v_add_u32 v7, s22, v7")
    a(f"s_and_b32 s23, s{S_I}, 1", "s_lshl_b32 s23, s23, 3")
    a("v_add_u32 v8, s23, v6", "v_lshlrev_b32 v8, 4, v8", f"v_lshl_add_u32 v{VA}, v7, 8, v8")
    a(f"s_lshl_b32 s24, s{S_X}, 4", f"s_lshr_b32 s25, s{S_I}, 1", "s_add_u32 s24, s24, s25",
      f"s_mul_i32 s{sT}, s24, {TILE}")
    if mode != "mid":
        a(f"s_lshl_b32 s24, s{S_X}, 8", f"s_lshl_b32 s25, s{S_I}, 3", "s_add_u32 s24, s24, s25",
          "s_and_b32 s25, s24, 1023", "s_lshl_b32 s25, s25, 1", "s_lshr_b32 s24, s24, 10", "s_add_u32 s24, s24, s25",
          f"s_mul_i32 s{sN}, s24, 1152")
        a("v_mul_u32_u24 v8, 2304, v6", f"v_lshl_add_u32 v{VN}, v7, 4, v8")
        if mode == "last":
            a(f"s_load_dwordx2 s[12:13], s[0:1], {KA['out']}", "s_waitcnt lgkmcnt(0)")
            srd(a, 16, 12, S * D * 2)
    tags = []
    if mode == "first":
        a(f"s_cmp_eq_u32 s{S_WAVE}, 3", "s_cselect_b64 vcc, -1, 0", f"v_mov_b32 v8, {OOB}", f"v_cndmask_b32 v{VA}, v{VA}, v8, vcc", f"v_cndmask_b32 v{VN}, v{VN}, v8, vcc")
        for j in range(3):
            tags.append(vm.op(f"buffer_load_dwordx4 v[{DATA+4*j}:{DATA+4*j+3}], v{VN}, s[16:19], s{sN} offen offset:{128*j}"))
        nsrc = 1
        after_issue()
    else:
        nsrc = 9
        for s in range(9):
            base = X1[layer] if s == 0 else PART[layer] + (s-1) * ACT
            if s == 1:
                a(f"s_lshl_b32 s24, s{S_X}, 2", f"s_lshr_b32 s25, s{S_I}, 3", "s_add_u32 s24, s24, s25", f"s_lshl_b32 s24, s24, {5+FS}",
                  f"s_add_u32 s24, s24, {FLAGS + layer*FL_LAYER + FL_P}", f"v_and_b32 v6, 31, v{V_LANE}", f"v_lshlrev_b32 v6, {FS}, v6")
                pr.stamp('rpre')
                await_flags(a, 6, 24)
                pr.stamp("rgo")
            a(f"s_add_u32 s24, s{sT}, {base}", "s_add_u32 s25, s24, 4096")
            for j in range(3):
                r = DATA + 12*s + 4*j
                so, off = ("s24", 2048*j) if j < 2 else ("s25", 0)
                tags.append(vm.op(f"buffer_load_dwordx4 v[{r}:{r+3}], v{VA}, {WS}, {so} offen offset:{off} {cp}"))
    for s in range(nsrc):
        for j in range(3):
            vm.wait(tags[3*s+j])
            if j == 0: pr.stamp(f'r{s}')
            for d in range(4):
                src = DATA + 12*s + 4*j + d; lo = SUM + 8*j + 2*d
                if s == 0:
                    a(f"v_lshlrev_b32 v{lo}, 16, v{src}", f"v_and_b32 v{lo+1}, 0xffff0000, v{src}")
                else:
                    t = T0 + 2*(d % 2)
                    a(f"v_lshlrev_b32 v{t}, 16, v{src}", f"v_and_b32 v{t+1}, 0xffff0000, v{src}",
                      f"v_add_f32 v{lo}, v{lo}, v{t}", f"v_add_f32 v{lo+1}, v{lo+1}, v{t+1}")
    pr.stamp("rsum")
    pk = DATA if mode == "first" else PK
    if mode != "first":
        for d in range(12): a(f"v_cvt_pk_bf16_f32 v{PK+d}, v{SUM+2*d}, v{SUM+2*d+1}")
    if mode == "last":
        for j in range(3):
            vm.op(f"buffer_store_dwordx4 v[{PK+4*j}:{PK+4*j+3}], v{VN}, s[16:19], s{sN} offen offset:{128*j}")
        return
    nl = 0 if mode == "first" else layer + 1
    a(f"s_add_u32 s24, s{sT}, {XR[nl]}", "s_add_u32 s25, s24, 4096")
    for j in range(3):
        so, off = ("s24", 2048*j) if j < 2 else ("s25", 0)
        vm.op(f"buffer_store_dwordx4 v[{pk+4*j}:{pk+4*j+3}], v{VA}, {WS}, {so} offen offset:{off} {cp}")
    a(f"v_add_f32 v6, v{SUM}, v{SUM+1}", f"v_mul_f32 v7, v{SUM}, v{SUM}", f"v_mul_f32 v9, v{SUM+1}, v{SUM+1}", "v_mov_b32 v8, 0")
    for e in range(2, 24, 2):
        a(f"v_add_f32 v6, v6, v{SUM+e}", f"v_add_f32 v8, v8, v{SUM+e+1}",
          f"v_fmac_f32 v7, v{SUM+e}, v{SUM+e}", f"v_fmac_f32 v9, v{SUM+e+1}, v{SUM+e+1}")
    a("v_add_f32 v6, v6, v8", "v_add_f32 v7, v7, v9")
    xreduce(a, [6, 7], 8, steps=("8", "16", "32"))
    a(f"v_and_b32 v10, 7, v{V_LANE}", "v_lshlrev_b32 v10, 3, v10", f"v_add_u32 v10, {lds}, v10", f"s_lshl_b32 s24, s{S_WAVE}, 6", "v_add_u32 v11, s24, v10")
    pr.stamp("rxr")
    a("ds_write_b64 v11, v[6:7]", "s_waitcnt lgkmcnt(0)", "s_barrier")
    pr.stamp("rbar")
    a("ds_read_b64 v[6:7], v10", "ds_read_b64 v[8:9], v10 offset:64", "ds_read_b64 v[12:13], v10 offset:128", "s_waitcnt lgkmcnt(0)")
    a("v_add_f32 v6, v6, v8", "v_add_f32 v7, v7, v9", "v_add_f32 v6, v6, v12", "v_add_f32 v7, v7, v13")
    a(f"v_mul_f32 v6, {f32(1/576)}, v6", f"v_mul_f32 v7, {f32(1/576)}, v7", "v_fma_f32 v7, -v6, v6, v7",
      "v_max_f32 v7, 0, v7", f"v_add_f32 v7, {f32(1e-5)}, v7", "v_rsq_f32 v7, v7")
    a("v_mul_f32 v6, v6, v7")
    for e in range(24): a(f"v_fma_f32 v{SUM+e}, v{SUM+e}, v7, -v6")
    for d in range(12): a(f"v_cvt_pk_bf16_f32 v{XO+d}, v{SUM+2*d}, v{SUM+2*d+1}")
    a(f"s_add_u32 s24, s{sT}, {XN[nl]}", "s_add_u32 s25, s24, 4096")
    for j in range(3):
        so, off = ("s24", 2048*j) if j < 2 else ("s25", 0)
        vm.op(f"buffer_store_dwordx4 v[{XO+4*j}:{XO+4*j+3}], v{VA}, {WS}, {so} offen offset:{off} {cp}")
    a(f"s_lshl_b32 s24, s{S_X}, 4", f"s_lshr_b32 s25, s{S_I}, 1", "s_add_u32 s24, s24, s25", "s_lshl_b32 s24, s24, 3", f"s_and_b32 s25, s{S_I}, 1",
      "s_mul_i32 s25, s25, 3", "s_add_u32 s24, s24, s25", f"s_add_u32 s24, s24, s{S_WAVE}", f"s_lshl_b32 s24, s24, {FS}",
      f"s_add_u32 s24, s24, {FLAGS + nl*FL_LAYER + FL_R}")
    if mode == "first": a(f"s_cmp_eq_u32 s{S_WAVE}, 3", f"s_cselect_b32 s24, {OOB}, s24")
    if mode == "mid":
        pr.stamp("rst")
        publish(a, 24)
```

```python
S, D, H, DH, DF = 2048, 576, 32, 18, 4608
TILE = 18432
ACT = 128 * TILE
WS_BYTES = 268435456

_off = 0
def _alloc(n):
    global _off
    o = _off
    _off += (n + 4095) // 4096 * 4096
    return o

import os
FS = int(os.environ.get('FS', 7))
FLAG_BYTES = 16 * 1024 << 8
FLAGS = _alloc(FLAG_BYTES)
FL_LAYER = 8 * 1024 << FS
FL_H, FL_O, FL_X, FL_P, FL_R, FL_Q = [n * 1024 << FS for n in (0, 3, 4, 5, 6, 7)]
FL_K = FL_LAYER + FL_Q
EPOCH = _alloc(4096)
PQ_TASK = 144 * 1024
PQ = _alloc(16 * PQ_TASK)
PO_TASK = 90 * 1024
PO = _alloc(8 * PO_TASK + 8192)
PF_TASK = 486 * 1024
PF = _alloc(32 * PF_TASK + 32768)
XN = [_alloc(ACT) for _ in range(2)]
XR = [_alloc(ACT) for _ in range(2)]
OB = [_alloc(ACT) for _ in range(2)]
X1 = [_alloc(ACT) for _ in range(2)]
STAT_BYTES = 128 * 8 * 128
ST = [_alloc(STAT_BYTES) for _ in range(2)]
HB_BYTES = 8 * 8 * 16 * TILE
HB = [_alloc(HB_BYTES) for _ in range(2)]
PART = [_alloc(8 * ACT) for _ in range(2)]
PROF = _alloc(2 * 1024 * 256)
WS_USED = _off
assert WS_USED <= WS_BYTES

KPOS = [(0, 0), (0, 1), (0, 2), (1, 0), (2, 0), (3, 0), (1, 1), (2, 1), (3, 1), ("mix", 0), ("mix", 1), (0, 3),
        (1, 2), (2, 2), (3, 2), (1, 3), (2, 3), (3, 3)]
KBLOCKS = [(p, 2, range(9)) for p in (0, 2, 4, 6, 8)] + [(10, 2, range(8)), (12, 2, range(8)), (14, 4, range(8)), (10, 8, [8])]

def kbase(m): return (9 * m + 1) >> 1

def kstep_of(member, pos):
    rel, p = KPOS[pos]
    if rel == "mix": return 4 if p == 0 else 13
    return kbase((member + rel) & 3) + p

def pd_index(pos, t):
    n0 = 0
    for start, n, tiles in KBLOCKS:
        if start <= pos < start + n and t in tiles: return n0 + list(tiles).index(t) * n + (pos - start)
        n0 += n * len(tiles)

def hidden_col(c, q, i):
    return 64 * (c >> 1) + 16 * q + 4 * (i & 3) + 2 * (c & 1) + (i >> 2)
```

```python
import sys
from gen_common import *
from gen_r import gen_r
import gen_p0 as P0
from gen_a1 import A1R, gen_a1_front, gen_a1_tail, a1_weights, A1_LDS, XCH
from gen_a2 import gen_a2
from gen_f import gen_f

NAME = "interleave_layers__sliding_local_dilated__glu_gated_geglu__prompt"
HEADER = open(f"/code/{NAME}.s.ref").read().split("; Override launch")[0]

SL = dict(XN=70, XR=71, OB=72, X1=73, ST=74, HB=75, PART=76, FL=77, LAYER=7)
def layer_regs(a, l):
    for k, v in (("XN", XN[l]), ("XR", XR[l]), ("OB", OB[l]), ("X1", X1[l]), ("ST", ST[l]), ("HB", HB[l]), ("PART", PART[l]),
                 ("FL", FLAGS + l*FL_LAYER), ("LAYER", l)):
        a(f"s_mov_b32 s{SL[k]}, {v}")

def finish(lines, name):
    st = []
    out = pad_hazards(lines, st)
    errs = check_waits(out, name)
    for e in errs[:20]: print("WAIT ERROR", e)
    assert not errs
    nins = sum(1 for l in out if not l.endswith(":") and not l.startswith((".", ";")))
    print(f"{name}: {nins} instructions, {len(st)} pads ({sum(x[0] for x in st)} states)", file=sys.stderr)
    return out

def build(opts):
    prof = opts.get("prof", 0)
    A1R[0] = opts.get("a1r", 8)
    POLL_CFG.update(sleep=opts.get("ps", 0))
    K = NAME + "_kernel"
    a = Asm(); tail = Asm(); names = {}
    entry(a, K, 256, "L_end")
    pr = Prof(a, prof)
    P0.gen_p0(a, pr, "L_code_end - L_warm_pc - 8", XCH)
    layer_regs(a, 0)
    if opts.get("dbgout"): a("s_waitcnt lgkmcnt(0)", f"s_mov_b32 s3, s{pr.regs[1]}")
    side = [x for n in range(P0.NPRE_CENTER, 20) for x in P0.center_items(n)]
    gen_a1_front(a, SL, pr, 0, side, [P0.store_item(n) for n in range(20)])
    nf = pr.n
    a.label("L_att")
    gen_a1_tail(a, SL, pr)
    gen_a2(a, SL, pr)
    gen_f(a, SL, tail, pr, opts)
    a(f"s_cmp_eq_u32 s{SL['LAYER']}, 1", "s_cbranch_scc1 L_last")
    n0 = pr.n; nm0 = list(pr.names)
    a1_weights(a, 36)
    a(f"s_cmp_eq_u32 s{S_WAVE}, 3", "s_cbranch_scc1 L_r_side", "; @if")
    gen_r(a, "mid", 0, pr, lds=XCH)
    pr.stamp("rend"); pr.stamp("c1", cyc=True)
    if opts.get("dbgout"): pr.to_debug(opts["dbgout"], 1, list(range(2, pr.n - 1))[:14])
    pr.flush(SL["LAYER"]); names[0] = list(pr.names)
    a("s_branch L_r_done")
    a("; @else"); a.label("L_r_side")
    a("s_barrier", "s_waitcnt vmcnt(0)")
    pr.flush(SL["LAYER"])
    a("; @endif"); a.label("L_r_done")
    a("s_barrier")
    layer_regs(a, 1)
    keep = [x for x in nm0[:nf] if x in ("c0", "start") or x.startswith("a1")]
    pr.n = 0; pr.names = []
    pr.stamp("c0", cyc=True); pr.stamp("start")
    pr.n = nf - (len(keep) - 2)
    gen_a1_front(a, SL, pr, 1)
    a("s_branch L_att")
    a.label("L_last")
    a(f"s_cmp_eq_u32 s{S_WAVE}, 3", "s_cbranch_scc1 L_epoch")
    pr.n = n0; pr.names = nm0
    gen_r(a, "last", 1, pr)
    if prof: a("s_waitcnt vmcnt(0)")
    pr.stamp("rend"); pr.stamp("c1", cyc=True)
    if opts.get("dbgout"): pr.to_debug(opts["dbgout"], 15, [pr.n - 2])
    pr.flush(SL["LAYER"]); names[1] = list(pr.names)
    a.label("L_end"); a("s_endpgm")
    e = Asm(); e.label("L_epoch"); P0.gen_epoch(e)
    code = finish(a.lines, "main") + pad_hazards(tail.lines) + finish(e.lines, "epoch") + ["L_code_end:", "s_endpgm"]
    s = HEADER
    if prof: s += "; PROF " + repr(names) + "\n"
    s += f"; @launch grid=(256,1,1) block=(256,1,1) lds={A1_LDS}\n"
    s += '.amdgcn_target "amdgcn-amd-amdhsa--gfx950"\n.text\n' + "\n".join(code) + '\n.section .rodata,"a"\n' + descriptor(K, 512, 256)
    return s

if __name__ == "__main__":
    out = sys.argv[1] if len(sys.argv) > 1 else f"/code/{NAME}.s"
    opts = dict(kv.split("=") for kv in sys.argv[2:])
    opts = {k: int(v) for k, v in opts.items()}
    open(out, "w").write(build(opts))
```

```python
from gen_common import *
from gen_common import _uid
import math

XCH = 147456
A1_LDS = XCH + 4*3072

DIAG = [0]
A1R = [8]
def a1_ids(a):
    R = A1R[0]; lg = R.bit_length() - 1; hl = 5 - lg
    a(f"s_lshr_b32 s20, s{S_X}, {lg-1}", f"s_lshl_b32 s20, s20, {lg}", f"s_lshr_b32 s21, s{S_I}, {hl}", "s_add_u32 s20, s20, s21")
    a(f"s_and_b32 s21, s{S_X}, {R//2 - 1}", f"s_lshl_b32 s21, s21, {hl}", f"s_and_b32 s22, s{S_I}, {(1 << hl) - 1}", "s_add_u32 s21, s21, s22")

def warm_items(sL, dst):
    R = A1R[0]; hl = 5 - (R.bit_length() - 1)
    nq = -(-(PQ_TASK << hl) // (128*1024)); npo = -(-(8*PO_TASK) // (128*1024))
    out = [f"s_mul_i32 s48, s{sL['LAYER']}, {OOB}", f"s_lshl_b32 s49, s{S_I}, 2", f"s_add_u32 s49, s49, s{S_WAVE}",
           f"s_mul_i32 s50, s49, {npo*1024}", "s_add_u32 s50, s50, s48", f"s_add_u32 s50, s50, {PO}",
           f"s_mul_i32 s49, s49, {nq*1024}", "s_add_u32 s48, s48, s49", f"s_and_b32 s49, s{S_X}, {R//2 - 1}",
           f"s_mul_i32 s49, s49, {PQ_TASK << hl}", "s_add_u32 s48, s48, s49", f"s_add_u32 s48, s48, {PQ}"]
    for reg, n in ((48, nq), (50, npo)):
        for q in range(n):
            if q and q % 4 == 0: out.append(f"s_add_u32 s{reg}, s{reg}, 4096")
            out.append(("vm", f"buffer_load_dwordx4 v[{dst}:{dst+3}], v{V_L16}, {WS}, s{reg} offen offset:{(q % 4)*1024}", ("warm", 0)))
    return out

def a1_weight_items(a, share=36, n=36, ids=True):
    if ids: a1_ids(a)
    else:
        a("s_mov_b64 s[28:29], s[20:21]"); a1_ids(a); a("s_mov_b32 s30, s21", "s_mov_b64 s[20:21], s[28:29]")
    a(f"s_mul_i32 s32, s{21 if ids else 30}, {PQ_TASK}", f"s_add_u32 s32, s32, {PQ}", f"s_mul_i32 s33, s{S_WAVE}, {share*1024}", "s_add_u32 s32, s32, s33")
    return dma_items(n, 32, 33)

ACC, RING, NW = 32, 216, 8
HA = ACC + 64
acc = lambda t, j: ACC + (2*t + j)*4

def gen_a1_front(a, sL, pr, layer, valq=(), stq=(), shadow=None, cp="sc1"):
    vm = VM(a); valq = list(valq); stq = list(stq)
    VB = [V_L16, 4, 5]; VH = [[6, 7, 8], [9, 10, 11]]
    VHL = 3
    a1_ids(a)
    a("s_lshl_b32 s24, s20, 3", "s_sub_u32 s25, s24, 1", "s_max_i32 s35, s25, 0", f"s_mul_i32 s25, s35, {TILE}",
      f"s_lshl_b32 s26, s{S_WAVE}, 1", "s_add_u32 s36, s24, s26", f"s_mul_i32 s24, s36, {TILE}")
    a(f"s_add_u32 s26, s24, s{sL['XN']}", f"s_add_u32 s27, s26, {TILE}", f"s_add_u32 s28, s25, s{sL['XN']}")
    a(f"v_add_u32 v4, 0x10000, v{V_L16}", f"v_add_u32 v5, 0x20000, v{V_L16}")
    a(f"s_cmp_eq_u32 s{S_WAVE}, 3", f"s_cselect_b32 s29, 0, s{S_WAVE}", "s_cselect_b32 s31, 16, 9", "s_lshl_b32 s30, s29, 10")
    a(f"v_and_b32 v12, 15, v{V_LANE}", f"v_mov_b32 v13, {OOB}", "v_cmp_le_u32 vcc, s31, v12", f"v_cndmask_b32 v{VHL}, v13, v{V_L16}, vcc")
    for h, t0 in enumerate((2, 5)):
        a(f"s_add_u32 s31, s30, {t0*1024}")
        for n in range(3): a(f"v_add_u32 v{VH[h][n]}, s31, v{VB[n]}")
    a("s_lshl_b32 s22, s36, 1", "s_lshl_b32 s23, s35, 1", "s_add_u32 s23, s23, 1", f"v_and_b32 v16, 3, v{V_LANE}", "v_add_u32 v16, s22, v16",
      "v_mov_b32 v17, s23", f"v_cmp_eq_u32 vcc, 4, v{V_LANE}", "v_cndmask_b32 v16, v16, v17, vcc")
    if layer == 0:
        a("s_lshr_b32 s22, s21, 1", "s_lshl_b32 s22, s22, 5", "s_and_b32 s23, s21, 1", "s_mul_i32 s23, s23, 12", "s_add_u32 s22, s22, s23", "s_sub_u32 s22, s22, 8",
          f"v_add_u32 v17, s22, v{V_LANE}", f"v_subrev_u32 v14, 8, v{V_LANE}", "v_cmp_gt_u32 vcc, 12, v14", "v_cndmask_b32 v16, v16, v17, vcc")
        a(f"s_and_b32 s22, s{S_I}, 7", "s_lshl_b32 s22, s22, 5", f"v_add_u32 v17, s22, v{V_LANE}", f"v_subrev_u32 v14, 24, v{V_LANE}",
          "v_cmp_gt_u32 vcc, 8, v14", "v_cndmask_b32 v16, v16, v17, vcc")
    a(f"v_lshlrev_b32 v16, {FS}, v16", f"s_add_u32 s22, s{sL['FL']}, {FL_R}")
    if layer == 0:
        await_flags(a, 16, 22)
        pr.stamp("qgo")
        shadow(a1_weight_items(a))
        pr.stamp("wiss")
    else:
        commit(a)
        await_flags(a, 16, 22)
    pr.stamp("a1go")
    xt = {}
    def xload(k):
        out = ["s_add_u32 s26, s26, 4096", "s_add_u32 s27, s27, 4096", "s_add_u32 s28, s28, 4096"] if k % 4 == 0 and k else []
        return out + [(k, f"buffer_load_dwordx4 a[{72*j+4*k}:{72*j+4*k+3}], v{V_L16 if j < 2 else VHL}, {WS}, s{26+j} offen offset:{(k % 4)*1024} {cp}") for j in range(3)]
    def emit(x):
        if isinstance(x, tuple): xt[x[0]] = vm.op(x[1])
        else: a(x)
    BURST = 8
    for k in range(BURST):
        for x in xload(k): emit(x)
    memq = [x for k in range(BURST, 18) for x in xload(k)]
    a(f"v_lshrrev_b32 v13, 4, v{V_LANE}", "v_lshlrev_b32 v14, 2, v13", "v_sub_u32 v14, v12, v14")
    for r in range(4):
        a(f"v_subrev_u32 v15, {r}, v14", f"v_cmp_gt_u32 s[{52+2*r}:{53+2*r}], 8, v15", f"v_cmp_gt_i32 s[{44+2*r}:{45+2*r}], -8, v15")
    a("s_and_b32 s31, s20, 7", f"s_or_b32 s31, s31, s{S_WAVE}", "s_cmp_eq_u32 s31, 0")
    for r in range(4): a(f"s_cselect_b64 s[{60+2*r}:{61+2*r}], 0, s[{44+2*r}:{45+2*r}]")
    pr.stamp("a1iss")
    if layer == 0: vm.wait(0); a("s_barrier")
    pr.stamp("a1bar")
    seq = []
    for k0 in range(0, 18, 2):
        for t in list(range(8)) + ["h0", "h1"]:
            seq += [(k0, t), (k0+1, t)]
    def rd(n):
        k, t = seq[n]; w = RING + 4*(n % NW)
        if isinstance(t, str):
            off = k*8192; base = VH[int(t[1])]
        else:
            off = (k*8 + t)*1024; base = VB
        return f"ds_read_b128 a[{w}:{w+3}], v{base[off // 65536]} offset:{off % 65536}"
    PF_ = 6
    for n in range(PF_): a(rd(n))
    issued = PF_; nm = 0
    for n in range(0, len(seq), 2):
        k0, t = seq[n]
        if t == 0: vm.wait(xt[k0+1])
        if t == 0: pr.stamp(f"a1k{k0}")
        a(f"s_waitcnt lgkmcnt({issued - n - 2})")
        jl = [2] if isinstance(t, str) else [0, 1]
        swapped = t == "h1" or (not isinstance(t, str) and t >= 5)
        for j in jl:
            d = HA + 4*int(t[1]) if isinstance(t, str) else acc(t, j)
            for c in range(2):
                w = f"a[{RING + 4*((n+c) % NW)}:{RING + 4*((n+c) % NW) + 3}]"
                x = f"a[{72*j + 4*(k0+c)}:{72*j + 4*(k0+c) + 3}]"
                A, B = (x, w) if swapped else (w, x)
                a(f"v_mfma_f32_16x16x32_bf16 v[{d}:{d+3}], {A}, {B}, {'0' if k0+c == 0 else f'v[{d}:{d+3}]'}")
                nm += 1; room = 2 - (1 if j == jl[-1] and c == 1 else 0)
                if (len(jl) == 1 or c == 1) and issued < len(seq):
                    a(rd(issued)); issued += 1; room -= 1
                if memq and nm % 4 == 1:
                    while not isinstance(memq[0], tuple): emit(memq.pop(0))
                    emit(memq.pop(0)); room = 0
                elif not memq and stq and nm % 4 == 1 and len(valq) <= 12*(len(stq) - 1):
                    vm.op(stq.pop(0)); room = 1
                while valq and room > 0: a(valq.pop(0)); room -= 1
    assert not valq, len(valq)
    for x in stq: vm.op(x)
    pr.stamp('a1gemm')

def gen_a1_tail(a, sL, pr, npo, cp="sc1"):
    vm = VM(a); outer_a = a
    KP, K0, K1 = 104, 110, 116
    VV = [122, 128, 134]
    QO = [[140, 144], [148, 152]]
    HC, XR_ = 156, 160
    def cvt(dst, src): outer_a(f"v_cvt_pk_bf16_f32 v{dst}, v{src}, v{src+1}", f"v_cvt_pk_bf16_f32 v{dst+1}, v{src+2}, v{src+3}")
    KT = [K0, K1]
    cvt(K1, acc(2, 1)); cvt(K1+4, acc(3, 1)); cvt(XR_, acc(4, 1))
    for n in range(3): cvt(VV[n]+4, acc(5+n, 1))
    cvt(HC, HA); cvt(HC+2, HA+4)
    a(f"v_lshlrev_b32 v14, 3, v{V_LANE}", f"s_mul_i32 s31, s{S_WAVE}, 3072", f"s_add_u32 s32, s31, {XCH}", "v_add_u32 v15, s32, v14")
    a("s_lshl_b32 s33, s29, 9", f"s_add_u32 s33, s33, {XCH}", "v_add_u32 v16, s33, v14")
    a(f"s_cmp_eq_u32 s{S_WAVE}, 3", "s_cbranch_scc1 L_a1_noxch")
    a(f"ds_write_b64 v16, v[{HC}:{HC+1}]", f"ds_write_b64 v16, v[{HC+2}:{HC+3}] offset:1536")
    for n, r in enumerate([K1, K1+4, XR_, VV[0]+4, VV[1]+4, VV[2]+4]):
        a(f"ds_write_b64 v15, v[{r}:{r+1}] offset:{3072 + 512*n}")
    a.label("L_a1_noxch")
    cvt(K0, acc(2, 0)); cvt(K0+4, acc(3, 0))
    for n in range(3): cvt(VV[n]+2, acc(5+n, 0))
    for j in range(2):
        q0, q1 = QO[j]; x = acc(4, j)
        cvt(q0, acc(0, j)); cvt(q1+2, acc(1, j))
        a(f"v_cvt_pk_bf16_f32 v{q0+2}, v{x}, v{x+1}", f"v_cvt_pk_bf16_f32 v{q1+1}, v{x+2}, v{x+3}",
          f"v_mov_b32 v{q0+3}, 0", f"v_mov_b32 v{q1}, 0", f"v_mov_b32 v{KT[j]+2}, 0", f"v_mov_b32 v{KT[j]+3}, 0")
        a(f"v_permlane16_swap_b32 v{q0+2}, v{KT[j]+2}", f"v_permlane16_swap_b32 v{q1+1}, v{KT[j]+3}")
    a(f"v_add_u32 v17, 16, v12", "v_add_u32 v18, 32, v12", f"v_cmp_gt_u32 vcc, 16, v{V_LANE}", "v_cndmask_b32 v17, v18, v17, vcc",
      "v_lshlrev_b32 v17, 3, v17", "v_add_u32 v17, s32, v17")
    a("s_waitcnt lgkmcnt(0)", "s_barrier")
    pr.stamp("a1xch")
    a(f"s_and_b32 s37, s{S_I}, 7", f"s_mul_i32 s37, s37, {PO_TASK}", f"s_mul_i32 s38, s{S_WAVE}, {23*1024}", "s_add_u32 s37, s37, s38", f"s_add_u32 s37, s37, {PO}")
    po = dma_items(23, 37, 38, s_tmp=39); cut = 6*npo
    a = Asm()
    a(f"ds_read_b64 v[{KP}:{KP+1}], v15", f"ds_read_b64 v[{KP+4}:{KP+5}], v15 offset:512", f"ds_read_b64 v[{KP+2}:{KP+3}], v17 offset:1024")
    for n in range(3): a(f"ds_read_b64 v[{VV[n]}:{VV[n]+1}], v15 offset:{1536 + 512*n}")
    units = [(1, 0), (1, 1), (0, 0), (0, 1)]
    SS = lambda u: 32 + 8*u
    PP = lambda u: 64 + 4*u
    OO = lambda u: 80 + 8*u if u < 3 else 164
    for u, (j, h) in enumerate(units):
        if u == 2: a("s_waitcnt lgkmcnt(0)")
        prev = (K0 if j == 1 else KP) + 2*h; cur = KT[j] + 2*h; q = QO[j][h]
        a(f"v_mfma_f32_16x16x32_bf16 v[{SS(u)}:{SS(u)+3}], v[{prev}:{prev+3}], v[{q}:{q+3}], 0",
          f"v_mfma_f32_16x16x32_bf16 v[{SS(u)+4}:{SS(u)+7}], v[{cur}:{cur+3}], v[{q}:{q+3}], 0")
    a(f"v_mov_b32 v18, {f32(-3.0e38)}", f"s_mov_b32 s34, {f32(math.log2(math.e) / math.sqrt(DH))}")
    MX, TM, SM = 20, 24, 28
    for r in range(8):
        for u, (j, h) in enumerate(units):
            m = (52 + 2*(r-4)) if r >= 4 else ((44 if j == 1 else 60) + 2*r)
            a(f"v_cndmask_b32 v{SS(u)+r}, v18, v{SS(u)+r}, s[{m}:{m+1}]")
    for u in range(4): a(f"v_max3_f32 v{MX+u}, v{SS(u)}, v{SS(u)+1}, v{SS(u)+2}")
    for u in range(4): a(f"v_max3_f32 v{MX+u}, v{MX+u}, v{SS(u)+3}, v{SS(u)+4}")
    for u in range(4): a(f"v_max3_f32 v{MX+u}, v{MX+u}, v{SS(u)+5}, v{SS(u)+6}")
    for u in range(4): a(f"v_max_f32 v{MX+u}, v{MX+u}, v{SS(u)+7}")
    xreduce(a, [MX+u for u in range(4)], TM, op="v_max_f32")
    for u in range(4): a(f"v_mul_f32 v{MX+u}, s34, v{MX+u}")
    for r in range(8):
        for u in range(4): a(f"v_fma_f32 v{SS(u)+r}, v{SS(u)+r}, s34, -v{MX+u}")
        for u in range(4): a(f"v_exp_f32 v{SS(u)+r}, v{SS(u)+r}")
    for u in range(4): a(f"v_add_f32 v{SM+u}, v{SS(u)}, v{SS(u)+1}")
    for r in range(2, 8):
        for u in range(4): a(f"v_add_f32 v{SM+u}, v{SM+u}, v{SS(u)+r}")
    xreduce(a, [SM+u for u in range(4)], TM)
    for u in range(4): a(f"v_rcp_f32 v{SM+u}, v{SM+u}")
    for r in range(8):
        for u in range(4): a(f"v_mul_f32 v{SS(u)+r}, v{SS(u)+r}, v{SM+u}")
    for u in range(4):
        for d in range(4): a(f"v_cvt_pk_bf16_f32 v{PP(u)+d}, v{SS(u)+2*d}, v{SS(u)+2*d+1}")
    for u, (j, h) in enumerate(units):
        va = VV[h] + 2*j; vx = VV[2] + 2*j
        a(f"v_mfma_f32_16x16x32_bf16 v[{OO(u)}:{OO(u)+3}], v[{va}:{va+3}], v[{PP(u)}:{PP(u)+3}], 0",
          f"v_mfma_f32_16x16x32_bf16 v[{OO(u)+4}:{OO(u)+7}], v[{vx}:{vx+3}], v[{PP(u)}:{PP(u)+3}], 0")
    att = a.lines; a = outer_a
    weave(a, att, po[:cut], start=8, every=10)
    a("v_lshlrev_b32 v14, 3, v12", f"v_mov_b32 v15, {OOB}", f"v_cmp_gt_u32 vcc, 16, v{V_LANE}", "v_cndmask_b32 v14, v15, v14, vcc")
    a(f"s_add_u32 s26, s24, s{sL['OB']}", "s_lshl_b32 s27, s21, 10", "s_add_u32 s27, s27, s26",
      "s_lshl_b32 s28, s21, 7", f"s_add_u32 s28, s28, {64*256}", "s_add_u32 s28, s28, s26", f"s_add_u32 s30, s27, {TILE}", f"s_add_u32 s31, s28, {TILE}")
    for j in (1, 0):
        u0 = units.index((j, 0)); u1 = units.index((j, 1)); o = 172 + 8*j
        cvt(o, OO(u0)); cvt(o+2, OO(u1))
        a(f"v_cvt_pk_bf16_f32 v{o+4}, v{OO(u0)+4}, v{OO(u0)+5}", f"v_cvt_pk_bf16_f32 v{o+5}, v{OO(u1)+6}, v{OO(u1)+7}")
        vm.op(f"buffer_store_dwordx4 v[{o}:{o+3}], v{V_L16}, {WS}, s{30 if j else 27} offen {stpol()}")
        vm.op(f"buffer_store_dwordx2 v[{o+4}:{o+5}], v14, {WS}, s{31 if j else 28} offen {stpol()}")
    a("s_lshl_b32 s26, s20, 4", "s_add_u32 s26, s26, s21")
    set_flag_addr(a, 26, FL_O, sL["FL"])
    pr.stamp('a1att')
    return po[cut:]
```

```python
from gen_common import *
from gen_f import f_ids, f_early
from gen_a1 import A1R

def gen_a2(a, sL, pr, opts, po_rest, cp="sc1"):
    vm = VM(a)
    ACC, RES, RING, NW = 32, 56, 216, 8
    VU8, VLB = 4, 5
    a(f"s_lshr_b32 s20, s{S_I}, 3", f"s_lshl_b32 s21, s{S_X}, 2", "s_add_u32 s20, s20, s21", "s_lshl_b32 s20, s20, 2",
      f"s_add_u32 s20, s20, s{S_WAVE}")
    a(f"s_and_b32 s21, s{S_I}, 7")
    a(f"s_mul_i32 s24, s20, {TILE}", f"s_add_u32 s25, s24, s{sL['OB']}")
    a(f"s_mul_i32 s26, s21, {9*256}", "s_add_u32 s26, s26, s24", f"s_add_u32 s27, s26, s{sL['XR']}")
    a(f"v_and_b32 v6, 15, v{V_LANE}", f"v_lshrrev_b32 v7, 4, v{V_LANE}", "v_lshlrev_b32 v8, 4, v6", "v_lshl_add_u32 v8, v7, 3, v8",
      "v_add_u32 v8, 2048, v8", f"v_mov_b32 v9, {OOB}", f"v_cmp_gt_u32 vcc, 32, v{V_LANE}", f"v_cndmask_b32 v{VU8}, v9, v8, vcc")
    a(f"v_add_u32 v{VLB}, 0x10000, v{V_L16}")
    f_ids(a, opts)
    R = A1R[0]; lg = R.bit_length() - 1; hl = 5 - lg
    a("s_lshr_b32 s22, s20, 3", "s_lshl_b32 s22, s22, 4", "v_add_u32 v10, s22, v6")
    a(f"v_subrev_u32 v12, 16, v{V_LANE}", "v_min_u32 v12, 26, v12", "v_mul_u32_u24 v16, 57, v12", "v_lshrrev_b32 v16, 9, v16", "v_mad_u32_u24 v12, v16, 63, v12",
      "s_mul_i32 s22, s42, 9", "v_add_u32 v12, s22, v12",
      "v_and_b32 v16, 7, v12", "v_lshrrev_b32 v12, 3, v12", f"v_lshrrev_b32 v17, {lg-1}, v16", f"v_lshlrev_b32 v17, {lg}, v17",
      f"v_lshrrev_b32 v18, {hl}, v12", "v_add_lshl_u32 v17, v17, v18, 4", f"v_and_b32 v16, {R//2 - 1}, v16", f"v_lshl_add_u32 v17, v16, {hl}, v17",
      f"v_and_b32 v12, {(1 << hl) - 1}, v12", "v_add_u32 v17, v17, v12",
      f"s_cmp_eq_u32 s{sL['LAYER']}, 0", "s_cselect_b32 s22, 16, 64", f"v_cmp_le_u32 vcc, s22, v{V_LANE}", "v_cndmask_b32 v10, v10, v17, vcc",
      f"v_lshlrev_b32 v10, {FS}, v10", f"s_add_u32 s22, s{sL['FL']}, {FL_O}")
    order = [(k0 + c, t) for k0 in range(0, 18, 2) for t in range(5) for c in range(2)]
    def rd(n):
        k, t = order[n]; off = (k*5 + t)*1024; w = RING + 4*(n % NW)
        return f"ds_read_b128 a[{w}:{w+3}], v{V_L16 if off < 65536 else VLB} offset:{off % 65536}"
    PF_ = 6
    a("v_lshlrev_b32 v11, 3, v6", "v_lshl_add_u32 v11, v7, 8, v11")
    commit(a)
    pr.stamp("a1end")
    a(po_rest)
    await_flags(a, 10, 22)
    pr.stamp("a2go")
    xt = {}
    def xload(k):
        if k % 4 == 0 and k: a("s_add_u32 s25, s25, 4096")
        if k < 16: xt[k] = vm.op(f"buffer_load_dwordx4 a[{4*k}:{4*k+3}], v{V_L16}, {WS}, s25 offen offset:{(k % 4)*1024} {ldpol()}")
        else:
            for h in range(2):
                xt[k] = vm.op(f"buffer_load_dwordx2 a[{4*k+2*h}:{4*k+2*h+1}], v11, {WS}, s25 offen offset:{(k % 4)*1024 + 128*h} {ldpol()}")
    BURST = 12
    for k in range(BURST): xload(k)
    pr.stamp("a2iss")
    a("s_barrier")
    for n in range(PF_): a(rd(n))
    early = f_early(a, opts)
    nxt = BURST
    res = [f"buffer_load_dwordx4 v[{RES}:{RES+3}], v{V_L16}, {WS}, s27 offen sc1",
           f"buffer_load_dwordx4 v[{RES+4}:{RES+7}], v{V_L16}, {WS}, s27 offen offset:1024 sc1",
           f"buffer_load_dwordx2 v[{RES+8}:{RES+9}], v{VU8}, {WS}, s27 offen sc1"]
    for n, (k, t) in enumerate(order):
        if n % 10 == 0: vm.wait(xt[k+1]); pr.stamp(f'a2k{k}')
        issued = min(len(order), n + PF_)
        if n % 2 == 0: a(f"s_waitcnt lgkmcnt({max(0, issued - n - 2)})")
        w = RING + 4*(n % NW); d = ACC + 4*t
        a(f"v_mfma_f32_16x16x32_bf16 v[{d}:{d+3}], a[{w}:{w+3}], a[{4*k}:{4*k+3}], {'0' if k == 0 else f'v[{d}:{d+3}]'}")
        if n + PF_ < len(order): a(rd(n + PF_))
        if nxt < 18 and n % 4 == 1: xload(nxt); nxt += 1
        elif res and n % 4 == 1: rt = [vm.op(res.pop(0))]
        elif early and n % 4 == 1:
            while not early[0].startswith("buffer"): a(early.pop(0))
            vm.op(early.pop(0))
    assert not early
    pr.stamp('a2gemm')
    vm.wait(rt[-1])
    for t in range(5):
        for h in range(2):
            r = RES + 2*t + h; d = ACC + 4*t + 2*h; u = 68 + 2*((2*t+h) % 4)
            a(f"v_lshlrev_b32 v{u}, 16, v{r}", f"v_and_b32 v{u+1}, 0xffff0000, v{r}",
              f"v_add_f32 v{d}, v{d}, v{u}", f"v_add_f32 v{d+1}, v{d+1}, v{u+1}")
    OUT = 80
    for t in range(5):
        for h in range(2): a(f"v_cvt_pk_bf16_f32 v{OUT+2*t+h}, v{ACC+4*t+2*h}, v{ACC+4*t+2*h+1}")
    a(f"s_add_u32 s27, s26, s{sL['X1']}")
    vm.op(f"buffer_store_dwordx4 v[{OUT}:{OUT+3}], v{V_L16}, {WS}, s27 offen {stpol()}")
    vm.op(f"buffer_store_dwordx4 v[{OUT+4}:{OUT+7}], v{V_L16}, {WS}, s27 offen offset:1024 {stpol()}")
    vm.op(f"buffer_store_dwordx2 v[{OUT+8}:{OUT+9}], v{VU8}, {WS}, s27 offen {stpol()}")
    a(f"v_add_f32 v10, v{ACC}, v{ACC+1}", f"v_mul_f32 v11, v{ACC}, v{ACC}", f"v_mul_f32 v13, v{ACC+1}, v{ACC+1}", "v_mov_b32 v12, 0")
    for e in range(2, 20, 2):
        a(f"v_add_f32 v10, v10, v{ACC+e}", f"v_add_f32 v12, v12, v{ACC+e+1}",
          f"v_fmac_f32 v11, v{ACC+e}, v{ACC+e}", f"v_fmac_f32 v13, v{ACC+e+1}, v{ACC+e+1}")
    a("v_add_f32 v10, v10, v12", "v_add_f32 v11, v11, v13")
    xreduce(a, [10, 11], 12)
    a("v_lshlrev_b32 v8, 3, v6", f"v_cmp_gt_u32 vcc, 16, v{V_LANE}", "v_cndmask_b32 v8, v9, v8, vcc")
    a("s_lshl_b32 s27, s20, 10", "s_lshl_b32 s28, s21, 7", "s_add_u32 s27, s27, s28", f"s_add_u32 s27, s27, s{sL['ST']}")
    vm.op(f"buffer_store_dwordx2 v[10:11], v8, {WS}, s27 offen {stpol()}")
    a("s_lshr_b32 s27, s20, 2", "s_lshl_b32 s27, s27, 3", "s_add_u32 s27, s27, s21")
    set_flag_addr(a, 27, FL_X, sL["FL"])
    pr.stamp('a2st')
```

```python
from asmlib import *
from layout import *

KA = dict(x=0, wqkv=8, wo=16, wg=32, wu=40, wd=48, out=56, dbg=64, ws=72)
WS = "s[8:11]"
S_WAVE = 4
S_X, S_I = 5, 6
V_LANE, V_L16 = 1, 2
OOB = 0x7ff00000

class VM:
    def __init__(self, a): self.a = a; self.n = 0
    def op(self, text):
        self.a(text); self.n += 1
        return self.n
    def count_after(self, tag): return self.n - tag
    def wait(self, tag):
        self.a(f"s_waitcnt vmcnt({min(63, self.n - tag)})")

def srd(a, dst, src, nbytes):
    a(f"s_mov_b32 s{dst}, s{src}", f"s_and_b32 s{dst+1}, s{src+1}, 0xffff",
      f"s_mov_b32 s{dst+2}, {nbytes}", f"s_mov_b32 s{dst+3}, 0x20000")

def entry(a, name, nwg, end):
    a(".p2align 8"); a(f".globl {name}"); a(f".type {name},@function"); a.label(name)
    a(f"s_cmp_ge_u32 s2, {nwg}", f"s_cbranch_scc1 {end}")

def common(a):
    a(f"s_load_dwordx2 s[12:13], s[0:1], {KA['ws']}")
    a(f"v_and_b32 v{V_LANE}, 63, v0", "v_lshrrev_b32 v3, 6, v0", f"v_lshlrev_b32 v{V_L16}, 4, v{V_LANE}")
    a(f"v_readfirstlane_b32 s{S_WAVE}, v3")
    a(f"s_and_b32 s{S_X}, s2, 7", f"s_lshr_b32 s{S_I}, s2, 3")
    a("s_waitcnt lgkmcnt(0)")
    srd(a, 8, 12, WS_BYTES)

def xreduce(a, regs, tmp, steps=("16", "32"), op="v_add_f32"):
    for st in steps:
        if st == "8":
            for r in regs: a(f"{op}_dpp v{r}, v{r}, v{r} row_ror:8 row_mask:0xf bank_mask:0xf")
            continue
        for n, r in enumerate(regs): a(f"v_mov_b32 v{tmp+n}, v{r}")
        for n, r in enumerate(regs): a(f"v_permlane{st}_swap_b32 v{r}, v{tmp+n}")
        for n, r in enumerate(regs): a(f"{op} v{r}, v{r}, v{tmp+n}")

_uid = [0]
NONCE = 68
SPIN = [0x100000]
LOCAL = [0]
def stpol(): return "" if LOCAL[0] else "sc1"
def ldpol(): return ["sc1", "sc1", "", "nt"][LOCAL[0]]
def plpol(): return ["sc1", "sc1", "nt", "nt"][LOCAL[0]]
def flag_store(a, s_addr, v_id=0, pol="sc1"):
    flag_regs(a, v_id)
    a(f"buffer_store_dwordx2 v[14:15], v13, {WS}, s{s_addr} offen {pol}")

def flag_regs(a, v_id=0):
    a(f"v_mov_b32 v13, {OOB}", f"v_cmp_eq_u32 vcc, 0, v{v_id}", f"v_mov_b32 v14, s{NONCE}", f"v_mov_b32 v15, s{NONCE+1}", "v_cndmask_b32 v13, v13, 0, vcc")

S_FLAG = 14
def commit(a):
    flag_regs(a)
    a("s_waitcnt vmcnt(0)", "s_barrier", f"buffer_store_dwordx2 v[14:15], v13, {WS}, s{S_FLAG} offen {stpol()}")

def set_flag_addr(a, s_idx, base, s_fl=None):
    a(f"s_lshl_b32 s{S_FLAG}, s{s_idx}, {FS}", f"s_add_u32 s{S_FLAG}, s{S_FLAG}, {base}")
    if s_fl is not None: a(f"s_add_u32 s{S_FLAG}, s{S_FLAG}, s{s_fl}")

POLL_CFG = dict(sleep=0)
def await_flags(a, v_off, s_base, pol=None):
    _uid[0] += 1; u = _uid[0]; sl = POLL_CFG["sleep"]
    a("s_mov_b32 s52, 0")
    a.label(f"L_poll{u}")
    a(f"buffer_load_dwordx2 v[14:15], v{v_off}, {WS}, s{s_base} offen {pol or plpol()}", "s_add_u32 s52, s52, 1", "s_waitcnt vmcnt(0)",
      f"v_cmp_ne_u64 vcc, s[{NONCE}:{NONCE+1}], v[14:15]", f"s_cmp_ge_u32 s52, {SPIN[0]}", f"s_cbranch_scc1 L_got{u}", "s_and_b64 exec, exec, vcc")
    if sl: a(f"s_cbranch_execz L_got{u}", f"s_sleep {sl}", f"s_branch L_poll{u}")
    else: a(f"s_cbranch_execnz L_poll{u}")
    a.label(f"L_got{u}")
    a("s_mov_b64 exec, -1")

def div(a, dst, src, d, maxv):
    sh = 16; m = (1 << sh) // d + 1
    assert all((v * m) >> sh == v // d for v in range(maxv)), (d, maxv)
    a(f"s_mul_i32 s{dst}, s{src}, {m}", f"s_lshr_b32 s{dst}, s{dst}, {sh}")

def dma_items(nfrag, s_src, s_lds, s_tmp=40, pol="sc1"):
    out = []
    for q0 in range(0, nfrag, 4):
        out += [f"s_add_u32 m0, s{s_lds}, {q0*1024}", f"s_add_u32 s{s_tmp}, s{s_src}, {q0*1024}"]
        out += [f"buffer_load_dwordx4 v{V_L16}, {WS}, s{s_tmp} offen offset:{q*1024} {pol} lds" for q in range(min(4, nfrag - q0))]
    return out

def weave(a, main, side, start=0, every=1):
    side = list(side); n = 0
    for x in main:
        a(x); n += 1
        if side and n >= start and (n - start) % every == 0 and not x.startswith(("s_cmp", "v_cmp", "s_cbranch", "s_waitcnt")) and not x.endswith(":"):
            while side and side[0].startswith("s_"): a(side.pop(0))
            if side: a(side.pop(0))
    for x in side: a(x)

def f32(x):
    import struct
    return "0x%08x" % struct.unpack("<I", struct.pack("<f", x))[0]

class Prof:
    regs = list(range(78, 100, 2)) + list(range(54, 68, 2)) + [100]
    sets = {1: "a1go a1k2 a1gemm a1end a2go a2gemm a2end fgo s36 s162 fst fend rgo rsum rend".split(),
            6: "piss px pst pend qgo wiss a1go a1k2 a1gemm a1att a1end a2go a2end fgo s36 rend".split(),
            7: "p1 p2 pep pxr pga piss px pst pend rend".split(),
            8: "p1 p2 piss rxr rbar px pst pdr qgo rend".split(),
            2: "fgo fiss fbar s0 s2 s4 s8 s12 s18 s36 s141 s144 s150 s156 s162 rend".split(),
            3: "a1go a1iss a1bar a1k2 a1k8 a1gemm a1xch a1att a1end a2go a2iss a2k2 a2gemm a2st a2end rend".split(),
            5: "s218 fst fend rpre rgo r1 r4 rsum rxr rbar rst rw3 rw2 rw1 rw0 rend".split(),
            4: "s18 s36 s54 s72 s90 s108 s126 s144 s162 s170 s178 s186 s194 s210 s234 fst".split()}
    def __init__(self, a, on): self.a = a; self.on = on; self.n = 0; self.names = []
    def stamp(self, name, cyc=False):
        if not self.on or (name not in self.sets[self.on] and name not in ("c0", "c1", "start")): return
        assert self.n < len(self.regs)
        r = self.regs[self.n]; self.n += 1; self.names.append(name)
        if self.on == 4: cyc = True
        self.a(f"s_mem{'' if cyc else 'real'}time s[{r}:{r+1}]")
    def to_debug(self, wg, first, idx):
        a = self.a; _uid[0] += 1; u = _uid[0]
        a("s_waitcnt lgkmcnt(0)", f"s_cmp_eq_u32 s2, {wg}", f"s_cbranch_scc0 L_nd{u}", f"s_cmp_eq_u32 s{S_WAVE}, 0", f"s_cbranch_scc0 L_nd{u}",
          f"s_load_dwordx2 s[12:13], s[0:1], {KA['dbg']}", "v_mov_b32 v250, 0", "s_waitcnt lgkmcnt(0)")
        srd(a, 44, 12, 256)
        for n, i in enumerate(idx): a(f"s_sub_u32 s40, s{self.regs[i]}, s3", f"v_writelane_b32 v250, s40, {n}")
        a(f"v_lshlrev_b32 v251, 2, v{V_LANE}", f"v_mov_b32 v252, {OOB}", f"v_cmp_gt_u32 vcc, {len(idx)}, v{V_LANE}", "v_cndmask_b32 v251, v252, v251, vcc",
          f"buffer_store_dword v250, v251, s[44:47], 0 offen offset:{4*first}")
        a.label(f"L_nd{u}")
    def flush(self, s_slot):
        if not self.on: return
        a = self.a
        a("s_waitcnt lgkmcnt(0)", "v_mov_b32 v250, 0")
        for i in range(self.n): a(f"v_writelane_b32 v250, s{self.regs[i]}, {i}")
        a(f"s_lshl_b32 s100, s{s_slot}, 18", "s_lshl_b32 s101, s2, 10", "s_add_u32 s100, s100, s101", f"s_lshl_b32 s101, s{S_WAVE}, 8",
          "s_add_u32 s100, s100, s101", f"s_add_u32 s100, s100, {PROF}", f"v_lshlrev_b32 v251, 2, v{V_LANE}",
          f"buffer_store_dword v250, v251, {WS}, s100 offen")
```

```python
from gen_common import *
from gen_a1 import warm_items
import math

STAGE, NS, PER = 24, 6, 6
SLOT0 = 4
NPRE = 4
F_LDS = STAGE * NS * 1024
NSTAGE = (486 + STAGE - 1) // STAGE
MF = "v_mfma_f32_16x16x32_bf16"

PKCOST = [2]
def cost(x):
    if callable(x): return 1
    if isinstance(x, tuple): return 2 if " 0 offen" in x[1] or "store" in x[1] else 3
    return 2 if x.split()[0] in TRANS else (PKCOST[0] if x.startswith("v_pk_") else 1)

_ins = {}
def ins_of(x):
    t = x[1] if isinstance(x, tuple) else x
    if t not in _ins: _ins[t] = Ins(t)
    return _ins[t]

def pick(q, fits, window=12):
    rd = set(); wr = set()
    for i, x in enumerate(q[:window]):
        I = ins_of(x)
        if fits(x) and not (I.rd & wr or I.wr & wr or I.wr & rd): return i
        rd |= I.rd; wr |= I.wr
    return None

def f_ids(a, opts):
    if opts.get("mapping", 0) == 0:
        a(f"s_and_b32 s40, s{S_X}, 1", "s_lshl_b32 s40, s40, 2", f"s_lshr_b32 s41, s{S_I}, 3", "s_add_u32 s40, s40, s41",
          f"s_lshr_b32 s41, s{S_X}, 1", "s_lshl_b32 s41, s41, 3", f"s_and_b32 s42, s{S_I}, 7", "s_add_u32 s41, s41, s42")
    elif opts.get("mapping") == 2:
        a(f"s_mov_b32 s40, s{S_X}", f"s_mov_b32 s41, s{S_I}")
    elif opts.get("mapping") == 3:
        a(f"s_and_b32 s40, s{S_X}, 3", "s_lshl_b32 s40, s40, 1", f"s_lshr_b32 s41, s{S_I}, 4", "s_add_u32 s40, s40, s41",
          f"s_lshr_b32 s41, s{S_X}, 2", "s_lshl_b32 s41, s41, 4", f"s_and_b32 s42, s{S_I}, 15", "s_add_u32 s41, s41, s42")
    else:
        a(f"s_lshr_b32 s40, s{S_I}, 2", f"s_lshl_b32 s41, s{S_X}, 2", f"s_and_b32 s42, s{S_I}, 3", "s_add_u32 s41, s41, s42")
    a("s_lshr_b32 s42, s41, 2", "s_and_b32 s43, s41, 3")

VW, sWd = 3, 22
def ring_dma(stage, wpol="sc1"):
    slot = ((stage + SLOT0) % NS)*STAGE*1024; out = []
    if stage == NSTAGE - 1:
        return [f"s_lshl_b32 s21, s{S_WAVE}, 11", f"s_add_u32 m0, s21, {slot}", f"s_sub_u32 s21, s21, s{sWd}",
                f"s_add_u32 s21, s21, {STAGE*1024 - 4096}", f"v_add_u32 v{VW}, s21, v{VW}"] + \
               [("vm", f"buffer_load_dwordx4 v{VW}, {WS}, 0 offen offset:{q*1024} {wpol} lds", ("w", stage)) for q in range(2)]
    for q0 in (0, 4):
        out += [f"s_add_u32 m0, s{sWd}, {slot + q0*1024}"]
        if stage or q0: out += [f"v_add_u32 v{VW}, {4096 if q0 else STAGE*1024 - 4096}, v{VW}"]
        out += [("vm", f"buffer_load_dwordx4 v{VW}, {WS}, 0 offen offset:{q*1024} {wpol} lds", ("w", stage)) for q in range(min(4, PER - q0))]
    return out

def f_early(a, opts):
    a(f"s_mul_i32 s{sWd}, s{S_WAVE}, {PER*1024}", f"s_mul_i32 s23, s41, {PF_TASK}", f"s_add_u32 s23, s23, s{sWd}", f"s_add_u32 s23, s23, {PF}",
      f"v_add_u32 v{VW}, s23, v{V_L16}")
    return [x[1] if isinstance(x, tuple) else x for st in range(2) for x in ring_dma(st)]

def gen_f(a, sL, tail, pr, opts, cp="sc1"):
    vm = VM(a); tag = {}; PKCOST[0] = opts.get('pk', 0) or 2
    wpol = 'sc1 nt' if opts.get('wnt', 0) else 'sc1'
    VJ = [V_L16, 4, 5, 6]; VB = [V_L16, 7, 8]
    VODD, VFS, VFL, VFV, VQ = 9, 10, 11, 12, 252
    VJH = [248, 249, 250, 251]
    XV, RING, NW = 16, 48, 8
    HOWN, TMP, HS, CON = 144, 208, 224, 232
    ACC = [80, 112, HOWN + 32]
    aset = lambda pos: ACC[[0, 1, 2, 0, 1, 0, 1, 0, 1][pos]]
    OUT = 112
    sX, sH, sM, sP, sF, sPJ = 20, 24, 28, 31, 34, 36
    dma = lambda stage: ring_dma(stage, wpol)
    def rd(n):
        off = ((n + SLOT0*STAGE) % (STAGE*NS))*1024; w = RING + 4*(n % NW)
        return f"ds_read_b128 v[{w}:{w+3}], v{VB[off // 65536]} offset:{off % 65536}"
    def xreg(k, j): return f"a[{(4*k+j)*4}:{(4*k+j)*4+3}]" if k < 16 else f"v[{XV + (4*(k-16)+j)*4}:{XV + (4*(k-16)+j)*4+3}]"
    def xload(k):
        out = [f"s_add_u32 s48, s{sX}, {(k >> 2)*4096}"] if k % 4 == 0 else []
        return out + [("vm", f"buffer_load_dwordx4 {xreg(k, j)}, v{VJ[j]}, {WS}, s48 offen offset:{(k & 3)*1024} {ldpol()}", ("x", k)) for j in range(4)]
    def emit(x):
        if callable(x): x()
        elif isinstance(x, tuple): tag[x[2]] = vm.op(x[1])
        else: a(x)
    a("s_lshl_b32 s44, s40, 4", f"s_lshl_b32 s45, s{S_WAVE}, 2", "s_add_u32 s44, s44, s45")
    a(f"s_mul_i32 s46, s44, {TILE}", f"s_add_u32 s{sX}, s46, s{sL['X1']}")
    for j in range(1, 4): a(f"v_add_u32 v{VJ[j]}, {j*TILE}, v{V_L16}")
    a(f"v_lshlrev_b32 v{VJH[0]}, 3, v{V_LANE}")
    for j in range(1, 4): a(f"v_add_u32 v{VJH[j]}, {j*TILE}, v{VJH[0]}")
    a(f"v_and_b32 v13, 15, v{V_LANE}", f"v_lshrrev_b32 v14, 4, v{V_LANE}")
    a(f"v_add_u32 v{VB[1]}, 0x10000, v{V_L16}", f"v_add_u32 v{VB[2]}, 0x20000, v{V_L16}")
    a(f"v_and_b32 v{VODD}, 1, v14", f"v_mul_u32_u24 v{VODD}, {TILE}, v{VODD}", "v_lshrrev_b32 v15, 1, v14", "v_lshlrev_b32 v15, 8, v15",
      "v_lshl_add_u32 v15, v13, 4, v15", f"v_add_u32 v{VODD}, v{VODD}, v15")
    a(f"v_and_b32 v{VFL}, 3, v{V_LANE}", f"v_lshlrev_b32 v{VFL}, {FS}, v{VFL}", f"s_lshl_b32 s49, s43, {FS}", f"v_mov_b32 v{VFS}, {OOB}",
      "v_mov_b32 v15, s49", f"v_cmp_eq_u32 vcc, 0, v{V_LANE}", f"v_cndmask_b32 v{VFS}, v{VFS}, v15, vcc")
    a("s_lshl_b32 s49, s40, 3", "s_add_u32 s49, s49, s42")
    a("s_lshl_b32 s50, s49, 2", f"s_add_u32 s50, s50, s{S_WAVE}", f"s_lshl_b32 s50, s50, {2+FS}", f"s_add_u32 s{sF}, s50, s{sL['FL']}", f"s_add_u32 s{sF}, s{sF}, {FL_H}")
    a("s_lshl_b32 s49, s49, 4", "s_add_u32 s49, s49, s45", f"s_mul_i32 s49, s49, {TILE}", f"s_add_u32 s49, s49, s{sL['HB']}")
    for rel in range(4):
        a(f"s_add_u32 s50, s43, {rel}", "s_and_b32 s50, s50, 3", "s_mul_i32 s50, s50, 9", "s_add_u32 s50, s50, 1", "s_lshr_b32 s50, s50, 1",
          "s_lshl_b32 s50, s50, 10", f"s_add_u32 s{sH+rel}, s49, s50")
    a(f"s_add_u32 s{sM}, s49, {4*1024}", f"s_add_u32 s{sM+1}, s49, {13*1024}", "s_cmp_ge_u32 s43, 2", f"s_cselect_b32 s50, s{sM+1}, s{sM}",
      "s_and_b32 s51, s43, 1", "s_lshl_b32 s51, s51, 9", f"s_add_u32 s{sM+2}, s50, s51")
    a(f"s_mul_i32 s50, s42, {ACT}", "s_add_u32 s50, s50, s46", f"s_add_u32 s50, s50, s{sL['PART']}", "s_lshl_b32 s51, s43, 12",
      f"s_add_u32 s{sP}, s50, s51", "s_lshl_b32 s51, s43, 9", "s_add_u32 s50, s50, s51", f"s_add_u32 s{sP+1}, s50, 16384", f"s_add_u32 s{sP+2}, s{sP+1}, {2*TILE}")
    for j in range(4): a(f"s_add_u32 s{sPJ+j}, s{sP}, {j*TILE}")
    a(f"v_lshlrev_b32 v{VQ}, 4, v13", f"v_lshl_add_u32 v{VQ}, v14, 9, v{VQ}")
    a("s_lshl_b32 s35, s40, 5", "s_add_u32 s35, s35, s41", f"s_lshl_b32 s35, s35, {FS}",
      f"s_add_u32 s35, s35, s{sL['FL']}", f"s_add_u32 s35, s35, {FL_P}")
    a("v_lshlrev_b32 v17, 3, v13", "v_lshl_add_u32 v17, v14, 8, v17", "s_lshl_b32 s47, s44, 10", f"s_add_u32 s47, s47, s{sL['ST']}")
    a(f"s_lshl_b32 s49, s44, {1+FS}", f"s_add_u32 s49, s49, s{sL['FL']}", f"s_add_u32 s49, s49, {FL_X}", f"v_and_b32 v16, 7, v{V_LANE}", f"v_lshlrev_b32 v16, {FS}, v16")
    commit(a)
    pr.stamp("a2end")
    for st in range(2, NPRE):
        for x in dma(st): emit(x)
    for n in range(6): a(rd(n))
    await_flags(a, 16, 49)
    pr.stamp("fgo")
    BURST = opts.get('fburst', 6)
    for k in range(BURST):
        for x in xload(k): emit(x)
        if k == 1:
            for j in range(4):
                for h in range(2):
                    r = HOWN + 4*j + 2*h
                    tag["st"] = vm.op(f"buffer_load_dwordx2 v[{r}:{r+1}], v17, {WS}, s47 offen offset:{j*1024 + h*128} {ldpol()}")
    pr.stamp("fiss")
    pr.stamp("fbar")

    def consts():
        b = Asm(); sr = []
        for j in range(4):
            r = HOWN + 4*j
            b(f"v_add_f32 v{r}, v{r}, v{r+2}", f"v_add_f32 v{r+1}, v{r+1}, v{r+3}"); sr += [r, r+1]
        xreduce(b, sr, HOWN + 16)
        k1 = -2.0 * math.sqrt(2.0 / math.pi) * math.log2(math.e); k2 = k1 * 0.044715
        rows = []
        for j in range(4):
            r = HOWN + 4*j; c = CON + 4*j
            rows.append([f"v_mul_f32 v{r}, {f32(1/576)}, v{r}", f"v_mul_f32 v{r+1}, {f32(1/576)}, v{r+1}", f"v_fma_f32 v{r+1}, -v{r}, v{r}, v{r+1}",
                         f"v_max_f32 v{r+1}, 0, v{r+1}", f"v_add_f32 v{c+2}, {f32(1e-5)}, v{r+1}", f"v_rsq_f32 v{r}, v{c+2}",
                         f"v_mul_f32 v{c}, {f32(k1)}, v{r}", f"v_mul_f32 v{r+1}, v{r}, v{r}", f"v_mul_f32 v{r+1}, v{r+1}, v{r}",
                         f"v_mul_f32 v{c+1}, {f32(k2)}, v{r+1}"])
        for col in zip(*rows): b(list(col))
        return b.lines
    def gelu(pos, tmp=TMP):
        acc = aset(pos); out = []
        for j in range(4):
            c = CON + 4*j
            for h in range(2):
                st = []
                for e in range(2):
                    g = acc + 4*j + 2*h + e; u = g + 16; t = tmp + 4*((2*j + h) % 2) + 2*e
                    st.append([f"v_mul_f32 v{t}, v{g}, v{g}", f"v_fma_f32 v{t}, v{t}, v{c+1}, v{c}", f"v_mul_f32 v{t}, v{t}, v{g}",
                               f"v_exp_f32 v{t}, v{t}", f"v_mul_f32 v{t+1}, v{g}, v{u}", f"v_fma_f32 v{t}, v{t}, v{c+2}, v{c+2}",
                               f"v_rcp_f32 v{t}, v{t}", f"v_mul_f32 v{t+1}, v{t+1}, v{t}"])
                t = tmp + 4*((2*j + h) % 2)
                if opts.get("pk", 0):
                    g = acc + 4*j + 2*h; P = lambda r: f"v[{r}:{r+1}]"; w = t + 2
                    out += [f"v_pk_mul_f32 {P(t)}, {P(g)}, {P(g)}",
                            f"v_pk_fma_f32 {P(t)}, {P(t)}, {P(c)}, {P(c)} op_sel:[0,1,0] op_sel_hi:[1,1,0]",
                            f"v_pk_mul_f32 {P(t)}, {P(t)}, {P(g)}", f"v_exp_f32 v{t}, v{t}", f"v_exp_f32 v{t+1}, v{t+1}",
                            f"v_pk_mul_f32 {P(w)}, {P(g)}, {P(g+16)}",
                            f"v_pk_fma_f32 {P(t)}, {P(t)}, {P(c+2)}, {P(c+2)} op_sel_hi:[1,0,0]",
                            f"v_rcp_f32 v{t}, v{t}", f"v_rcp_f32 v{t+1}, v{t+1}", f"v_pk_mul_f32 {P(w)}, {P(w)}, {P(t)}"]
                    dst = HS + 2*j + h if pos == 0 else HOWN + 16*((pos-1)//2) + 4*j + 2*((pos-1) % 2) + h
                    out.append(f"v_cvt_pk_bf16_f32 v{dst}, v{w}, v{w+1}")
                    continue
                for x, y in zip(*st): out += [x, y]
                dst = HS + 2*j + h if pos == 0 else HOWN + 16*((pos-1)//2) + 4*j + 2*((pos-1) % 2) + h
                out.append(f"v_cvt_pk_bf16_f32 v{dst}, v{t+1}, v{t+3}")
            if pos == 0:
                out.append(("vm", f"buffer_store_dwordx2 v[{HS+2*j}:{HS+2*j+1}], v{VJH[j]}, {WS}, s{sM+2} offen {stpol()}", ("hs", 0)))
            elif pos % 2 == 0:
                p = (pos-1)//2; r = HOWN + 16*p + 4*j
                out.append(("vm", f"buffer_store_dwordx4 v[{r}:{r+3}], v{VJ[j]}, {WS}, s{sH} offen offset:{p*1024} {stpol()}", ("hs", pos)))
        return out
    hreg = {0: ("v", HOWN), 1: ("v", HOWN+16), 2: ("v", HOWN+32), 11: ("v", HOWN+48)}
    for n, pos in enumerate(range(3, 10)): hreg[pos] = ("a", 16*n)
    hreg[10] = ("v", XV); hreg[12] = ("v", XV+16); hreg[13] = ("v", aset(7)); hreg[14] = ("v", aset(7)+16)
    hreg[15] = ("v", aset(8)); hreg[16] = ("v", aset(8)+16); hreg[17] = ("v", CON)
    def hfrag(pos, j):
        k, r = hreg[pos]; return f"{k}[{r+4*j}:{r+4*j+3}]"
    def hload(pos):
        rel, p = KPOS[pos]
        if rel == "mix":
            k, r = hreg[pos]
            return [("vm", f"buffer_load_dwordx2 {k}[{r+4*j+2*h}:{r+4*j+2*h+1}], v{VJH[j]}, {WS}, s{sM+p} offen offset:{512*h} {ldpol()}", ("h", pos))
                    for j in range(4) for h in range(2)]
        return [("vm", f"buffer_load_dwordx4 {hfrag(pos, j)}, v{VJ[j]}, {WS}, s{sH+rel} offen offset:{p*1024} {ldpol()}", ("h", pos)) for j in range(4)]
    done = set()
    def set_flag(val, keys):
        def w():
            assert all(k in done for k in keys), (val, keys)
            vm.wait(max(tag[("hs", k)] for k in keys))
        return [f"v_mov_b32 v{VFV}, s{NONCE}", f"v_mov_b32 v{VFV+1}, s{NONCE+1}", f"s_add_u32 s53, s{sF}, {(val-1) << (10+FS)}", w,
                ("vm", f"buffer_store_dwordx2 v[{VFV}:{VFV+1}], v{VFS}, {WS}, s53 offen {stpol()}", ("fs", val))]
    def poll(val):
        return [f"s_add_u32 s23, s{sF}, {(val-1) << (10+FS)}", ("vm", f"buffer_load_dwordx2 v[14:15], v{VFL}, {WS}, s23 offen {plpol()}", ("fl", val))]
    def check(val):
        def f():
            vm.wait(tag[("fl", val)])
            a(f"v_cmp_eq_u64 vcc, s[{NONCE}:{NONCE+1}], v[14:15]", "s_nop 0", "s_cmp_eq_u64 vcc, exec", f"s_cbranch_scc0 L_f_slow{val}")
            a.label(f"L_f_back{val}")
            tail(f"L_f_slow{val}:", "s_mov_b32 s52, 0", f"L_f_spin{val}:",
                 f"buffer_load_dwordx2 v[14:15], v{VFL}, {WS}, s23 offen {plpol()}", "s_add_u32 s52, s52, 1", "s_waitcnt vmcnt(0)",
                 f"v_cmp_eq_u64 vcc, s[{NONCE}:{NONCE+1}], v[14:15]", f"s_cmp_gt_u32 s52, {SPIN[0]}", f"s_cbranch_scc1 L_f_back{val}",
                 "s_cmp_eq_u64 vcc, exec", f"s_cbranch_scc0 L_f_spin{val}", f"s_branch L_f_back{val}")
        return f
    def epilogue(tiles):
        out = []
        if len(tiles) == 4:
            Q = tiles[0] // 4
            for j in range(4):
                for h in range(2):
                    t = TMP + 8*h; pk = HS + 4*h
                    out += [f"v_accvgpr_read_b32 v{t + 4*rr + jj}, a{OUT + ((4*Q + jj)*4 + j)*4 + 2*h + rr}" for rr in range(2) for jj in range(4)]
                    out += [f"v_cvt_pk_bf16_f32 v{pk+d}, v{t+2*d}, v{t+2*d+1}" for d in range(4)]
                    out.append(("vm", f"buffer_store_dwordx4 v[{pk}:{pk+3}], v{VQ}, {WS}, s{sPJ+j} offen offset:{Q*2048 + h*256} {stpol()}", ("o", Q)))
        else:
            for jp in range(2):
                t = TMP + 8*jp; pk = HS + 4*jp
                for n in range(2):
                    r = OUT + (8*4 + 2*jp + n)*4
                    out += [f"v_accvgpr_read_b32 v{t+4*n+e}, a{r+e}" for e in range(4)]
                out += [f"v_cvt_pk_bf16_f32 v{pk+d}, v{t+2*d}, v{t+2*d+1}" for d in range(4)]
                out += [f"v_permlane16_swap_b32 v{pk}, v{pk+2}", f"v_permlane16_swap_b32 v{pk+1}, v{pk+3}"]
                out.append(("vm", f"buffer_store_dwordx4 v[{pk}:{pk+3}], v{VODD}, {WS}, s{sP+1+jp} offen {stpol()}", ("o", 4)))
        return out

    steps = []
    def gstep(pos, kp, mat, wait=None):
        d = [f"v[{aset(pos) + 16*mat + 4*j}:{aset(pos) + 16*mat + 4*j + 3}]" for j in range(4)]
        steps.append(dict(d=d, b=[[xreg(2*kp + c, j) for c in range(2)] for j in range(4)], first=kp == 0, wait=wait))
    for kp in range(9):
        for pos in range(2):
            for mat in range(2): gstep(pos, kp, mat, ("x", 2*kp+1) if pos == 0 and mat == 0 else None)
    for pos in range(2, 9):
        for kp in range(9):
            for mat in range(2): gstep(pos, kp, mat)
    P2 = len(steps)
    for start, n, tiles in KBLOCKS:
        for t in tiles:
            for c0 in range(0, n, 2):
                d = [f"a[{OUT + (t*4+j)*4}:{OUT + (t*4+j)*4 + 3}]" for j in range(4)]
                need_h = [p for p in (start+c0, start+c0+1) if KPOS[p][0] != 0]
                steps.append(dict(d=d, b=[[hfrag(start + c0 + c, j) for c in range(2)] for j in range(4)], first=start + c0 == 0,
                                  wait=("h", need_h[-1]) if need_h and t == 0 else None))
    NSTEP = len(steps); fin = NSTEP - 25 + OS
    mem_at = {}
    front_at = {}
    def add(s, items, front=False): (front_at if front else mem_at).setdefault(s, []).extend(items)
    for k in range(BURST, 18): add(0, xload(k))
    add(0, dma(4))
    add(121, set_flag(1, (0, 2, 4))); add(132, poll(1)); add(143, [check(1)])
    add(154, set_flag(2, (6,)))
    for pos, at in ((3, 147), (4, 148), (5, 155), (6, 156), (7, 167), (8, 168), (9, 169), (10, 179)): add(at, hload(pos))
    add(166, poll(2)); add(188, set_flag(3, (8,)), front=True)
    add(184, [check(2)] + hload(12) + hload(13)); add(190, hload(14)); add(195 + OS//2, poll(3), front=True)
    add(204 + OS, [check(3)] + hload(15) + hload(16) + hload(17))
    if opts.get("warm", 0): add(opts.get("warm_at", 216), warm_items(sL, 248))
    jobs = [("c", consts(), 8, 30)]
    jobs += [(0, gelu(0), 36, 54), (1, gelu(1), 36, 72), (2, gelu(2, TMP + 8), 54, 115), (3, gelu(3), 72, 90)]
    jobs += [(p, gelu(p), 18*(p+1), 18*(p+2)) for p in range(4, 7)] + [(7, gelu(7), 144, 163), (8, gelu(8), 162, 178)]
    jobs += [(f"e{Q}", epilogue(range(4*Q, 4*Q + 4)), fin + 8*Q + 8, fin + 16 if Q == 0 else NSTEP + 1) for Q in range(2)]
    jobs = [dict(name=n, q=list(q), t0=t0, t1=t1) for n, q, t0, t1 in jobs]
    after = {5: 2, 8: 7}; GAP = opts.get('gap', 5)
    issued = 6; late = []; memq = []; gap = 4; pend_rd = 0; bar_next = False
    for s, st in enumerate(steps):
        memq += mem_at.get(s, [])
        if s in front_at:
            cut = next((i for i, x in enumerate(memq) if i == 0 or isinstance(memq[i-1], tuple) and not isinstance(x, tuple)), len(memq))
            memq[cut:cut] = front_at[s]
        for jb in jobs:
            if jb["t1"] == s:
                if jb["q"]: late.append((jb["name"], len(jb["q"])))
                while jb["q"]: emit(jb["q"].pop(0))
                done.add(jb["name"])
        if st["wait"]:
            while st["wait"] not in tag or any(isinstance(x, tuple) and x[2] == st["wait"] for x in memq):
                late.append(("mem", s)); emit(memq.pop(0))
            vm.wait(tag[st["wait"]])
        assert issued >= min(486, 2*s + 2)
        a(f"s_waitcnt lgkmcnt({issued - 2*s - 2})")
        pr.stamp(f"s{s}")
        if opts.get("trace") and memq: print(s, len(memq), [x[2] for x in memq if isinstance(x, tuple)][:1])
        for n in range(8):
            j, c = n // 2, n % 2
            if opts.get("order", 0) == 1 and j % 2: c = 1 - c
            if opts.get("order", 0) == 2: j, c = n % 4, n // 4
            w = RING + 4*((2*s + c) % NW)
            fresh = st["first"] and (n < 4 if opts.get("order", 0) == 2 else n % 2 == 0)
            a(f"{MF} {st['d'][j]}, v[{w}:{w+3}], {st['b'][j][c]}, {'0' if fresh else st['d'][j]}")
            room = 2 - (1 if n == 7 else 0)
            gap += 1
            if n in (2, 5): pend_rd += 1
            if n == 0 and issued < 486 and issued % STAGE == 0:
                b = issued // STAGE
                while memq and any(isinstance(x, tuple) and x[2] == ("w", b) for x in memq): late.append(("dma", s)); emit(memq.pop(0))
                if b >= NPRE: vm.wait(tag[("w", b)]); room -= 1
                bar_next = True
            elif bar_next:
                a("s_barrier"); bar_next = False
                if b + 4 < NSTAGE: memq = memq + dma(b + 4)
                continue
            if pend_rd and issued < 486:
                a(rd(issued)); issued += 1; pend_rd -= 1; room -= 1
            xs = any(isinstance(x, tuple) and x[2][0] == "x" for x in memq)
            while memq and not isinstance(memq[0], tuple) and room > 0: emit(memq.pop(0)); room -= 1
            need = 4 if xs or (memq and isinstance(memq[0], tuple) and memq[0][2] in (("h", 15), ("h", 16), ("h", 17))) else GAP
            if memq and isinstance(memq[0], tuple) and gap >= need and (room == 2 or gap >= need + 2):
                room -= cost(memq[0]); emit(memq.pop(0)); gap = 0
            g = 8*s + n
            live = sorted((jb for jb in jobs if jb["q"] and 8*jb["t0"] + 3 <= g and after.get(jb["name"], "c") in done | {"c"}), key=lambda jb: jb["t1"])
            for jb in live:
                left = sum(cost(x) for x in jb["q"]); slots = 8*jb["t1"] - g - 2
                lazy = jb is live[-1] and isinstance(jb["name"], int) and jb["name"] in (6,) and left < 1.15*slots - 6
                while jb["q"] and not lazy:
                    urgent = left > 1.9*slots
                    i = pick(jb["q"], lambda x: urgent or (cost(x) <= room and not (isinstance(x, tuple) and gap < 2)))
                    if i is None: break
                    x = jb["q"].pop(i); cx = cost(x)
                    emit(x); room -= cx; left -= cx
                    if isinstance(x, tuple): gap = 0
                    if room <= 0: break
                if not jb["q"]: done.add(jb["name"])
                if room <= 0: break
    assert not memq, memq
    if any(x[1] > 12 for x in late): print("late items", late)
    for jb in jobs:
        for x in jb["q"]: emit(x)
    for x in epilogue([8]): emit(x)
    a(f"s_mov_b32 s{S_FLAG}, s35")
    pr.stamp("fst")
```

```python
from gen_common import *
from gen_common import _uid
from gen_r import gen_r

GR, RAW, AD, PKD, MU = 52, 76, 156, 176, 20
VL = 254
NFIRST = [20]
NPRE_CENTER = [8]
PFPOL = ['sc1']
NT = ['nt', 'nt']
LX = 159744

def gathers(a, vm):
    a(f"s_lshl_b32 s40, s{S_I}, 2", f"s_add_u32 s40, s40, s{S_WAVE}")
    a(f"v_and_b32 v6, 15, v{V_LANE}", f"v_lshrrev_b32 v7, 4, v{V_LANE}", "v_lshrrev_b32 v8, 2, v6", f"v_mov_b32 v12, {OOB}")
    a("s_cmp_ge_u32 s40, 96", "s_cbranch_scc1 L_g_o"); a("; @if")
    n0 = vm.n
    srd(a, 44, 58, D * 3 * D * 2)
    a("s_cmp_ge_u32 s40, 48", "s_cselect_b32 s41, 1, 0", "s_mul_i32 s42, s41, 48", "s_sub_u32 s40, s40, s42", "s_mul_i32 s40, s40, 3",
      f"s_lshl_b32 s42, s{S_X}, 1", "s_add_u32 s41, s41, s42")
    a(f"s_mul_i32 s38, s41, {PQ_TASK}", "s_lshl_b32 s42, s40, 10", "s_add_u32 s38, s38, s42", f"s_add_u32 s38, s38, {PQ}", "s_mul_i32 s41, s41, 36")
    a("v_and_b32 v9, 1, v6", "v_bfe_u32 v10, v6, 1, 1", "v_mul_u32_u24 v10, 18, v10", "v_add_u32 v9, v9, v10",
      "v_mul_u32_u24 v10, 576, v8", "v_add_u32 v9, v9, v10", f"v_mul_u32_u24 v10, {8*3456}, v7")
    for f in range(3):
        a(f"s_add_u32 s42, s40, {f}", "s_and_b32 s43, s42, 7", "s_lshr_b32 s42, s42, 3", f"s_mul_i32 s42, s42, {32*3456}")
        a("s_mov_b32 s35, 0")
        for t, base in enumerate([0, 18, 576, 594, 16, 1152, 1170, 1168]):
            if base: a(f"s_cmp_eq_u32 s43, {t}", f"s_cselect_b32 s35, {base}, s35")
        a("s_add_u32 s35, s35, s41", "s_mov_b32 s36, 16", "s_cmp_eq_u32 s43, 4", "s_cselect_b32 s36, 8, s36", "s_cmp_eq_u32 s43, 7", "s_cselect_b32 s36, 4, s36",
          "s_cmp_lg_u32 s36, 16", "s_cselect_b64 vcc, -1, 0", "v_cndmask_b32 v11, v6, v9, vcc", "v_add_u32 v11, s35, v11", "v_lshl_add_u32 v11, v11, 1, v10",
          "v_cmp_gt_u32 vcc, s36, v6", "v_cndmask_b32 v11, v12, v11, vcc")
        for i in range(8):
            vm.op(f"buffer_load_ushort v{GR + 8*f + i}, v11, s[44:47], s42 offen {NT[0]}")
            if i < 7: a("s_add_u32 s42, s42, 3456")
    a("s_branch L_g_done")
    a("; @else"); a.label("L_g_o")
    vm.n = n0
    srd(a, 44, 60, D * D * 2)
    a("s_sub_u32 s40, s40, 96", "s_mul_i32 s40, s40, 3")
    a(f"s_mul_i32 s38, s{S_X}, {PO_TASK}", "s_lshl_b32 s42, s40, 10", "s_add_u32 s38, s38, s42", f"s_add_u32 s38, s38, {PO}",
      "s_cmp_ge_u32 s40, 90", f"s_cselect_b32 s38, {OOB}, s38", f"s_mul_i32 s41, s{S_X}, 72")
    a("v_and_b32 v9, 3, v6", "v_lshl_add_u32 v9, v8, 3, v9")
    for f in range(3):
        a(f"s_add_u32 s42, s40, {f}")
        div(a, 43, 42, 5, 100)
        a("s_mul_i32 s35, s43, 5", "s_sub_u32 s42, s42, s35")
        a("s_lshr_b32 s35, s42, 1", "s_lshl_b32 s35, s35, 5", "s_and_b32 s36, s42, 1", "s_lshl_b32 s36, s36, 2", "s_add_u32 s35, s35, s36", "s_add_u32 s35, s35, s41")
        a("s_cmp_eq_u32 s42, 4", "s_cselect_b64 vcc, -1, 0", "s_cselect_b32 s36, 8, 16", "v_cndmask_b32 v11, v9, v6, vcc", "v_add_u32 v11, s35, v11")
        a(f"s_mul_i32 s35, s43, {36*1152}", "s_sub_u32 s37, s43, 16", f"s_mul_i32 s37, s37, {288*1152}", "s_cmp_lt_u32 s43, 16",
          "s_cselect_b32 s35, s35, s37", "s_cselect_b32 s37, 4, 72", "s_cselect_b32 s34, 0, 1", "s_mul_i32 s37, s37, 1152",
          "v_mul_lo_u32 v10, s37, v7", "v_lshl_add_u32 v11, v11, 1, v10", "v_cmp_gt_u32 vcc, s36, v6", "v_cndmask_b32 v11, v12, v11, vcc")
        for i in range(8):
            ra = 18*(i >> 2) + (i & 3); rb = 36*(i >> 2) + [16, 17, 34, 35][i & 3]
            a(f"s_mul_i32 s42, s34, {(rb - ra)*1152}", f"s_add_u32 s42, s42, {ra*1152}", "s_add_u32 s42, s42, s35")
            vm.op(f"buffer_load_ushort v{GR + 8*f + i}, v11, s[44:47], s42 offen {NT[0]}")
    a("; @endif"); a.label("L_g_done")
    return vm.n

def w1_load(kk, i):
    r = RAW + 16*kk + 2*i
    return [f"buffer_load_dwordx2 v[{r}:{r+1}], v{VL if kk < 4 else VL+1}, s[48:51], s53 offen {RAWPOL[0]}", f"s_add_u32 s53, s53, {9216 if i < 7 else 25*9216}"]

def wd_load(kk, i):
    out = [f"s_add_u32 s43, s53, {(4*(i & 3) + 2*kk + (i >> 2))*1152}"]
    for Q in range(2):
        r = RAW + 40*kk + 16*Q + 2*i
        out.append(f"buffer_load_dwordx2 v[{r}:{r+1}], v{VL}, s[48:51], s43 offen offset:{128*Q} {RAWPOL[0]}")
    return out + [f"buffer_load_ushort v{RAW + 40*kk + 32 + i}, v{VL+1}, s[48:51], s43 offen offset:1024 {RAWPOL[0]}"]

W1_LOADS = []; WD_LOADS = []; RAWPOL = ["nt"]
def make_loads():
    W1_LOADS[:] = [x for kk in range(5) for i in range(8) for x in w1_load(kk, i)]
    WD_LOADS[:] = [x for kk in range(2) for i in range(8) for x in wd_load(kk, i)]

def by_type(a, name, w1, wd, none=None):
    a("s_cmp_ge_u32 s2, 144", f"s_cbranch_scc1 L_{name}_d", "; @if")
    w1()
    a(f"s_branch L_{name}_e", "; @else"); a.label(f"L_{name}_d")
    a("s_cmp_ge_u32 s2, 216", f"s_cbranch_scc1 L_{name}_n", "; @if")
    wd()
    if none: a(f"s_branch L_{name}_e")
    a("; @else"); a.label(f"L_{name}_n")
    if none: none()
    a("; @endif", "; @endif"); a.label(f"L_{name}_e")

def spread(a, v):
    for n0 in range(0, 20, 4):
        for n in range(n0, n0+4): a(f"v_readlane_b32 s{40 + n - n0}, v{v}, {n}")
        for n in range(n0, n0+4): a(f"v_add_u32 v{AD+n}, s{40 + n - n0}, v{V_L16}")

TOUCH = [None]
def touch(a, stride, s_base):
    if TOUCH[0] is None: return 0
    a(f"s_mul_i32 s35, s{S_WAVE}, {144*stride}", f"s_add_u32 s35, s35, s{s_base}", f"v_mul_u32_u24 v9, {stride}, v{V_LANE}",
      f"v_cmp_gt_u32 vcc, 16, v{V_LANE}", "v_cndmask_b32 v10, v12, v9, vcc")
    for n in range(3):
        a(f"buffer_load_dword a{4+n}, v{9 if n < 2 else 10}, s[48:51], s35 offen {TOUCH[0]}")
        if n < 2: a(f"s_add_u32 s35, s35, {64*stride}")
    return 3

def ffn_first(a):
    def w1():
        div(a, 40, 2, 72, 144)
        a("s_mul_i32 s41, s40, 72", "s_sub_u32 s41, s2, s41", "s_cmp_eq_u32 s40, 0", "s_cselect_b64 s[12:13], s[64:65], s[66:67]")
        srd(a, 48, 12, D * DF * 2)
        a("s_lshl_b32 s42, s41, 7", "v_lshlrev_b32 v9, 3, v6", f"v_mul_u32_u24 v10, {8*9216}, v7", f"v_add3_u32 v{VL}, v9, v10, s42")
        a(f"s_bitcmp1_b32 s{S_WAVE}, 0", "s_cselect_b64 vcc, -1, 0", f"v_cndmask_b32 v{VL+1}, v{VL}, v12, vcc")
        a(f"s_mul_i32 s43, s{S_WAVE}, 9", "s_add_u32 s43, s43, 1", "s_lshr_b32 s43, s43, 1", f"s_mul_i32 s53, s43, {32*9216}")
        nt = touch(a, 9216, 42)
        a(W1_LOADS[:2*NFIRST[0]])
        div(a, 42, 41, 9, 72)
        a("s_mul_i32 s35, s42, 9", "s_sub_u32 s41, s41, s35", "s_lshl_b32 s41, s41, 2", "s_lshl_b32 s42, s42, 2", "s_lshl_b32 s40, s40, 11",
          f"s_add_u32 s40, s40, {PF}", f"s_mov_b32 s35, {PF_TASK}")
        a(f"v_and_b32 v6, 3, v{V_LANE}", "v_add_u32 v6, s41, v6", "v_mul_u32_u24 v7, 57, v6", "v_lshrrev_b32 v7, 9, v7",
          "v_mul_u32_u24 v8, 9, v7", "v_sub_u32 v6, v6, v8", "v_add_u32 v8, 1, v6", "v_cmp_eq_u32 vcc, 9, v8", "v_cndmask_b32 v8, v8, 0, vcc",
          "v_and_b32 v9, 1, v7", "v_cmp_eq_u32 vcc, 0, v9", "v_cndmask_b32 v6, v6, v8, vcc",
          "v_add_u32 v7, s42, v7", "v_mul_lo_u32 v7, v7, s35", "v_add_u32 v7, s40, v7",
          f"v_lshrrev_b32 v8, 2, v{V_LANE}", "v_add_u32 v8, s43, v8", "v_and_b32 v9, 1, v8", "v_lshl_add_u32 v7, v9, 10, v7",
          "v_lshrrev_b32 v9, 1, v8", "v_lshlrev_b32 v9, 12, v9", "v_add_u32 v7, v7, v9",
          "v_lshl_add_u32 v9, v6, 12, v9", f"v_mul_u32_u24 v10, {36*1024}, v6", "v_cmp_gt_u32 vcc, 2, v6", "v_cndmask_b32 v9, v10, v9, vcc",
          "v_add_u32 v7, v7, v9", "v_cmp_gt_u32 vcc, 18, v8", "v_cndmask_b32 v7, v12, v7, vcc",
          f"s_bitcmp1_b32 s{S_WAVE}, 0", "s_cselect_b32 s41, 16, 20", f"v_cmp_gt_u32 vcc, s41, v{V_LANE}", "v_cndmask_b32 v7, v12, v7, vcc")
        spread(a, 7)
        a(f"s_waitcnt vmcnt({24 + nt + NFIRST[0]})")
    def wd():
        srd(a, 48, 62, D * DF * 2)
        a("s_sub_u32 s40, s2, 144", f"s_mul_i32 s53, s40, {64*1152}", f"s_lshl_b32 s41, s{S_WAVE}, 8", f"s_lshl_b32 s42, s{S_WAVE}, 5")
        a(f"v_mul_u32_u24 v10, {16*1152}, v7", "v_lshl_add_u32 v9, v6, 3, v10", f"v_add_u32 v{VL}, s41, v9",
          "v_lshl_add_u32 v9, v6, 1, v10", f"v_add_u32 v{VL+1}, s42, v9")
        nt = touch(a, 128, 53)
        a(WD_LOADS[:4*(NFIRST[0]//3)])
        div(a, 41, 40, 9, 72)
        a("s_mul_i32 s42, s41, 9", "s_sub_u32 s40, s40, s42", "s_lshl_b32 s40, s40, 1", "s_lshl_b32 s41, s41, 2", f"s_add_u32 s41, s41, s{S_WAVE}",
          f"s_mul_i32 s41, s41, {PF_TASK}", f"s_add_u32 s41, s41, {PF + 324*1024}")
        a(f"v_cmp_lt_u32 vcc, 8, v{V_LANE}", "v_cndmask_b32 v6, 0, 1, vcc", "v_mul_u32_u24 v7, 9, v6", f"v_sub_u32 v7, v{V_LANE}, v7", "v_add_u32 v6, s40, v6")
        a("v_mov_b32 v8, 0")
        for lim in (4, 8, 13): a(f"v_cmp_lt_u32 vcc, {lim}, v6", "v_addc_co_u32 v8, vcc, 0, v8, vcc")
        a("v_mul_u32_u24 v9, 9, v8", "v_add_u32 v9, 1, v9", "v_lshrrev_b32 v9, 1, v9", "v_sub_u32 v9, v6, v9",
          f"v_subrev_u32 v8, s{S_WAVE}, v8", "v_and_b32 v8, 3, v8",
          "v_mul_u32_u24 v10, 3, v9", "v_add3_u32 v10, v10, v8, 2", "v_add_u32 v11, 3, v10", "v_cmp_lt_u32 vcc, 1, v9", "v_cndmask_b32 v10, v10, v11, vcc",
          "v_cmp_eq_u32 vcc, 3, v9", "v_cndmask_b32 v9, v9, 11, vcc", "v_cmp_eq_u32 vcc, 0, v8", "v_cndmask_b32 v10, v10, v9, vcc",
          "v_cmp_eq_u32 vcc, 4, v6", "v_cndmask_b32 v10, v10, 9, vcc", "v_cmp_eq_u32 vcc, 13, v6", "v_cndmask_b32 v10, v10, 10, vcc")
        a("v_and_b32 v6, 30, v10", "v_and_b32 v8, 1, v10", "v_lshl_add_u32 v8, v7, 1, v8",
          "v_lshl_add_u32 v9, v6, 3, v8", "v_lshl_add_u32 v6, v7, 2, v10", f"v_add_u32 v6, {98 + 2*OS}, v6", "v_cmp_gt_u32 vcc, 14, v10", "v_cndmask_b32 v9, v6, v9, vcc",
          "v_add_u32 v6, 144, v10", "v_add_u32 v11, 112, v10", f"v_cmp_gt_u32 vcc, {2*OS}, v10", "v_cndmask_b32 v6, v6, v11, vcc", "v_cmp_eq_u32 vcc, 8, v7", "v_cndmask_b32 v9, v9, v6, vcc",
          "v_lshlrev_b32 v9, 10, v9", "v_add_u32 v9, s41, v9", f"v_cmp_gt_u32 vcc, 18, v{V_LANE}", "v_cndmask_b32 v9, v12, v9, vcc")
        spread(a, 9)
        a(f"s_waitcnt vmcnt({24 + nt + 3*(NFIRST[0]//3)})")
    def none():
        for n in range(20): a(f"v_mov_b32 v{AD+n}, v12")
        a("s_waitcnt vmcnt(24)")
    by_type(a, "l1", w1, wd, none)

def ffn_second(a):
    by_type(a, "l2", lambda: a(W1_LOADS[2*NFIRST[0]:]), lambda: a(WD_LOADS[4*(NFIRST[0]//3):]))

def quad_perm(a, raw, dst):
    for j in range(4):
        for d in range(4):
            a(f"v_perm_b32 v{dst + 4*j + d}, v{raw + 4*d + 2 + (j >> 1)}, v{raw + 4*d + (j >> 1)}, s{34 + (j & 1)}")

def ffn_transpose(o, side):
    o("s_mov_b32 s34, 0x05040100", "s_mov_b32 s37, s35", "s_mov_b32 s35, 0x07060302", "s_mov_b32 s38, 0x00003f80", "s_mov_b32 s39, 0x3f800000")
    for j in range(4): o(f"v_mov_b32 v{MU+j}, 0")
    def w1():
        a = Asm()
        for r in range(4): a(f"v_mov_b32 v{68+r}, 0x3f803f80")
        for kk in range(5):
            quad_perm(a, RAW + 16*kk, PKD + 16*kk)
        for kk in range(5):
            for j in range(4):
                r = PKD + 16*kk + 4*j; d = 52 + 4*j
                a(f"v_mfma_f32_16x16x32_bf16 v[{d}:{d+3}], v[68:71], v[{r}:{r+3}], {'0' if kk == 0 else f'v[{d}:{d+3}]'}")
        a(f"v_and_b32 v72, 15, v{V_LANE}", "v_lshlrev_b32 v72, 4, v72", f"v_add_u32 v72, {LX}, v72", f"s_lshl_b32 s44, s{S_WAVE}, 2", "v_add_u32 v73, s44, v72")
        for j in range(4): a(f"ds_write_b32 v73, v{52 + 4*j} offset:{256*j}")
        a("s_waitcnt lgkmcnt(0)", "s_barrier")
        for j in range(4): a(f"ds_read_b128 v[{52+4*j}:{55+4*j}], v72 offset:{256*j}")
        a("s_waitcnt lgkmcnt(0)")
        for j in range(4): a(f"v_add_f32 v{52+4*j}, v{52+4*j}, v{53+4*j}", f"v_add_f32 v{54+4*j}, v{54+4*j}, v{55+4*j}")
        for j in range(4): a(f"v_add_f32 v{52+4*j}, v{52+4*j}, v{54+4*j}")
        for j in range(4): a(f"v_mul_f32 v{MU+j}, {f32(-1/576)}, v{52+4*j}")
        for n in range(NPRE_CENTER[0]): a(center_items(n))
        weave(o, a.lines, side, start=2, every=max(1, len(a.lines) // 38))
    def wd():
        a = Asm()
        for kk in range(2):
            for Q in range(2): quad_perm(a, RAW + 40*kk + 16*Q, PKD + 36*kk + 16*Q)
            for d in range(4):
                r = RAW + 40*kk + 32 + 2*d
                a(f"v_lshl_or_b32 v{PKD + 36*kk + 32 + d}, v{r+1}, 16, v{r}")
        weave(o, a.lines, side, start=2, every=2)
    by_type(o, "tr", w1, wd, lambda: o(side))
    o("s_mov_b32 s35, s37")

def center_items(n):
    t = 24; mu = MU + (n & 3); r = PKD + 4*n
    out = [f"v_dot2_f32_bf16 v{t + 2*d + h}, v{r+d}, s{38+h}, v{mu}" for d in range(4) for h in range(2)]
    return out + [f"v_cvt_pk_bf16_f32 v{r+d}, v{t + 2*d}, v{t + 2*d + 1}" for d in range(4)]

def store_item(n): return f"buffer_store_dwordx4 v[{PKD+4*n}:{PKD+4*n+3}], v{AD+n}, {WS}, 0 offen {PFPOL[0]}"

def gen_p0(a, pr, code_bytes, lds):
    vm = VM(a)
    a("s_getpc_b64 s[40:41]")
    a.label("L_warm_pc")
    a("s_lshr_b32 s42, s2, 3", "s_lshl_b32 s42, s42, 11", "v_lshlrev_b32 v10, 3, v0", "v_add_u32 v10, s42, v10", f"v_min_u32 v10, {code_bytes}, v10",
      "v_mov_b32 v11, s41", "v_add_co_u32 v10, vcc, s40, v10", "v_addc_co_u32 v11, vcc, 0, v11, vcc")
    vm.op("global_load_dwordx2 a[0:1], v[10:11], off")
    a("v_add_co_u32 v10, vcc, 0x10000, v10", "v_addc_co_u32 v11, vcc, 0, v11, vcc", f"s_add_u32 s42, s42, {0x10000 + 2048}", f"s_cmp_le_u32 s42, {code_bytes}")
    a("s_cbranch_scc0 L_warm_done", "global_load_dwordx2 a[2:3], v[10:11], off")
    a.label("L_warm_done")
    a(f"s_load_dwordx4 s[56:59], s[0:1], {KA['x']}", f"s_load_dwordx2 s[60:61], s[0:1], {KA['wo']}",
      f"s_load_dwordx4 s[64:67], s[0:1], {KA['wg']}", f"s_load_dwordx2 s[62:63], s[0:1], {KA['wd']}",
      f"s_load_dwordx2 s[26:27], s[0:1], {KA['dbg']}")
    common(a)
    pr.stamp("c0", cyc=True); pr.stamp("start")
    srd(a, 16, 56, S * D * 2)
    a(f"v_mov_b32 v3, {EPOCH}")
    ep = vm.op(f"buffer_load_dwordx2 v[14:15], v3, {WS}, 0 offen sc1")
    gt = []
    def rest():
        pr.stamp("p1")
        gt.append(gathers(a, vm))
        pr.stamp("p2")
        ffn_first(a)
        a("v_readfirstlane_b32 s40, v14", "v_readfirstlane_b32 s41, v15", f"s_add_u32 s{NONCE}, s40, 1", f"s_addc_u32 s{NONCE+1}, s41, 0")
        pr.stamp("piss")
    gen_r(a, "first", 0, pr, lds=lds, vm=vm, after_issue=rest)
    pr.stamp("px")
    vm.wait(gt[0])
    for f in range(3):
        for d in range(4): a(f"v_lshl_or_b32 v{GR + 8*f + d}, v{GR + 8*f + 2*d + 1}, 16, v{GR + 8*f + 2*d}")
        vm.op(f"buffer_store_dwordx4 v[{GR+8*f}:{GR+8*f+3}], v{V_L16}, {WS}, s38 offen offset:{1024*f} sc1")
    pr.stamp("pst")
    if pr.on == 8: a("s_waitcnt vmcnt(0)"); pr.stamp("pdr")
    commit(a)
    srd(a, 44, 26, 256)
    a("v_mov_b32 v3, 1", "buffer_atomic_add v3, v13, s[44:47], 0 offen sc1")
    ffn_second(a)
    pr.stamp("pend")

def gen_epoch(a):
    a("s_cmp_lg_u32 s2, 0", "s_cbranch_scc1 L_end", f"s_load_dwordx2 s[12:13], s[0:1], {KA['dbg']}", "s_waitcnt lgkmcnt(0)")
    srd(a, 44, 12, 256)
    a("v_mov_b32 v3, 0", "s_mov_b32 s52, 0")
    a.label("L_ep")
    a("buffer_load_dword v4, v3, s[44:47], 0 offen sc1", "s_add_u32 s52, s52, 1", "s_waitcnt vmcnt(0)", "v_readfirstlane_b32 s40, v4",
      "s_cmp_ge_u32 s52, 0x100000", "s_cbranch_scc1 L_end", "s_cmp_lt_u32 s40, 256", "s_cbranch_scc1 L_ep")
    a(f"s_mov_b32 s40, {EPOCH}")
    flag_store(a, 40, V_LANE)
    a("s_branch L_end")
```

```python
from gen_common import *

OUTPOL = ['']
def gen_r(a, mode, layer, pr, cp="sc1", lds=0, vm=None, after_issue=None, side=None):
    vm = vm or VM(a)
    VA, VN, T0 = 4, 5, 6
    DATA, SUM, PK, XO = (16, 28, None, 16) if mode == 'first' else (16, 128, 152, 168)
    sT, sN = 20, 21
    a(f"v_and_b32 v6, 7, v{V_LANE}", f"v_lshrrev_b32 v7, 3, v{V_LANE}")
    a(f"s_mul_i32 s22, s{S_WAVE}, 24", "v_add_u32 v7, s22, v7")
    a(f"s_and_b32 s23, s{S_I}, 1", "s_lshl_b32 s23, s23, 3")
    a("v_add_u32 v8, s23, v6", "v_lshlrev_b32 v8, 4, v8", f"v_lshl_add_u32 v{VA}, v7, 8, v8")
    a(f"s_lshl_b32 s24, s{S_X}, 4", f"s_lshr_b32 s25, s{S_I}, 1", "s_add_u32 s24, s24, s25",
      f"s_mul_i32 s{sT}, s24, {TILE}")
    if mode != "mid":
        a(f"s_lshl_b32 s24, s{S_X}, 8", f"s_lshl_b32 s25, s{S_I}, 3", "s_add_u32 s24, s24, s25",
          "s_and_b32 s25, s24, 1023", "s_lshl_b32 s25, s25, 1", "s_lshr_b32 s24, s24, 10", "s_add_u32 s24, s24, s25",
          f"s_mul_i32 s{sN}, s24, 1152")
        a("v_mul_u32_u24 v8, 2304, v6", f"v_lshl_add_u32 v{VN}, v7, 4, v8")
        if mode == "last":
            a(f"s_load_dwordx2 s[12:13], s[0:1], {KA['out']}", "s_waitcnt lgkmcnt(0)")
            srd(a, 16, 12, S * D * 2)
    tags = []
    if mode == "first":
        a(f"s_cmp_eq_u32 s{S_WAVE}, 3", "s_cselect_b64 vcc, -1, 0", f"v_mov_b32 v8, {OOB}", f"v_cndmask_b32 v{VA}, v{VA}, v8, vcc", f"v_cndmask_b32 v{VN}, v{VN}, v8, vcc")
        for j in range(3):
            tags.append(vm.op(f"buffer_load_dwordx4 v[{DATA+4*j}:{DATA+4*j+3}], v{VN}, s[16:19], s{sN} offen offset:{128*j} nt"))
        nsrc = 1
        after_issue()
    else:
        nsrc = 9
        commit(a)
        pr.stamp("fend")
        for s in range(9):
            base = X1[layer] if s == 0 else PART[layer] + (s-1) * ACT
            if s == 1:
                a(f"s_lshl_b32 s24, s{S_X}, {5+FS}",
                  f"s_add_u32 s24, s24, {FLAGS + layer*FL_LAYER + FL_P}", f"v_and_b32 v6, 31, v{V_LANE}", f"v_lshlrev_b32 v6, {FS}, v6")
                pr.stamp('rpre')
                await_flags(a, 6, 24)
                pr.stamp("rgo")
            a(f"s_add_u32 s24, s{sT}, {base}", "s_add_u32 s25, s24, 4096")
            for j in range(3):
                r = DATA + 12*s + 4*j
                so, off = ("s24", 2048*j) if j < 2 else ("s25", 0)
                tags.append(vm.op(f"buffer_load_dwordx4 v[{r}:{r+3}], v{VA}, {WS}, {so} offen offset:{off} {ldpol()}"))
    side = list(side(a)) if side else []
    for s in range(nsrc):
        for j in range(3):
            if mode != 'first': vm.wait(tags[3*s+j])
            if j == 0: pr.stamp(f'r{s}')
            for d in range(4):
                src = DATA + 12*s + 4*j + d; lo = SUM + 8*j + 2*d
                if s == 0:
                    a(f"v_lshlrev_b32 v{lo}, 16, v{src}", f"v_and_b32 v{lo+1}, 0xffff0000, v{src}")
                else:
                    t = T0 + 2*(d % 2)
                    a(f"v_lshlrev_b32 v{t}, 16, v{src}", f"v_and_b32 v{t+1}, 0xffff0000, v{src}",
                      f"v_add_f32 v{lo}, v{lo}, v{t}", f"v_add_f32 v{lo+1}, v{lo+1}, v{t+1}")
            if side:
                while not side[0].startswith("buffer"): a(side.pop(0))
                vm.op(side.pop(0))
    assert not side
    pr.stamp("rsum")
    pk = DATA if mode == "first" else PK
    if mode != "first":
        for d in range(12): a(f"v_cvt_pk_bf16_f32 v{PK+d}, v{SUM+2*d}, v{SUM+2*d+1}")
    if mode == "last":
        for j in range(3):
            vm.op(f"buffer_store_dwordx4 v[{PK+4*j}:{PK+4*j+3}], v{VN}, s[16:19], s{sN} offen offset:{128*j} {OUTPOL[0]}")
        return
    nl = 0 if mode == "first" else layer + 1
    a(f"s_add_u32 s24, s{sT}, {XR[nl]}", "s_add_u32 s25, s24, 4096")
    for j in range(3):
        so, off = ("s24", 2048*j) if j < 2 else ("s25", 0)
        vm.op(f"buffer_store_dwordx4 v[{pk+4*j}:{pk+4*j+3}], v{VA}, {WS}, {so} offen offset:{off} {cp}")
    a(f"v_add_f32 v6, v{SUM}, v{SUM+1}", f"v_mul_f32 v7, v{SUM}, v{SUM}", f"v_mul_f32 v9, v{SUM+1}, v{SUM+1}", "v_mov_b32 v8, 0")
    for e in range(2, 24, 2):
        a(f"v_add_f32 v6, v6, v{SUM+e}", f"v_add_f32 v8, v8, v{SUM+e+1}",
          f"v_fmac_f32 v7, v{SUM+e}, v{SUM+e}", f"v_fmac_f32 v9, v{SUM+e+1}, v{SUM+e+1}")
    a("v_add_f32 v6, v6, v8", "v_add_f32 v7, v7, v9")
    xreduce(a, [6, 7], 8, steps=("8", "16", "32"))
    a(f"v_and_b32 v10, 7, v{V_LANE}", "v_lshlrev_b32 v10, 3, v10", f"v_add_u32 v10, {lds}, v10", f"s_lshl_b32 s24, s{S_WAVE}, 6", "v_add_u32 v11, s24, v10")
    pr.stamp("rxr")
    a("ds_write_b64 v11, v[6:7]", "s_waitcnt lgkmcnt(0)", "s_barrier")
    pr.stamp("rbar")
    a("ds_read_b64 v[6:7], v10", "ds_read_b64 v[8:9], v10 offset:64", "ds_read_b64 v[12:13], v10 offset:128", "s_waitcnt lgkmcnt(0)")
    a("v_add_f32 v6, v6, v8", "v_add_f32 v7, v7, v9", "v_add_f32 v6, v6, v12", "v_add_f32 v7, v7, v13")
    a(f"v_mul_f32 v6, {f32(1/576)}, v6", f"v_mul_f32 v7, {f32(1/576)}, v7", "v_fma_f32 v7, -v6, v6, v7",
      "v_max_f32 v7, 0, v7", f"v_add_f32 v7, {f32(1e-5)}, v7", "v_rsq_f32 v7, v7")
    a("v_mul_f32 v6, v6, v7")
    for e in range(24): a(f"v_fma_f32 v{SUM+e}, v{SUM+e}, v7, -v6")
    for d in range(12): a(f"v_cvt_pk_bf16_f32 v{XO+d}, v{SUM+2*d}, v{SUM+2*d+1}")
    a(f"s_add_u32 s24, s{sT}, {XN[nl]}", "s_add_u32 s25, s24, 4096")
    for j in range(3):
        so, off = ("s24", 2048*j) if j < 2 else ("s25", 0)
        vm.op(f"buffer_store_dwordx4 v[{XO+4*j}:{XO+4*j+3}], v{VA}, {WS}, {so} offen offset:{off} {cp}")
    a(f"s_lshl_b32 s24, s{S_X}, 5", f"s_add_u32 s24, s24, s{S_I}")
    set_flag_addr(a, 24, FLAGS + nl*FL_LAYER + FL_R)
```

```python
S, D, H, DH, DF = 2048, 576, 32, 18, 4608
TILE = 18432
ACT = 128 * TILE
WS_BYTES = 268435456

import os as _os
_off = int(_os.environ.get("WSBASE", 0)) << 20
def _alloc(n):
    global _off
    o = _off
    _off += (n + 4095) // 4096 * 4096
    return o

import os
FS = int(os.environ.get('FS', 7))
FLAG_BYTES = 16 * 1024 << 8
FLAGS = _alloc(FLAG_BYTES)
FL_LAYER = 8 * 1024 << FS
FL_H, FL_O, FL_X, FL_P, FL_R, FL_Q = [n * 1024 << FS for n in (0, 3, 4, 5, 6, 7)]
FL_K = FL_LAYER + FL_Q
EPOCH = _alloc(4096)
PQ_TASK = 144 * 1024
PQ = _alloc(16 * PQ_TASK)
PO_TASK = 90 * 1024
PO = _alloc(8 * PO_TASK + 8192)
PF_TASK = 486 * 1024
PF = _alloc(32 * PF_TASK + 32768)
XN = [_alloc(ACT) for _ in range(2)]
XR = [_alloc(ACT) for _ in range(2)]
OB = [_alloc(ACT) for _ in range(2)]
X1 = [_alloc(ACT) for _ in range(2)]
STAT_BYTES = 128 * 8 * 128
ST = [_alloc(STAT_BYTES) for _ in range(2)]
HB_BYTES = 8 * 8 * 16 * TILE
HB = [_alloc(HB_BYTES) for _ in range(2)]
PART = [_alloc(8 * ACT) for _ in range(2)]
PROF = _alloc(2 * 1024 * 256)
WS_USED = _off
assert WS_USED <= WS_BYTES

KPOS = [(0, 0), (0, 1), (0, 2), (1, 0), (2, 0), (3, 0), (1, 1), (2, 1), (3, 1), ("mix", 0), ("mix", 1), (0, 3),
        (1, 2), (2, 2), (3, 2), (1, 3), (2, 3), (3, 3)]
OS = int(os.environ.get("OS", 3))
KBLOCKS = [(p, 2, range(8)) for p in range(0, 14, 2)] + [(0, 2*OS, [8]), (14, 4, range(8)), (2*OS, 18 - 2*OS, [8])]

def kbase(m): return (9 * m + 1) >> 1

def kstep_of(member, pos):
    rel, p = KPOS[pos]
    if rel == "mix": return 4 if p == 0 else 13
    return kbase((member + rel) & 3) + p

def pd_index(pos, t):
    n0 = 0
    for start, n, tiles in KBLOCKS:
        if start <= pos < start + n and t in tiles: return n0 + list(tiles).index(t) * n + (pos - start)
        n0 += n * len(tiles)

def hidden_col(c, q, i):
    return 64 * (c >> 1) + 16 * q + 4 * (i & 3) + 2 * (c & 1) + (i >> 2)
```

```python
import sys
from gen_common import *
from gen_r import gen_r, OUTPOL
import gen_p0 as P0
from gen_a1 import A1R, gen_a1_front, gen_a1_tail, a1_weight_items, A1_LDS, XCH
from gen_a2 import gen_a2
from gen_f import gen_f

NAME = "interleave_layers__sliding_local_dilated__glu_gated_geglu__prompt"
import os
ROOT = os.path.dirname(os.path.dirname(os.path.abspath(__file__)))
HEADER = open(f"{ROOT}/{NAME}.s.ref").read().split("; Override launch")[0]

SL = dict(XN=70, XR=71, OB=72, X1=73, ST=74, HB=75, PART=76, FL=77, LAYER=7)
def layer_regs(a, l):
    for k, v in (("XN", XN[l]), ("XR", XR[l]), ("OB", OB[l]), ("X1", X1[l]), ("ST", ST[l]), ("HB", HB[l]), ("PART", PART[l]),
                 ("FL", FLAGS + l*FL_LAYER), ("LAYER", l)):
        a(f"s_mov_b32 s{SL[k]}, {v}")

def finish(lines, name):
    st = []
    out = pad_hazards(lines, st)
    errs = check_waits(out, name)
    for e in errs[:20]: print("WAIT ERROR", e)
    assert not errs
    nins = sum(1 for l in out if not l.endswith(":") and not l.startswith((".", ";")))
    print(f"{name}: {nins} instructions, {len(st)} pads ({sum(x[0] for x in st)} states)", file=sys.stderr)
    return out

def build(opts):
    prof = opts.get("prof", 0)
    A1R[0] = opts.get("a1r", 8)
    POLL_CFG.update(sleep=opts.get("ps", 0))
    P0.NT[0] = "nt" if opts.get("ntg", 0) else ""
    P0.NFIRST[0] = opts.get("nfirst", 9); P0.NPRE_CENTER[0] = opts.get("npc", 8); P0.PFPOL[0] = "sc1 nt" if opts.get("pfnt", 0) else "sc1"
    OUTPOL[0] = ["", "sc1", "nt", "sc1 nt", "sc0 sc1"][opts.get("outpol", 0)]
    LOCAL[0] = opts.get("local", 0)
    if LOCAL[0]: SPIN[0] = 0x4000
    P0.TOUCH[0] = [None, "", "nt"][opts.get("touch", 0)]; P0.RAWPOL[0] = ["", "nt"][opts.get("rawnt", 1)]; P0.make_loads()
    if opts.get("noffn"):
        P0.W1_LOADS[:] = ["s_nop 0"]*len(P0.W1_LOADS); P0.WD_LOADS[:] = ["s_nop 0"]*len(P0.WD_LOADS)
    K = NAME + "_kernel"
    a = Asm(); tail = Asm(); names = {}
    entry(a, K, 256, "L_end")
    pr = Prof(a, prof)
    P0.gen_p0(a, pr, "L_code_end - L_warm_pc - 8", XCH)
    layer_regs(a, 0)
    if opts.get("dbgout"): a("s_waitcnt lgkmcnt(0)", f"s_mov_b32 s3, s{pr.regs[1]}")
    side = [x for n in range(P0.NPRE_CENTER[0], 20) for x in P0.center_items(n)]
    gen_a1_front(a, SL, pr, 0, side, [P0.store_item(n) for n in range(20)], lambda side: P0.ffn_transpose(a, side))
    nf = pr.n
    a.label("L_att")
    po_rest = gen_a1_tail(a, SL, pr, opts.get("npo", 0))
    gen_a2(a, SL, pr, opts, po_rest)
    gen_f(a, SL, tail, pr, opts)
    a(f"s_cmp_eq_u32 s{SL['LAYER']}, 1", "s_cbranch_scc1 L_last")
    n0 = pr.n; nm0 = list(pr.names)
    a(f"s_cmp_eq_u32 s{S_WAVE}, 3", "s_cbranch_scc1 L_r_side", "; @if")
    gen_r(a, "mid", 0, pr, lds=XCH, side=lambda a: a1_weight_items(a, 24, 24, ids=False))
    pr.stamp("rend"); pr.stamp("c1", cyc=True)
    if opts.get("dbgout"): pr.to_debug(opts["dbgout"], 1, list(range(2, pr.n - 1))[:14])
    pr.flush(SL["LAYER"]); names[0] = list(pr.names)
    a("s_branch L_r_done")
    a("; @else"); a.label("L_r_side")
    commit(a)
    a(a1_weight_items(a, 24, 72))
    a("s_barrier")
    pr.flush(SL["LAYER"])
    a("; @endif"); a.label("L_r_done")
    layer_regs(a, 1)
    keep = [x for x in nm0[:nf] if x in ("c0", "start") or x.startswith("a1")]
    pr.n = 0; pr.names = []
    pr.stamp("c0", cyc=True); pr.stamp("start")
    pr.n = nf - (len(keep) - 2)
    gen_a1_front(a, SL, pr, 1)
    a("s_branch L_att")
    a.label("L_last")
    a(f"s_cmp_eq_u32 s{S_WAVE}, 3", "s_cbranch_scc1 L_epoch")
    pr.n = n0; pr.names = nm0
    gen_r(a, "last", 1, pr)
    if prof: a("s_waitcnt vmcnt(0)")
    pr.stamp("rend"); pr.stamp("c1", cyc=True)
    if opts.get("dbgout"): pr.to_debug(opts["dbgout"], 15, [pr.n - 2])
    pr.flush(SL["LAYER"]); names[1] = list(pr.names)
    a.label("L_end"); a("s_endpgm")
    e = Asm(); e.label("L_epoch"); commit(e); P0.gen_epoch(e)
    code = finish(a.lines, "main") + pad_hazards(tail.lines) + finish(e.lines, "epoch") + ["L_code_end:", "s_endpgm"]
    s = HEADER
    if prof: s += "; PROF " + repr(names) + "\n"
    s += f"; @launch grid=(256,1,1) block=(256,1,1) lds={A1_LDS + 1024}\n"
    s += '.amdgcn_target "amdgcn-amd-amdhsa--gfx950"\n.text\n' + "\n".join(code) + '\n.section .rodata,"a"\n' + descriptor(K, 512, 256)
    return s

if __name__ == "__main__":
    out = sys.argv[1] if len(sys.argv) > 1 else f"{ROOT}/{NAME}.s"
    opts = dict(kv.split("=") for kv in sys.argv[2:])
    opts = {k: int(v) for k, v in opts.items()}
    open(out, "w").write(build(opts))
```

```python
import re

TRANS = {"v_exp_f32", "v_log_f32", "v_rcp_f32", "v_rsq_f32", "v_sqrt_f32", "v_sin_f32", "v_cos_f32"}
REG = re.compile(r"^(-|abs\()?\|?([vas])(?:(\d+)|\[(\d+):(\d+)\])\|?\)?$")

def regs_of(tok):
    tok = tok.strip()
    if tok == "vcc": return {("s", "vcc")}
    if tok == "exec": return {("s", "exec")}
    if tok == "m0": return {("s", "m0")}
    m = REG.match(tok)
    if not m: return set()
    k = m.group(2)
    if m.group(3) is not None: return {(k, int(m.group(3)))}
    return {(k, i) for i in range(int(m.group(4)), int(m.group(5)) + 1)}

class Ins:
    __slots__ = ("text", "op", "kind", "wr", "rd", "srcc", "ab", "data", "lds", "states")
    def __init__(self, text):
        self.text = text
        body = text.split(";")[0].strip()
        parts = body.split(None, 1)
        self.op = op = parts[0] if parts else ""
        ops = []
        if len(parts) > 1:
            depth = 0; cur = ""
            for ch in parts[1]:
                if ch in "[(": depth += 1
                if ch in "])": depth -= 1
                if ch == "," and depth == 0: ops.append(cur.strip()); cur = ""
                else: cur += ch
            ops.append(cur.strip())
        last_mods = []
        if ops:
            sp = ops[-1].split()
            if sp:
                ops[-1] = sp[0]; last_mods = sp[1:]
        self.wr = set(); self.rd = set(); self.srcc = set(); self.ab = set(); self.data = set()
        self.lds = "lds" in last_mods
        self.states = 1
        R = [regs_of(o) for o in ops]
        if op.endswith(":") or op.startswith(".") or op == "":
            self.kind = "none"; self.states = 0
        elif op == "s_nop":
            self.kind = "nop"; self.states = int(ops[0], 0) + 1
        elif op.startswith("v_mfma"):
            self.kind = "mfma"; self.wr = R[0]; self.ab = R[1] | R[2]; self.srcc = R[3]; self.rd = self.ab | self.srcc
        elif op.startswith("v_cmp"):
            self.kind = "valu"; self.wr = R[0]; self.rd = set().union(*R[1:])
        elif op.startswith("v_permlane") and "swap" in op:
            self.kind = "valu"; self.wr = R[0] | R[1]; self.rd = R[0] | R[1]
        elif op.startswith("v_"):
            self.kind = "valu"; self.wr = R[0]; self.rd = set().union(*R[1:]) if len(R) > 1 else set()
            if op.startswith(("v_fmac", "v_dot2c", "v_pk_fmac")) or "dpp" in op or any(m.startswith(("row_", "quad_perm")) for m in last_mods):
                self.rd |= R[0]
            if op.startswith("v_cndmask") and len(ops) == 3: self.rd |= {("s", "vcc")}
            if "_co_" in op: self.wr |= R[1]; self.rd = set().union(*R[2:])
        elif op.startswith(("buffer_load", "global_load")):
            self.kind = "vmem"
            if self.lds: self.rd = set().union(*R) | {("s", "m0")}
            else:
                self.wr = R[0]; self.rd = set().union(*R[1:])
                if "d16" in op: self.rd |= set()
        elif op.startswith(("buffer_store", "buffer_atomic")):
            self.kind = "vmem"; self.data = R[0]; self.rd = set().union(*R)
        elif op.startswith(("global_store", "global_atomic")):
            self.kind = "vmem"; self.data = R[1]; self.rd = set().union(*R)
        elif op.startswith(("buffer_inv", "buffer_wbl2")):
            self.kind = "vmem"
        elif op.startswith(("ds_read", "ds_bpermute", "ds_permute", "ds_swizzle")):
            self.kind = "ds"; self.wr = R[0]; self.rd = set().union(*R[1:])
        elif op.startswith("ds_"):
            self.kind = "ds"; self.rd = set().union(*R)
        elif op.startswith(("s_load", "s_memtime", "s_memrealtime", "s_buffer_load")):
            self.kind = "smem"; self.wr = R[0]; self.rd = set().union(*R[1:]) if len(R) > 1 else set()
        elif op.startswith(("s_waitcnt", "s_barrier", "s_endpgm", "s_branch", "s_cbranch", "s_setprio", "s_sleep")):
            self.kind = "ctl"
        elif op.startswith("s_cmp"):
            self.kind = "salu"; self.rd = set().union(*R)
        elif op.startswith("s_"):
            self.kind = "salu"; self.wr = R[0]; self.rd = set().union(*R[1:]) if len(R) > 1 else set()
            if "saveexec" in op: self.wr |= {("s", "exec")}
        else:
            raise ValueError("unknown instruction: " + text)

    def is_dpp(self):
        return "row_" in self.text or "quad_perm" in self.text or self.op.startswith("v_permlane")

def need(p, c):
    n = 0
    vec = lambda s: {r for r in s if r[0] in "va"}
    sc = lambda s: {r for r in s if r[0] == "s"}
    if p.kind == "valu":
        pw = vec(p.wr); ps = sc(p.wr)
        if pw:
            if c.kind == "mfma" and pw & c.rd: n = max(n, 2)
            if c.kind == "valu" and c.is_dpp() and pw & c.rd: n = max(n, 2)
            if c.op.startswith(("v_readlane", "v_readfirstlane")) and pw & c.rd: n = max(n, 1)
            if p.op in TRANS and c.kind == "valu" and pw & c.rd: n = max(n, 1)
            if p.op.startswith("v_dot") and pw & (c.rd | c.wr) and not (c.op == p.op and not pw & c.rd - {max(c.rd, key=str)} and False): n = max(n, 3)
        if ps:
            if c.kind == "valu" and ps & c.rd: n = max(n, 4 if c.op.startswith(("v_readlane", "v_writelane")) else 2)
            if c.kind == "vmem" and ps & c.rd: n = max(n, 5)
            if c.kind in ("salu", "smem") and ps & c.rd: n = max(n, 1)
    if p.kind == "mfma":
        big = "32x32" in p.op
        d = p.wr
        if c.kind == "mfma":
            if d & c.ab: n = max(n, 12 if big else 8)
            if d & c.srcc and (d != c.srcc or p.op != c.op): n = max(n, 10 if big else 6)
            if d & c.wr and d != c.srcc: n = max(n, 10 if big else 6)
        elif c.kind in ("valu", "vmem", "ds") and d & (c.rd | c.wr): n = max(n, 12 if big else 8)
        if c.kind == "valu" and p.srcc & c.wr: n = max(n, 7 if big else 3)
    if p.kind == "salu" and ("s", "m0") in p.wr and c.kind == "vmem" and c.lds: n = max(n, 1)
    if p.kind == "vmem" and p.data and ("x4" in p.op or "x3" in p.op) and p.data & c.wr: n = max(n, 2)
    return n

class Asm:
    def __init__(self):
        self.lines = []
    def __call__(self, s, *more):
        for x in (s,) + more:
            if isinstance(x, (list, tuple)):
                for y in x: self(y)
            elif x is not None:
                for ln in x.split("\n"):
                    ln = ln.strip()
                    if ln: self.lines.append(ln)
    def label(self, name): self.lines.append(name + ":")

def pad_hazards(lines, stats=None):
    out = []; hist = []
    for ln in lines:
        if ln.startswith(";"): out.append(ln); continue
        ins = Ins(ln)
        if ins.kind == "none": out.append(ln); continue
        dist = 0; short = 0
        for p in reversed(hist):
            if dist >= 12: break
            k = need(p, ins)
            if k > dist: short = max(short, k - dist)
            dist += p.states
        if short:
            nop = f"s_nop {short-1}"
            out.append(nop); hist.append(Ins(nop))
            if stats is not None: stats.append((short, ln))
        out.append(ln); hist.append(ins)
        if len(hist) > 16: hist = hist[-16:]
    return out

def check_waits(lines, name=""):
    states = [([], [])]; stack = []; errs = []
    for n, ln in enumerate(lines):
        if ln.startswith("; @if"): stack.append([[(list(v), list(l)) for v, l in states], None]); continue
        if ln.startswith("; @else"): stack[-1][1] = states; states = stack[-1][0]; continue
        if ln.startswith("; @endif"):
            first, done = stack.pop()
            states = states + (done if done is not None else first)
            uniq = {(tuple(map(id, v)), tuple(map(id, l))): (v, l) for v, l in states}
            states = list(uniq.values()); continue
        if ln.startswith(";"): continue
        ins = Ins(ln)
        if ins.kind == "none": continue
        new = []
        for vm, lg in states:
            if ins.op == "s_waitcnt":
                m = re.search(r"vmcnt\((\d+)\)", ln)
                if m:
                    k = int(m.group(1)); assert k <= 63, ln
                    vm = vm[len(vm)-k:] if k and len(vm) > k else ([] if k == 0 else vm)
                m = re.search(r"lgkmcnt\((\d+)\)", ln)
                if m:
                    k = int(m.group(1)); assert k <= 15, ln
                    if k == 0: lg = []
                    else:
                        sm = [x for x in lg if x.kind == "smem"]; dd = [x for x in lg if x.kind != "smem"]
                        lg = sm + (dd[len(dd)-k:] if len(dd) > k else dd)
            else:
                touch = ins.rd | ins.wr
                for o in vm + lg:
                    hit = o.wr & touch
                    if hit and not (ins.kind == "vmem" and o.kind == "vmem" and ins.wr == o.wr and not (ins.rd & o.wr)):
                        errs.append(f"{name}:{n}: '{ln}' touches {sorted(hit)[:3]} of outstanding '{o.text}'")
                if ins.kind == "vmem": vm = (vm + [ins])[-63:]
                if ins.kind in ("ds", "smem"): lg = lg + [ins]
            new.append((vm, lg))
        uniq = {(tuple(map(id, v)), tuple(map(id, l))): (v, l) for v, l in new}
        states = list(uniq.values())
    return errs

def descriptor(name, vgpr, accum, sgpr=102):
    return f""".p2align 6
.amdhsa_kernel {name}
  .amdhsa_next_free_vgpr {vgpr}
  .amdhsa_next_free_sgpr {sgpr}
  .amdhsa_accum_offset {accum}
  .amdhsa_group_segment_fixed_size 0
  .amdhsa_kernarg_size 80
  .amdhsa_user_sgpr_count 2
  .amdhsa_user_sgpr_kernarg_segment_ptr 1
  .amdhsa_system_sgpr_workgroup_id_x 1
.end_amdhsa_kernel
"""

SCC_READ = ("s_cbranch_scc", "s_cselect", "s_addc", "s_subb", "s_cmov")
SCC_KEEP = ("s_mov", "s_mul_i32", "s_mul_hi", "s_nop", "s_waitcnt", "s_barrier", "s_sleep", "s_load", "s_mem", "s_getpc", "s_cbranch_exec", "s_cbranch_vcc", "s_setprio")
def scc_dead(lines, i):
    for ln in lines[i:i+200]:
        op = ln.split()[0] if ln.split() else ""
        if not op.startswith("s_") or op.endswith(":"): continue
        if op.startswith(SCC_READ): return False
        if op.startswith(("s_branch", "s_endpgm")): return True
        if not op.startswith(SCC_KEEP): return True
    return True

def insert_hops(lines, addrs, first_line, flag, page=4096, ways=4):
    out = []; shift = 0; k = 0; nxt = None
    for i, ln in enumerate(lines):
        if addrs[i] is not None and i >= first_line:
            adr = addrs[i] + shift
            if nxt is None: nxt = (adr // page + 1) * page
            if adr >= nxt and scc_dead(lines, i) and not ln.startswith("s_endpgm"):
                out += [f"L_hop{k}:", f"s_cmp_lg_u32 s{flag}, 0", f"s_cbranch_scc1 L_hop{k + ways}"]
                k += 1; shift += 8; nxt += page
        out.append(ln)
    return [re.sub(r"scc1 L_hop(\d+)$", lambda m: m.group(0) if int(m.group(1)) < k else "scc1 L_hop_done", x) for x in out], k
```

```python
from gen_common import *
from gen_common import _uid
import math

XCH = 147456
A1_LDS = XCH + 4*3072
NT = 7

DIAG = [0]
A1R = [8]
def a1_ids(a):
    R = A1R[0]; lg = R.bit_length() - 1; hl = 5 - lg
    a(f"s_lshr_b32 s20, s{S_X}, {lg-1}", f"s_lshl_b32 s20, s20, {lg}", f"s_lshr_b32 s21, s{S_I}, {hl}", "s_add_u32 s20, s20, s21")
    a(f"s_and_b32 s21, s{S_X}, {R//2 - 1}", f"s_lshl_b32 s21, s21, {hl}", f"s_and_b32 s22, s{S_I}, {(1 << hl) - 1}", "s_add_u32 s21, s21, s22")

def warm_items(sL, dst):
    R = A1R[0]; hl = 5 - (R.bit_length() - 1)
    nq = -(-(PQ_TASK << hl) // (128*1024)); npo = -(-(8*PO_TASK) // (128*1024))
    out = [f"s_mul_i32 s48, s{sL['LAYER']}, {OOB}", f"s_lshl_b32 s49, s{S_I}, 2", f"s_add_u32 s49, s49, s{S_WAVE}",
           f"s_mul_i32 s50, s49, {npo*1024}", "s_add_u32 s50, s50, s48", f"s_add_u32 s50, s50, {PO}",
           f"s_mul_i32 s49, s49, {nq*1024}", "s_add_u32 s48, s48, s49", f"s_and_b32 s49, s{S_X}, {R//2 - 1}",
           f"s_mul_i32 s49, s49, {PQ_TASK << hl}", "s_add_u32 s48, s48, s49", f"s_add_u32 s48, s48, {PQ}"]
    for reg, n in ((48, nq), (50, npo)):
        for q in range(n):
            if q and q % 4 == 0: out.append(f"s_add_u32 s{reg}, s{reg}, 4096")
            out.append(("vm", f"buffer_load_dwordx4 v[{dst}:{dst+3}], v{V_L16}, {WS}, s{reg} offen offset:{(q % 4)*1024}", ("warm", 0)))
    return out

def a1_weight_items(a, share=32, n=32, ids=True):
    if ids: a1_ids(a)
    else:
        a("s_mov_b64 s[28:29], s[20:21]"); a1_ids(a); a("s_mov_b32 s30, s21", "s_mov_b64 s[20:21], s[28:29]")
    a(f"s_mul_i32 s32, s{21 if ids else 30}, {PQ_TASK}", f"s_add_u32 s32, s32, {PQ}", f"s_mul_i32 s33, s{S_WAVE}, {share*1024}", "s_add_u32 s32, s32, s33")
    return dma_items(n, 32, 33)

ACC, RING, NW = 32, 216, 8
HA = ACC + 8*NT
acc = lambda t, j: ACC + (2*t + j)*4

SEL = 96
CB, MK = 172, 184
def xch_addresses():
    a = Asm()
    a(f"v_lshlrev_b32 v14, 3, v{V_LANE}", f"s_mul_i32 s31, s{S_WAVE}, 3072", f"s_add_u32 s41, s31, {XCH}", "v_add_u32 v15, s41, v14")
    a("s_lshl_b32 s42, s29, 9", f"s_add_u32 s42, s42, {XCH}", "v_add_u32 v16, s42, v14", "s_and_b32 s42, s42, 512", f"s_add_u32 s42, s42, {XCH}", "v_add_u32 v19, s42, v14")
    a(f"v_add_u32 v18, {XCH + 2560}, v14")
    for r in (0, 1, 4, 5): a(f"v_mov_b32 v{SEL+r}, 0")
    a(f"v_and_b32 v13, 1, v{V_LANE}", "v_lshlrev_b32 v13, 4, v13", "v_mov_b32 v102, 0x3f80", "v_lshlrev_b32 v13, v13, v102")
    a(f"v_lshrrev_b32 v102, 1, v{V_LANE}", "v_cmp_eq_u32 vcc, 16, v102", f"v_cndmask_b32 v{SEL+2}, 0, v13, vcc",
      "v_cmp_eq_u32 vcc, 17, v102", f"v_cndmask_b32 v{SEL+3}, 0, v13, vcc")
    a(f"v_add_u32 v17, 16, v12", f"v_cmp_gt_u32 vcc, 16, v{V_LANE}", "v_add_u32 v14, 48, v12", f"s_mov_b32 s34, {f32(math.log2(math.e) / math.sqrt(DH))}",
      "v_cndmask_b32 v17, v14, v17, vcc", "v_lshlrev_b32 v17, 3, v17", "v_add_u32 v17, s41, v17")
    return a.lines

def window_constants():
    a = Asm()
    a(f"v_mov_b32 v103, {f32(-3.0e38)}", "v_mov_b32 v102, 0xffff")
    for n, m0 in enumerate((44, 52, 60)):
        for r in range(4): a(f"v_cndmask_b32 v{CB + 4*n + r}, v103, 0, s[{m0+2*r}:{m0+2*r+1}]")
        for d in range(2):
            a(f"v_cndmask_b32 v{MK + 2*n + d}, 0, v102, s[{m0+4*d}:{m0+4*d+1}]", f"v_cndmask_b32 v13, 0, v102, s[{m0+4*d+2}:{m0+4*d+3}]",
              f"v_lshl_or_b32 v{MK + 2*n + d}, v13, 16, v{MK + 2*n + d}")
    return a.lines

def gen_a1_front(a, sL, pr, layer, jobs={}, shadow=None, cp="sc1"):
    vm = VM(a)
    VB = [V_L16, 4, 5]; VH = [[6, 7, 8], [9, 10, 11]]
    VHL = 3
    a1_ids(a)
    a("s_lshl_b32 s24, s20, 3", "s_sub_u32 s25, s24, 1", "s_max_i32 s35, s25, 0", f"s_mul_i32 s25, s35, {TILE}",
      f"s_lshl_b32 s26, s{S_WAVE}, 1", "s_add_u32 s36, s24, s26", f"s_mul_i32 s24, s36, {TILE}")
    a(f"s_add_u32 s26, s24, s{sL['XN']}", f"s_add_u32 s27, s26, {TILE}", f"s_add_u32 s28, s25, s{sL['XN']}")
    a(f"v_add_u32 v4, 0x10000, v{V_L16}", f"v_add_u32 v5, 0x20000, v{V_L16}")
    a(f"s_cmp_eq_u32 s{S_WAVE}, 3", f"s_cselect_b32 s29, 0, s{S_WAVE}", "s_cselect_b32 s31, 16, 9", "s_lshl_b32 s30, s29, 10")
    a(f"v_and_b32 v12, 15, v{V_LANE}", f"v_mov_b32 v13, {OOB}", "v_cmp_le_u32 vcc, s31, v12", f"v_cndmask_b32 v{VHL}, v13, v{V_L16}, vcc")
    for h, t0 in enumerate((2, 5)):
        if h: a("s_and_b32 s30, s30, 1024")
        a(f"s_add_u32 s31, s30, {t0*1024}")
        for n in range(3): a(f"v_add_u32 v{VH[h][n]}, s31, v{VB[n]}")
    if layer == 0:
        for src, dst in ((36, 22), (35, 23)):
            a(f"s_lshr_b32 s{dst}, s{src}, 4", f"s_lshl_b32 s{dst}, s{dst}, 5", f"s_bfe_u32 s31, s{src}, 0x30001", f"s_add_u32 s{dst}, s{dst}, s31", f"s_add_u32 s{dst}, s{dst}, 18")
        a("v_mov_b32 v16, s22", "v_mov_b32 v17, s23", f"v_cmp_eq_u32 vcc, 4, v{V_LANE}", "v_cndmask_b32 v16, v16, v17, vcc")
        a("s_lshr_b32 s22, s21, 1", "s_lshl_b32 s22, s22, 5", "s_add_u32 s22, s22, 10", f"v_add_u32 v17, s22, v{V_LANE}", f"v_subrev_u32 v14, 8, v{V_LANE}",
          "v_cmp_gt_u32 vcc, 12, v14", "v_cndmask_b32 v16, v16, v17, vcc")
        a(f"s_and_b32 s22, s{S_I}, 7", "s_lshl_b32 s22, s22, 5", f"v_add_u32 v17, s22, v{V_LANE}", f"v_subrev_u32 v14, 30, v{V_LANE}",
          "v_cmp_gt_u32 vcc, 2, v14", "v_cndmask_b32 v16, v16, v17, vcc")
    else:
        a("s_lshl_b32 s22, s36, 1", "s_lshl_b32 s23, s35, 1", "s_add_u32 s23, s23, 1", f"v_and_b32 v16, 3, v{V_LANE}", "v_add_u32 v16, s22, v16",
          "v_mov_b32 v17, s23", f"v_cmp_eq_u32 vcc, 4, v{V_LANE}", "v_cndmask_b32 v16, v16, v17, vcc")
    a(f"v_lshlrev_b32 v16, {FS}, v16", f"s_add_u32 s22, s{sL['FL']}, {FL_R}")
    if layer == 0:
        await_flags(a, 16, 22)
        pr.stamp("qgo")
        shadow(a1_weight_items(a))
        pr.stamp("wiss")
    else:
        commit(a)
        await_flags(a, 16, 22)
    pr.stamp("a1go")
    xt = {}
    def xload(k):
        out = ["s_add_u32 s26, s26, 4096", "s_add_u32 s27, s27, 4096", "s_add_u32 s28, s28, 4096"] if k % 4 == 0 and k else []
        return out + [(k, f"buffer_load_dwordx4 a[{72*j+4*k}:{72*j+4*k+3}], v{V_L16 if j < 2 else VHL}, {WS}, s{26+j} offen offset:{(k % 4)*1024} {cp}") for j in range(3)]
    def emit(x):
        if isinstance(x, tuple): xt[x[0]] = vm.op(x[1])
        else: a(x)
    BURST = 8
    for k in range(BURST):
        for x in xload(k): emit(x)
    memq = [x for k in range(BURST, 18) for x in xload(k)]
    a(f"v_lshrrev_b32 v13, 4, v{V_LANE}", "v_lshlrev_b32 v14, 2, v13", "v_sub_u32 v14, v12, v14")
    for r in range(4):
        a(f"v_subrev_u32 v15, {r}, v14", f"v_cmp_gt_u32 s[{52+2*r}:{53+2*r}], 8, v15", f"v_cmp_gt_i32 s[{44+2*r}:{45+2*r}], -8, v15")
    a("s_and_b32 s31, s20, 7", f"s_or_b32 s31, s31, s{S_WAVE}", "s_cmp_eq_u32 s31, 0")
    for r in range(4): a(f"s_cselect_b64 s[{60+2*r}:{61+2*r}], 0, s[{44+2*r}:{45+2*r}]")
    pr.stamp("a1iss")
    if layer == 0: vm.wait(0); a("s_barrier")
    pr.stamp("a1bar")
    seq = []
    for k0 in range(0, 18, 2):
        for t in list(range(NT)) + ["h0", "h1"]:
            seq += [(k0, t), (k0+1, t)]
    def rd(n):
        k, t = seq[n]; w = RING + 4*(n % NW)
        if isinstance(t, str):
            off = k*NT*1024; base = VH[int(t[1])]
        else:
            off = (k*NT + t)*1024; base = VB
        return f"ds_read_b128 a[{w}:{w+3}], v{base[off // 65536]} offset:{off % 65536}"
    PF_ = 6
    for n in range(PF_): a(rd(n))
    start = (vm.n, list(memq), pr.n, list(pr.names))
    def gemm(stq=(), ldq=(), valq=()):
        stq = list(stq); ldq = list(ldq); valq = list(valq); extra = xch_addresses() + (window_constants() if layer else [])
        vm.n = start[0]; memq = list(start[1]); pr.n = start[2]; pr.names = list(start[3]); issued = PF_; nm = 0
        for n in range(0, len(seq), 2):
            k0, t = seq[n]
            if t == 0: vm.wait(xt[k0+1]); pr.stamp(f"a1k{k0}")
            a(f"s_waitcnt lgkmcnt({issued - n - 2})")
            jl = [2] if isinstance(t, str) else [0, 1]
            swapped = t == "h1" or (not isinstance(t, str) and t >= 5)
            for j in jl:
                d = HA + 4*int(t[1]) if isinstance(t, str) else acc(t, j)
                for c in range(2):
                    w = f"a[{RING + 4*((n+c) % NW)}:{RING + 4*((n+c) % NW) + 3}]"
                    x = f"a[{72*j + 4*(k0+c)}:{72*j + 4*(k0+c) + 3}]"
                    A, B = (x, w) if swapped else (w, x)
                    a(f"v_mfma_f32_16x16x32_bf16 v[{d}:{d+3}], {A}, {B}, {'0' if k0+c == 0 else f'v[{d}:{d+3}]'}")
                    nm += 1; room = 2 - (1 if j == jl[-1] and c == 1 else 0)
                    if (len(jl) == 1 or c == 1) and issued < len(seq):
                        a(rd(issued)); issued += 1; room -= 1
                    if memq and nm % 4 == 1:
                        while not isinstance(memq[0], tuple): emit(memq.pop(0))
                        emit(memq.pop(0)); room = 0
                    elif not memq and stq and nm % 6 == 1 and len(valq) <= 12*(len(stq) - 1):
                        vm.op(stq.pop(0)); room = 1
                    elif not memq and ldq and nm % 3 == 1:
                        while not ldq[0].startswith("buffer"): a(ldq.pop(0))
                        vm.op(ldq.pop(0)); room = 0
                    while valq and room > 0: a(valq.pop(0)); room -= 1
                    while extra and not valq and room > 0: a(extra.pop(0)); room -= 1
        assert not stq and not ldq and not valq
        a(extra)
        if layer == 0: a(window_constants())
    gemm(**jobs)
    pr.stamp('a1gemm')

def gen_a1_tail(a, sL, pr, npo, cp="sc1"):
    vm = VM(a); outer_a = a
    KP, K0, K1 = 104, 110, 116
    VV = [122, 128, 134]
    QO = [[140, 144], [148, 152]]
    HC, XR_ = 156, [160, 162]
    def cvt(dst, src): outer_a(f"v_cvt_pk_bf16_f32 v{dst}, v{src}, v{src+1}", f"v_cvt_pk_bf16_f32 v{dst+1}, v{src+2}, v{src+3}")
    KT = [K0, K1]
    cvt(XR_[0], acc(4, 0)); cvt(XR_[1], acc(4, 1)); cvt(HC, HA); cvt(HC+2, HA+4)
    TL = 164
    a(f"v_mfma_f32_16x16x32_bf16 v[{TL}:{TL+3}], v[{XR_[0]}:{XR_[0]+3}], v[{SEL}:{SEL+3}], 0",
      f"v_mfma_f32_16x16x32_bf16 v[{TL+4}:{TL+7}], v[{HC}:{HC+3}], v[{SEL+2}:{SEL+5}], 0",
      f"v_mfma_f32_16x16x32_bf16 v[{HA}:{HA+3}], v[{XR_[0]}:{XR_[0]+3}], v[{SEL+2}:{SEL+5}], 0")
    cvt(K1, acc(2, 1)); cvt(K1+4, acc(3, 1))
    for n in range(2): cvt(VV[n]+4, acc(5+n, 1))
    cvt(VV[2]+4, TL); cvt(TL, TL+4)
    a(f"s_cmp_eq_u32 s{S_WAVE}, 3", "s_cbranch_scc1 L_a1_noxch")
    a(f"ds_write_b64 v16, v[{HC}:{HC+1}]")
    for n, r in enumerate([K1, K1+4, XR_[1], VV[0]+4, VV[1]+4, VV[2]+4]):
        a(f"ds_write_b64 v15, v[{r}:{r+1}] offset:{3072 + 512*n}")
    a(f"s_cmp_eq_u32 s{S_WAVE}, 2", "s_cbranch_scc1 L_a1_left")
    a(f"ds_write_b64 v19, v[{HC+2}:{HC+3}] offset:1536", "s_branch L_a1_noxch")
    a.label("L_a1_left")
    a(f"ds_write_b64 v18, v[{TL}:{TL+1}]")
    a.label("L_a1_noxch")
    cvt(VV[2]+2, HA)
    cvt(K0, acc(2, 0)); cvt(K0+4, acc(3, 0))
    for n in range(2): cvt(VV[n]+2, acc(5+n, 0))
    for j in range(2):
        q0, q1 = QO[j]
        cvt(q0, acc(0, j)); cvt(q1+2, acc(1, j))
        a(f"v_mov_b32 v{q0+2}, v{XR_[j]}", f"v_mov_b32 v{q1+1}, v{XR_[j]+1}",
          f"v_mov_b32 v{q0+3}, 0", f"v_mov_b32 v{q1}, 0", f"v_mov_b32 v{KT[j]+2}, 0", f"v_mov_b32 v{KT[j]+3}, 0")
        a(f"v_permlane16_swap_b32 v{q0+2}, v{KT[j]+2}", f"v_permlane16_swap_b32 v{q1+1}, v{KT[j]+3}")
    a("s_waitcnt lgkmcnt(0)", "s_barrier")
    pr.stamp("a1xch")
    a(f"s_and_b32 s37, s{S_I}, 7", f"s_mul_i32 s37, s37, {PO_TASK}", f"s_mul_i32 s38, s{S_WAVE}, {23*1024}", "s_add_u32 s37, s37, s38", f"s_add_u32 s37, s37, {PO}")
    po = dma_items(23, 37, 38, s_tmp=39); cut = 6*npo
    a = Asm()
    a(f"ds_read_b64 v[{KP}:{KP+1}], v15", f"ds_read_b64 v[{KP+4}:{KP+5}], v15 offset:512", f"ds_read_b64 v[{KP+2}:{KP+3}], v17 offset:1024")
    for n in range(3): a(f"ds_read_b64 v[{VV[n]}:{VV[n]+1}], v15 offset:{1536 + 512*n}")
    units = [(1, 0), (1, 1), (0, 0), (0, 1)]
    SS = lambda u: 32 + 8*u
    PP = lambda u: 64 + 4*u
    OO = lambda u: 80 + 8*u if u < 3 else 164
    for u, (j, h) in enumerate(units):
        if u == 2: a("s_waitcnt lgkmcnt(3)")
        prev = (K0 if j == 1 else KP) + 2*h; cur = KT[j] + 2*h; q = QO[j][h]; cp_ = CB if j == 1 else CB + 8
        a(f"v_mfma_f32_16x16x32_bf16 v[{SS(u)}:{SS(u)+3}], v[{prev}:{prev+3}], v[{q}:{q+3}], v[{cp_}:{cp_+3}]",
          f"v_mfma_f32_16x16x32_bf16 v[{SS(u)+4}:{SS(u)+7}], v[{cur}:{cur+3}], v[{q}:{q+3}], v[{CB+4}:{CB+7}]")
    MX, TM, SM = 20, 24, 28
    for u in range(4):
        for r in range(4): a(f"v_max_f32 v{SS(u)+r}, v{SS(u)+r}, v{SS(u)+4+r}")
    for u in range(4): a(f"v_max3_f32 v{MX+u}, v{SS(u)}, v{SS(u)+1}, v{SS(u)+2}")
    for u in range(4): a(f"v_max_f32 v{MX+u}, v{MX+u}, v{SS(u)+3}")
    xreduce(a, [MX+u for u in range(4)], TM, op="v_max_f32")
    for u in range(4): a(f"v_mul_f32 v{MX+u}, s34, v{MX+u}")
    for r in range(4):
        for u in range(4): a(f"v_fma_f32 v{SS(u)+r}, v{SS(u)+r}, s34, -v{MX+u}")
        for u in range(4): a(f"v_exp_f32 v{SS(u)+r}, v{SS(u)+r}")
    for u in range(4): a(f"v_add_f32 v{SM+u}, v{SS(u)}, v{SS(u)+1}")
    for r in range(2, 4):
        for u in range(4): a(f"v_add_f32 v{SM+u}, v{SM+u}, v{SS(u)+r}")
    xreduce(a, [SM+u for u in range(4)], TM)
    for u in range(4): a(f"v_rcp_f32 v{SM+u}, v{SM+u}")
    for r in range(4):
        for u in range(4): a(f"v_mul_f32 v{SS(u)+r}, v{SS(u)+r}, v{SM+u}")
    for u in range(4):
        for d in range(2): a(f"v_cvt_pk_bf16_f32 v{SS(u)+4+d}, v{SS(u)+2*d}, v{SS(u)+2*d+1}")
    for u, (j, h) in enumerate(units):
        for d in range(2):
            a(f"v_and_b32 v{PP(u)+d}, v{(MK if j == 1 else MK + 4) + d}, v{SS(u)+4+d}", f"v_and_b32 v{PP(u)+2+d}, v{MK+2+d}, v{SS(u)+4+d}")
    a("s_waitcnt lgkmcnt(0)")
    for u, (j, h) in enumerate(units):
        va = VV[h] + 2*j; vx = VV[2] + 2*j
        a(f"v_mfma_f32_16x16x32_bf16 v[{OO(u)}:{OO(u)+3}], v[{va}:{va+3}], v[{PP(u)}:{PP(u)+3}], 0",
          f"v_mfma_f32_16x16x32_bf16 v[{OO(u)+4}:{OO(u)+7}], v[{vx}:{vx+3}], v[{PP(u)}:{PP(u)+3}], 0")
    att = a.lines; a = outer_a
    weave(a, att, po[:cut], start=8, every=10)
    a("v_lshlrev_b32 v14, 3, v12", f"v_mov_b32 v15, {OOB}", f"v_cmp_gt_u32 vcc, 16, v{V_LANE}", "v_cndmask_b32 v14, v15, v14, vcc")
    a(f"s_add_u32 s26, s24, s{sL['OB']}", "s_lshl_b32 s27, s21, 10", "s_add_u32 s27, s27, s26",
      "s_lshl_b32 s28, s21, 7", f"s_add_u32 s28, s28, {64*256}", "s_add_u32 s28, s28, s26", f"s_add_u32 s30, s27, {TILE}", f"s_add_u32 s31, s28, {TILE}")
    for j in (1, 0):
        u0 = units.index((j, 0)); u1 = units.index((j, 1)); o = 32 + 8*j
        cvt(o, OO(u0)); cvt(o+2, OO(u1))
        a(f"v_cvt_pk_bf16_f32 v{o+4}, v{OO(u0)+4}, v{OO(u0)+5}", f"v_cvt_pk_bf16_f32 v{o+5}, v{OO(u1)+6}, v{OO(u1)+7}")
        vm.op(f"buffer_store_dwordx4 v[{o}:{o+3}], v{V_L16}, {WS}, s{30 if j else 27} offen {stpol()}")
        vm.op(f"buffer_store_dwordx2 v[{o+4}:{o+5}], v14, {WS}, s{31 if j else 28} offen {stpol()}")
    a("s_lshl_b32 s26, s20, 4", "s_add_u32 s26, s26, s21")
    set_flag_addr(a, 26, FL_O, sL["FL"])
    pr.stamp('a1att')
    return po[cut:]
```

```python
from asmlib import *
from layout import *

KA = dict(x=0, wqkv=8, wo=16, wg=32, wu=40, wd=48, out=56, dbg=64, ws=72)
WS = "s[8:11]"
S_WAVE = 4
S_X, S_I = 5, 6
V_LANE, V_L16 = 1, 2
OOB = 0x7ff00000

class VM:
    def __init__(self, a): self.a = a; self.n = 0
    def op(self, text):
        self.a(text); self.n += 1
        return self.n
    def count_after(self, tag): return self.n - tag
    def wait(self, tag):
        self.a(f"s_waitcnt vmcnt({min(63, self.n - tag)})")

def srd(a, dst, src, nbytes):
    a(f"s_mov_b32 s{dst}, s{src}", f"s_and_b32 s{dst+1}, s{src+1}, 0xffff",
      f"s_mov_b32 s{dst+2}, {nbytes}", f"s_mov_b32 s{dst+3}, 0x20000")

def entry(a, name, nwg, end):
    a(".p2align 8"); a(f".globl {name}"); a(f".type {name},@function"); a.label(name)
    a(f"s_cmp_ge_u32 s2, {nwg}", f"s_cbranch_scc1 {end}")

def common(a):
    a(f"s_load_dwordx2 s[12:13], s[0:1], {KA['ws']}")
    a(f"v_and_b32 v{V_LANE}, 63, v0", "v_lshrrev_b32 v3, 6, v0", f"v_lshlrev_b32 v{V_L16}, 4, v{V_LANE}")
    a(f"v_readfirstlane_b32 s{S_WAVE}, v3")
    a(f"s_and_b32 s{S_X}, s2, 7", f"s_lshr_b32 s{S_I}, s2, 3")
    a("s_waitcnt lgkmcnt(0)")
    srd(a, 8, 12, WS_BYTES)

def xreduce(a, regs, tmp, steps=("16", "32"), op="v_add_f32"):
    for st in steps:
        if st == "8":
            for r in regs: a(f"{op}_dpp v{r}, v{r}, v{r} row_ror:8 row_mask:0xf bank_mask:0xf")
            continue
        for n, r in enumerate(regs): a(f"v_mov_b32 v{tmp+n}, v{r}")
        for n, r in enumerate(regs): a(f"v_permlane{st}_swap_b32 v{r}, v{tmp+n}")
        for n, r in enumerate(regs): a(f"{op} v{r}, v{r}, v{tmp+n}")

_uid = [0]
NONCE = 68
SPIN = [0x100000]
POL = dict(st="sc1", ld="sc1", pl="sc1")
def stpol(): return POL["st"]
def ldpol(): return POL["ld"]
def plpol(): return POL["pl"]
FLANES = [16]
def flag_store(a, s_addr, v_id=0, pol="sc1"):
    flag_regs(a, v_id)
    a(f"buffer_store_dwordx2 v[14:15], v13, {WS}, s{s_addr} offen {pol}")

def flag_regs(a, v_id=0):
    a(f"v_mov_b32 v13, {OOB}", f"v_cmp_gt_u32 vcc, {FLANES[0]}, v{v_id}", f"v_lshlrev_b32 v14, 3, v{v_id}", "v_cndmask_b32 v13, v13, v14, vcc",
      f"v_mov_b32 v14, s{NONCE}", f"v_mov_b32 v15, s{NONCE+1}")

S_FLAG = 14
def commit(a):
    flag_regs(a)
    a("s_waitcnt vmcnt(0)", "s_barrier", f"buffer_store_dwordx2 v[14:15], v13, {WS}, s{S_FLAG} offen {stpol()}")

def set_flag_addr(a, s_idx, base, s_fl=None):
    a(f"s_lshl_b32 s{S_FLAG}, s{s_idx}, {FS}", f"s_add_u32 s{S_FLAG}, s{S_FLAG}, {base}")
    if s_fl is not None: a(f"s_add_u32 s{S_FLAG}, s{S_FLAG}, s{s_fl}")

POLL_CFG = dict(sleep=0)
def await_flags(a, v_off, s_base, pol=None):
    _uid[0] += 1; u = _uid[0]; sl = POLL_CFG["sleep"]
    a("s_mov_b32 s52, 0")
    a.label(f"L_poll{u}")
    a(f"buffer_load_dwordx2 v[14:15], v{v_off}, {WS}, s{s_base} offen {pol or plpol()}", "s_add_u32 s52, s52, 1", "s_waitcnt vmcnt(0)",
      f"v_cmp_ne_u64 vcc, s[{NONCE}:{NONCE+1}], v[14:15]", f"s_cmp_ge_u32 s52, {SPIN[0]}", f"s_cbranch_scc1 L_got{u}", "s_and_b64 exec, exec, vcc")
    if sl: a(f"s_cbranch_execz L_got{u}", f"s_sleep {sl}", f"s_branch L_poll{u}")
    else: a(f"s_cbranch_execnz L_poll{u}")
    a.label(f"L_got{u}")
    a("s_mov_b64 exec, -1")

def div(a, dst, src, d, maxv):
    sh = 16; m = (1 << sh) // d + 1
    assert all((v * m) >> sh == v // d for v in range(maxv)), (d, maxv)
    a(f"s_mul_i32 s{dst}, s{src}, {m}", f"s_lshr_b32 s{dst}, s{dst}, {sh}")

def dma_items(nfrag, s_src, s_lds, s_tmp=40, pol="sc1"):
    out = []
    for q0 in range(0, nfrag, 4):
        out += [f"s_add_u32 m0, s{s_lds}, {q0*1024}", f"s_add_u32 s{s_tmp}, s{s_src}, {q0*1024}"]
        out += [f"buffer_load_dwordx4 v{V_L16}, {WS}, s{s_tmp} offen offset:{q*1024} {pol} lds" for q in range(min(4, nfrag - q0))]
    return out

def weave(a, main, side, start=0, every=1):
    side = list(side); n = 0
    for x in main:
        a(x); n += 1
        if side and n >= start and (n - start) % every == 0 and not x.startswith(("s_cmp", "v_cmp", "s_cbranch", "s_waitcnt")) and not x.endswith(":"):
            while side and side[0].startswith("s_"): a(side.pop(0))
            if side: a(side.pop(0))
    for x in side: a(x)

def f32(x):
    import struct
    return "0x%08x" % struct.unpack("<I", struct.pack("<f", x))[0]

class Prof:
    regs = list(range(78, 100, 2)) + list(range(54, 68, 2)) + [100]
    sets = {1: "a1go a1k2 a1gemm a1end a2go a2gemm a2end fgo s36 s162 fst fend rgo rsum rend".split(),
            6: "p2 px pst pend qgo wiss a1go a1k2 a1gemm a1att a1end a2go a2end fgo s36 rend".split(),
            7: "p1 p2 pep pxr pga piss px pst pend rend".split(),
            8: "p1 p2 piss rxr rbar px pst pdr qgo rend".split(),
            9: "s0 s18 s36 s54 s72 s90 s108 s126 s144 s162 s178 s194 s210 s226 fst rend".split(),
            10: [f"s{n}" for n in range(168, 200, 2)],
            11: [f"s{n}" for n in range(228, 243)] + ["fst"],
            12: [f"s{n}" for n in range(54, 70)],
            13: [f"s{n}" for n in range(92, 108)],
            14: [f"s{n}" for n in range(144, 160)],
            15: [f"s{n}" for n in range(196, 212)],
            2: "fgo fiss fbar s0 s2 s4 s8 s12 s18 s36 s141 s144 s150 s156 s162 rend".split(),
            3: "a1go a1iss a1bar a1k2 a1k8 a1gemm a1xch a1att a1end a2go a2iss a2k2 a2gemm a2st a2end rend".split(),
            5: "s214 fst fend rpre rgo r1 r4 rsum rxr rbar rst rw3 rw2 rw1 rw0 rend".split(),
            4: "s18 s36 s54 s72 s90 s108 s126 s144 s162 s170 s178 s186 s194 s210 s214 fst".split()}
    def __init__(self, a, on): self.a = a; self.on = on; self.n = 0; self.names = []
    def stamp(self, name, cyc=False):
        if not self.on or (name not in self.sets[self.on] and name not in ("c0", "c1", "start")): return
        assert self.n < len(self.regs)
        r = self.regs[self.n]; self.n += 1; self.names.append(name)
        if self.on in (4, 10, 11, 12, 13, 14, 15): cyc = True
        self.a(f"s_mem{'' if cyc else 'real'}time s[{r}:{r+1}]")
    def to_debug(self, wg, first, idx):
        a = self.a; _uid[0] += 1; u = _uid[0]
        a("s_waitcnt lgkmcnt(0)", f"s_cmp_eq_u32 s2, {wg}", f"s_cbranch_scc0 L_nd{u}", f"s_cmp_eq_u32 s{S_WAVE}, 0", f"s_cbranch_scc0 L_nd{u}",
          f"s_load_dwordx2 s[12:13], s[0:1], {KA['dbg']}", "v_mov_b32 v250, 0", "s_waitcnt lgkmcnt(0)")
        srd(a, 44, 12, 256)
        for n, i in enumerate(idx): a(f"s_sub_u32 s40, s{self.regs[i]}, s3", f"v_writelane_b32 v250, s40, {n}")
        a(f"v_lshlrev_b32 v251, 2, v{V_LANE}", f"v_mov_b32 v252, {OOB}", f"v_cmp_gt_u32 vcc, {len(idx)}, v{V_LANE}", "v_cndmask_b32 v251, v252, v251, vcc",
          f"buffer_store_dword v250, v251, s[44:47], 0 offen offset:{4*first}")
        a.label(f"L_nd{u}")
    def flush(self, s_slot):
        if not self.on: return
        a = self.a
        a("s_waitcnt lgkmcnt(0)", "v_mov_b32 v250, 0")
        for i in range(self.n): a(f"v_writelane_b32 v250, s{self.regs[i]}, {i}")
        a(f"s_lshl_b32 s100, s{s_slot}, 18", "s_lshl_b32 s101, s2, 10", "s_add_u32 s100, s100, s101", f"s_lshl_b32 s101, s{S_WAVE}, 8",
          "s_add_u32 s100, s100, s101", f"s_add_u32 s100, s100, {PROF}", f"v_lshlrev_b32 v251, 2, v{V_LANE}",
          f"buffer_store_dword v250, v251, {WS}, s100 offen")
```

```python
from gen_common import *
from gen_a1 import warm_items
import math

STAGE, NS, PER = 24, 6, 6
SLOT0 = 4
NPRE = 4
F_LDS = STAGE * NS * 1024
NSTAGE = (486 + STAGE - 1) // STAGE
MF = "v_mfma_f32_16x16x32_bf16"

PKCOST = [2]
def cost(x):
    if callable(x): return 1
    if isinstance(x, tuple): return 2 if " 0 offen" in x[1] or "store" in x[1] else 3
    return 2 if x.split()[0] in TRANS else (PKCOST[0] if x.startswith("v_pk_") else 1)

_ins = {}
def ins_of(x):
    t = x[1] if isinstance(x, tuple) else x
    if t not in _ins: _ins[t] = Ins(t)
    return _ins[t]

def pick(q, fits, window=12):
    rd = set(); wr = set()
    for i, x in enumerate(q[:window]):
        I = ins_of(x)
        if fits(x) and not (I.rd & wr or I.wr & wr or I.wr & rd): return i
        rd |= I.rd; wr |= I.wr
    return None

def f_ids(a, opts):
    if opts.get("mapping", 0) == 0:
        a(f"s_and_b32 s40, s{S_X}, 1", "s_lshl_b32 s40, s40, 2", f"s_lshr_b32 s41, s{S_I}, 3", "s_add_u32 s40, s40, s41",
          f"s_lshr_b32 s41, s{S_X}, 1", "s_lshl_b32 s41, s41, 3", f"s_and_b32 s42, s{S_I}, 7", "s_add_u32 s41, s41, s42")
    elif opts.get("mapping") == 2:
        a(f"s_mov_b32 s40, s{S_X}", f"s_mov_b32 s41, s{S_I}")
    elif opts.get("mapping") == 3:
        a(f"s_and_b32 s40, s{S_X}, 3", "s_lshl_b32 s40, s40, 1", f"s_lshr_b32 s41, s{S_I}, 4", "s_add_u32 s40, s40, s41",
          f"s_lshr_b32 s41, s{S_X}, 2", "s_lshl_b32 s41, s41, 4", f"s_and_b32 s42, s{S_I}, 15", "s_add_u32 s41, s41, s42")
    else:
        a(f"s_lshr_b32 s40, s{S_I}, 2", f"s_lshl_b32 s41, s{S_X}, 2", f"s_and_b32 s42, s{S_I}, 3", "s_add_u32 s41, s41, s42")
    a("s_lshr_b32 s42, s41, 2", "s_and_b32 s43, s41, 3")

VW, sWd = 3, 22
def ring_dma(stage, wpol="sc1"):
    slot = ((stage + SLOT0) % NS)*STAGE*1024; out = []
    if stage == NSTAGE - 1:
        return [f"s_lshl_b32 s21, s{S_WAVE}, 11", f"s_add_u32 m0, s21, {slot}", f"s_sub_u32 s21, s21, s{sWd}",
                f"s_add_u32 s21, s21, {STAGE*1024 - 4096}", f"v_add_u32 v{VW}, s21, v{VW}"] + \
               [("vm", f"buffer_load_dwordx4 v{VW}, {WS}, 0 offen offset:{q*1024} {wpol} lds", ("w", stage)) for q in range(2)]
    for q0 in (0, 4):
        out += [f"s_add_u32 m0, s{sWd}, {slot + q0*1024}"]
        if stage or q0: out += [f"v_add_u32 v{VW}, {4096 if q0 else STAGE*1024 - 4096}, v{VW}"]
        out += [("vm", f"buffer_load_dwordx4 v{VW}, {WS}, 0 offen offset:{q*1024} {wpol} lds", ("w", stage)) for q in range(min(4, PER - q0))]
    return out

def f_early(a, opts):
    a(f"s_mul_i32 s{sWd}, s{S_WAVE}, {PER*1024}", f"s_mul_i32 s23, s41, {PF_TASK}", f"s_add_u32 s23, s23, s{sWd}", f"s_add_u32 s23, s23, {PF}",
      f"v_add_u32 v{VW}, s23, v{V_L16}")
    return [x[1] if isinstance(x, tuple) else x for st in range(2) for x in ring_dma(st)]

def gen_f(a, sL, tail, pr, opts, cp="sc1"):
    vm = VM(a); tag = {}; PKCOST[0] = opts.get('pk', 0) or 2
    wpol = 'sc1 nt' if opts.get('wnt', 0) else 'sc1'
    VJ = [V_L16, 4, 5, 6]; VB = [V_L16, 7, 8]
    VODD, VFS, VFL, VFV, VQ = 9, 10, 11, 12, 252
    VJH = [248, 249, 250, 251]
    XV, RING, NW = 16, 48, 8
    HOWN, TMP, HS, CON = 144, 208, 224, 232
    ACC = [80, 112, HOWN + 32]
    aset = lambda pos: ACC[[0, 1, 2, 0, 1, 0, 1, 0, 1][pos]]
    OUT = 112
    sX, sH, sM, sP, sF, sPJ = 20, 24, 28, 31, 34, 36
    dma = lambda stage: ring_dma(stage, wpol)
    def rd(n):
        off = ((n + SLOT0*STAGE) % (STAGE*NS))*1024; w = RING + 4*(n % NW)
        return f"ds_read_b128 v[{w}:{w+3}], v{VB[off // 65536]} offset:{off % 65536}"
    def xreg(k, j): return f"a[{(4*k+j)*4}:{(4*k+j)*4+3}]" if k < 16 else f"v[{XV + (4*(k-16)+j)*4}:{XV + (4*(k-16)+j)*4+3}]"
    def xload(k):
        out = [f"s_add_u32 s48, s{sX}, {(k >> 2)*4096}"] if k % 4 == 0 else []
        return out + [("vm", f"buffer_load_dwordx4 {xreg(k, j)}, v{VJ[j]}, {WS}, s48 offen offset:{(k & 3)*1024} {ldpol()}", ("x", k)) for j in range(4)]
    def emit(x):
        if callable(x): x()
        elif isinstance(x, tuple): tag[x[2]] = vm.op(x[1])
        else: a(x)
    a("s_lshl_b32 s44, s40, 4", f"s_lshl_b32 s45, s{S_WAVE}, 2", "s_add_u32 s44, s44, s45")
    a(f"s_mul_i32 s46, s44, {TILE}", f"s_add_u32 s{sX}, s46, s{sL['X1']}")
    for j in range(1, 4): a(f"v_add_u32 v{VJ[j]}, {j*TILE}, v{V_L16}")
    a(f"v_lshlrev_b32 v{VJH[0]}, 3, v{V_LANE}")
    for j in range(1, 4): a(f"v_add_u32 v{VJH[j]}, {j*TILE}, v{VJH[0]}")
    a(f"v_and_b32 v13, 15, v{V_LANE}", f"v_lshrrev_b32 v14, 4, v{V_LANE}")
    a(f"v_add_u32 v{VB[1]}, 0x10000, v{V_L16}", f"v_add_u32 v{VB[2]}, 0x20000, v{V_L16}")
    a(f"v_and_b32 v{VODD}, 1, v14", f"v_mul_u32_u24 v{VODD}, {TILE}, v{VODD}", "v_lshrrev_b32 v15, 1, v14", "v_lshlrev_b32 v15, 8, v15",
      "v_lshl_add_u32 v15, v13, 4, v15", f"v_add_u32 v{VODD}, v{VODD}, v15")
    a(f"v_and_b32 v{VFL}, 3, v{V_LANE}", f"v_lshlrev_b32 v{VFL}, {FS}, v{VFL}", f"s_lshl_b32 s49, s43, {FS}", f"v_mov_b32 v{VFS}, {OOB}",
      f"v_lshl_add_u32 v15, v{V_LANE}, 3, s49", f"v_cmp_gt_u32 vcc, {FLANES[0]}, v{V_LANE}", f"v_cndmask_b32 v{VFS}, v{VFS}, v15, vcc")
    a("s_lshl_b32 s49, s40, 3", "s_add_u32 s49, s49, s42")
    a("s_lshl_b32 s50, s49, 2", f"s_add_u32 s50, s50, s{S_WAVE}", f"s_lshl_b32 s50, s50, {2+FS}", f"s_add_u32 s{sF}, s50, s{sL['FL']}", f"s_add_u32 s{sF}, s{sF}, {FL_H}")
    a("s_lshl_b32 s49, s49, 4", "s_add_u32 s49, s49, s45", f"s_mul_i32 s49, s49, {TILE}", f"s_add_u32 s49, s49, s{sL['HB']}")
    for rel in range(4):
        a(f"s_add_u32 s50, s43, {rel}", "s_and_b32 s50, s50, 3", "s_mul_i32 s50, s50, 9", "s_add_u32 s50, s50, 1", "s_lshr_b32 s50, s50, 1",
          "s_lshl_b32 s50, s50, 10", f"s_add_u32 s{sH+rel}, s49, s50")
    a(f"s_add_u32 s{sM}, s49, {4*1024}", f"s_add_u32 s{sM+1}, s49, {13*1024}", "s_cmp_ge_u32 s43, 2", f"s_cselect_b32 s50, s{sM+1}, s{sM}",
      "s_and_b32 s51, s43, 1", "s_lshl_b32 s51, s51, 9", f"s_add_u32 s{sM+2}, s50, s51")
    a(f"s_mul_i32 s50, s42, {ACT}", "s_add_u32 s50, s50, s46", f"s_add_u32 s50, s50, s{sL['PART']}", "s_lshl_b32 s51, s43, 12",
      f"s_add_u32 s{sP}, s50, s51", "s_lshl_b32 s51, s43, 9", "s_add_u32 s50, s50, s51", f"s_add_u32 s{sP+1}, s50, 16384", f"s_add_u32 s{sP+2}, s{sP+1}, {2*TILE}")
    for j in range(4): a(f"s_add_u32 s{sPJ+j}, s{sP}, {j*TILE}")
    a(f"v_lshlrev_b32 v{VQ}, 4, v13", f"v_lshl_add_u32 v{VQ}, v14, 9, v{VQ}")
    a("s_lshl_b32 s35, s40, 5", "s_add_u32 s35, s35, s41", f"s_lshl_b32 s35, s35, {FS}",
      f"s_add_u32 s35, s35, s{sL['FL']}", f"s_add_u32 s35, s35, {FL_P}")
    a("v_lshlrev_b32 v17, 3, v13", "v_lshl_add_u32 v17, v14, 8, v17", "s_lshl_b32 s47, s44, 10", f"s_add_u32 s47, s47, s{sL['ST']}")
    a(f"s_lshl_b32 s49, s44, {1+FS}", f"s_add_u32 s49, s49, s{sL['FL']}", f"s_add_u32 s49, s49, {FL_X}", f"v_and_b32 v16, 7, v{V_LANE}", f"v_lshlrev_b32 v16, {FS}, v16")
    a(f"s_lshl_b32 s50, s43, {FS}", f"s_add_u32 s44, s35, {FL_Q - FL_P}", "s_sub_u32 s44, s44, s50", f"s_cmp_eq_u32 s{S_WAVE}, 0",
      f"s_cselect_b32 s44, s44, {OOB}")
    commit(a)
    pr.stamp("a2end")
    for st in range(2, NPRE):
        for x in dma(st): emit(x)
    for n in range(6): a(rd(n))
    await_flags(a, 16, 49)
    pr.stamp("fgo")
    BURST = opts.get('fburst', 5)
    for k in range(BURST):
        for x in xload(k): emit(x)
        if k == 1:
            for j in range(4):
                for h in range(2):
                    r = HOWN + 4*j + 2*h
                    tag["st"] = vm.op(f"buffer_load_dwordx2 v[{r}:{r+1}], v17, {WS}, s47 offen offset:{j*1024 + h*128} {ldpol()}")
    pr.stamp("fiss")
    pr.stamp("fbar")

    def consts():
        b = Asm(); sr = []
        for j in range(4):
            r = HOWN + 4*j
            b(f"v_add_f32 v{r}, v{r}, v{r+2}", f"v_add_f32 v{r+1}, v{r+1}, v{r+3}"); sr += [r, r+1]
        xreduce(b, sr, HOWN + 16)
        k1 = -2.0 * math.sqrt(2.0 / math.pi) * math.log2(math.e); k2 = k1 * 0.044715
        rows = []
        for j in range(4):
            r = HOWN + 4*j; c = CON + 4*j
            rows.append([f"v_mul_f32 v{r}, {f32(1/576)}, v{r}", f"v_mul_f32 v{r+1}, {f32(1/576)}, v{r+1}", f"v_fma_f32 v{r+1}, -v{r}, v{r}, v{r+1}",
                         f"v_max_f32 v{r+1}, 0, v{r+1}", f"v_add_f32 v{c+2}, {f32(1e-5)}, v{r+1}", f"v_rsq_f32 v{r}, v{c+2}",
                         f"v_mul_f32 v{c}, {f32(k1)}, v{r}", f"v_mul_f32 v{r+1}, v{r}, v{r}", f"v_mul_f32 v{r+1}, v{r+1}, v{r}",
                         f"v_mul_f32 v{c+1}, {f32(k2)}, v{r+1}"])
        for col in zip(*rows): b(list(col))
        return b.lines
    def gelu(pos, tmp=TMP):
        acc = aset(pos); out = []
        for j in range(4):
            c = CON + 4*j
            for h in range(2):
                st = []
                for e in range(2):
                    g = acc + 4*j + 2*h + e; u = g + 16; t = tmp + 4*((2*j + h) % 2) + 2*e
                    st.append([f"v_mul_f32 v{t}, v{g}, v{g}", f"v_fma_f32 v{t}, v{t}, v{c+1}, v{c}", f"v_mul_f32 v{t}, v{t}, v{g}",
                               f"v_exp_f32 v{t}, v{t}", f"v_mul_f32 v{t+1}, v{g}, v{u}", f"v_fma_f32 v{t}, v{t}, v{c+2}, v{c+2}",
                               f"v_rcp_f32 v{t}, v{t}", f"v_mul_f32 v{t+1}, v{t+1}, v{t}"])
                t = tmp + 4*((2*j + h) % 2)
                if opts.get("pk", 0):
                    g = acc + 4*j + 2*h; P = lambda r: f"v[{r}:{r+1}]"; w = t + 2
                    out += [f"v_pk_mul_f32 {P(t)}, {P(g)}, {P(g)}",
                            f"v_pk_fma_f32 {P(t)}, {P(t)}, {P(c)}, {P(c)} op_sel:[0,1,0] op_sel_hi:[1,1,0]",
                            f"v_pk_mul_f32 {P(t)}, {P(t)}, {P(g)}", f"v_exp_f32 v{t}, v{t}", f"v_exp_f32 v{t+1}, v{t+1}",
                            f"v_pk_mul_f32 {P(w)}, {P(g)}, {P(g+16)}",
                            f"v_pk_fma_f32 {P(t)}, {P(t)}, {P(c+2)}, {P(c+2)} op_sel_hi:[1,0,0]",
                            f"v_rcp_f32 v{t}, v{t}", f"v_rcp_f32 v{t+1}, v{t+1}", f"v_pk_mul_f32 {P(w)}, {P(w)}, {P(t)}"]
                    dst = HS + 2*j + h if pos == 0 else HOWN + 16*((pos-1)//2) + 4*j + 2*((pos-1) % 2) + h
                    out.append(f"v_cvt_pk_bf16_f32 v{dst}, v{w}, v{w+1}")
                    continue
                for x, y in zip(*st): out += [x, y]
                dst = HS + 2*j + h if pos == 0 else HOWN + 16*((pos-1)//2) + 4*j + 2*((pos-1) % 2) + h
                out.append(f"v_cvt_pk_bf16_f32 v{dst}, v{t+1}, v{t+3}")
            if pos == 0:
                out.append(("vm", f"buffer_store_dwordx2 v[{HS+2*j}:{HS+2*j+1}], v{VJH[j]}, {WS}, s{sM+2} offen {stpol()}", ("hs", 0)))
            elif pos % 2 == 0:
                p = (pos-1)//2; r = HOWN + 16*p + 4*j
                out.append(("vm", f"buffer_store_dwordx4 v[{r}:{r+3}], v{VJ[j]}, {WS}, s{sH} offen offset:{p*1024} {stpol()}", ("hs", pos)))
        return out
    hreg = {0: ("v", HOWN), 1: ("v", HOWN+16), 2: ("v", HOWN+32), 11: ("v", HOWN+48)}
    for n, pos in enumerate(range(3, 10)): hreg[pos] = ("a", 16*n)
    hreg[10] = ("v", XV); hreg[12] = ("v", XV+16); hreg[13] = ("v", aset(7)); hreg[14] = ("v", aset(7)+16)
    hreg[15] = ("v", aset(8)); hreg[16] = ("v", aset(8)+16); hreg[17] = ("v", CON)
    def hfrag(pos, j):
        k, r = hreg[pos]; return f"{k}[{r+4*j}:{r+4*j+3}]"
    def hload(pos):
        rel, p = KPOS[pos]
        if rel == "mix":
            k, r = hreg[pos]
            return [("vm", f"buffer_load_dwordx2 {k}[{r+4*j+2*h}:{r+4*j+2*h+1}], v{VJH[j]}, {WS}, s{sM+p} offen offset:{512*h} {ldpol()}", ("h", pos))
                    for j in range(4) for h in range(2)]
        return [("vm", f"buffer_load_dwordx4 {hfrag(pos, j)}, v{VJ[j]}, {WS}, s{sH+rel} offen offset:{p*1024} {ldpol()}", ("h", pos)) for j in range(4)]
    done = set()
    def set_flag(val, keys):
        def w():
            assert all(k in done for k in keys), (val, keys)
            vm.wait(max(tag[("hs", k)] for k in keys))
        return [f"v_mov_b32 v{VFV}, s{NONCE}", f"v_mov_b32 v{VFV+1}, s{NONCE+1}", f"s_add_u32 s53, s{sF}, {(val-1) << (10+FS)}", w,
                ("vm", f"buffer_store_dwordx2 v[{VFV}:{VFV+1}], v{VFS}, {WS}, s53 offen {stpol()}", ("fs", val))]
    def poll(val):
        return [f"s_add_u32 s23, s{sF}, {(val-1) << (10+FS)}", ("vm", f"buffer_load_dwordx2 v[14:15], v{VFL}, {WS}, s23 offen {plpol()}", ("fl", val))]
    def check(val):
        def f():
            vm.wait(tag[("fl", val)])
            a(f"v_cmp_eq_u64 vcc, s[{NONCE}:{NONCE+1}], v[14:15]", "s_nop 0", "s_cmp_eq_u64 vcc, exec", f"s_cbranch_scc0 L_f_slow{val}")
            a.label(f"L_f_back{val}")
            tail(f"L_f_slow{val}:", "s_mov_b32 s52, 0", f"L_f_spin{val}:",
                 f"buffer_load_dwordx2 v[14:15], v{VFL}, {WS}, s23 offen {plpol()}", "s_add_u32 s52, s52, 1", "s_waitcnt vmcnt(0)",
                 f"v_cmp_eq_u64 vcc, s[{NONCE}:{NONCE+1}], v[14:15]", f"s_cmp_gt_u32 s52, {SPIN[0]}", f"s_cbranch_scc1 L_f_back{val}",
                 "s_cmp_eq_u64 vcc, exec", f"s_cbranch_scc0 L_f_spin{val}", f"s_branch L_f_back{val}")
        return f
    def epilogue(tiles):
        out = []
        if len(tiles) == 4:
            Q = tiles[0] // 4
            for j in range(4):
                for h in range(2):
                    t = TMP + 8*h; pk = HS + 4*h
                    out += [f"v_accvgpr_read_b32 v{t + 4*rr + jj}, a{OUT + ((4*Q + jj)*4 + j)*4 + 2*h + rr}" for rr in range(2) for jj in range(4)]
                    out += [f"v_cvt_pk_bf16_f32 v{pk+d}, v{t+2*d}, v{t+2*d+1}" for d in range(4)]
                    out.append(("vm", f"buffer_store_dwordx4 v[{pk}:{pk+3}], v{VQ}, {WS}, s{sPJ+j} offen offset:{Q*2048 + h*256} {stpol()}", ("o", Q)))
        else:
            for jp in range(2):
                t = TMP + 8*jp; pk = HS + 4*jp
                for n in range(2):
                    r = OUT + (8*4 + 2*jp + n)*4
                    out += [f"v_accvgpr_read_b32 v{t+4*n+e}, a{r+e}" for e in range(4)]
                out += [f"v_cvt_pk_bf16_f32 v{pk+d}, v{t+2*d}, v{t+2*d+1}" for d in range(4)]
                out += [f"v_permlane16_swap_b32 v{pk}, v{pk+2}", f"v_permlane16_swap_b32 v{pk+1}, v{pk+3}"]
                out.append(("vm", f"buffer_store_dwordx4 v[{pk}:{pk+3}], v{VODD}, {WS}, s{sP+1+jp} offen {stpol()}", ("o", 4)))
        return out

    steps = []
    def gstep(pos, kp, mat, wait=None):
        d = [f"v[{aset(pos) + 16*mat + 4*j}:{aset(pos) + 16*mat + 4*j + 3}]" for j in range(4)]
        steps.append(dict(d=d, b=[[xreg(2*kp + c, j) for c in range(2)] for j in range(4)], first=kp == 0, wait=wait))
    for kp in range(9):
        for pos in range(2):
            for mat in range(2): gstep(pos, kp, mat, ("x", 2*kp+1) if pos == 0 and mat == 0 else None)
    for pos in range(2, 9):
        for kp in range(9):
            for mat in range(2): gstep(pos, kp, mat)
    P2 = len(steps)
    for start, n, tiles in KBLOCKS:
        for t in tiles:
            for c0 in range(0, n, 2):
                d = [f"a[{OUT + (t*4+j)*4}:{OUT + (t*4+j)*4 + 3}]" for j in range(4)]
                need_h = [p for p in (start+c0, start+c0+1) if KPOS[p][0] != 0]
                steps.append(dict(d=d, b=[[hfrag(start + c0 + c, j) for c in range(2)] for j in range(4)], first=start + c0 == 0,
                                  wait=("h", need_h[-1]) if need_h and t == 0 else None))
    NSTEP = len(steps); q0 = P2 + 56 + OS; q1 = q0 + 16
    groups = []
    def add(rel, dl, items): groups.append(dict(rel=rel, dl=dl, q=list(items)))
    bstep = lambda b: (STAGE*b - 6) // 2
    need = {}
    for n, st in enumerate(steps):
        for j in range(2):
            for pos in range(18):
                if st["b"][0][j] == hfrag(pos, 0) and n >= P2: need.setdefault(pos, n)
    LEAD = opts.get("lead", 13); f2 = opts.get("f2", 150); f3 = opts.get("f3", 182)
    for k in range(BURST, 18): add(0, k, xload(k))
    add(0, 18, dma(4))
    add(121, 121, set_flag(1, (0, 2, 4))); add(132, 132, poll(1)); add(143, 143, [check(1)])
    add(f2, f2, set_flag(2, (6,))); add(f2 + 10, f2 + 10, poll(2)); add(f2 + 21, f2 + 21, [check(2)])
    add(f3, f3, set_flag(3, (8,))); add(f3 + 6, f3 + 6, poll(3)); add(f3 + 13, f3 + 13, [check(3)])
    for pos in range(3, 18):
        if pos == 11: continue
        rel = 146 + 2*((pos - 3)//2) if pos < 10 else (163 if pos == 10 else (f2 + 22 if pos < 15 else f3 + 14))
        add(rel, max(rel, need[pos] - LEAD) + pos/100, hload(pos))
    def next_mem(s):
        live = [g for g in groups if g["q"] and g["rel"] <= s]
        return min(live, key=lambda g: g["dl"]) if live else None
    def force(key, s):
        for g in sorted(groups, key=lambda g: g["dl"]):
            if any(isinstance(x, tuple) and x[2] == key for x in g["q"]):
                assert g["rel"] <= s, (key, s)
                late.append(("mem", key, s))
                while g["q"]: emit(g["q"].pop(0))
    jobs = [("c", consts(), 8, 30)]
    jobs += [(0, gelu(0), 36, 54), (1, gelu(1), 36, 72), (2, gelu(2, TMP + 8), 54, 115), (3, gelu(3), 72, 90)]
    jobs += [(p, gelu(p), 18*(p+1), 18*(p+2)) for p in range(4, 7)] + [(7, gelu(7), 144, 163), (8, gelu(8), 162, opts.get('g8', 175))]
    jobs += [("e0", epilogue(range(4)), q0, q0 + opts.get("e0", 11)), ("e1", epilogue(range(4, 8)), q1, NSTEP + 1)]
    jobs = [dict(name=n, q=list(q), t0=t0, t1=t1) for n, q, t0, t1 in jobs]
    after = {5: 2, 8: 7}; GAP = opts.get('gap', 5)
    issued = 6; late = []; gap = 4; pend_rd = 0; bar_next = False
    for s, st in enumerate(steps):
        for jb in jobs:
            if jb["t1"] == s:
                if jb["q"]: late.append((jb["name"], len(jb["q"])))
                while jb["q"]: emit(jb["q"].pop(0))
                done.add(jb["name"])
        if st["wait"]:
            force(st["wait"], s)
            vm.wait(tag[st["wait"]])
        assert issued >= min(486, 2*s + 2)
        a(f"s_waitcnt lgkmcnt({issued - 2*s - 2})")
        pr.stamp(f"s{s}")
        if opts.get("trace") and next_mem(s): print(s, [x[2] for x in next_mem(s)["q"] if isinstance(x, tuple)][:1])
        for n in range(8):
            j, c = n // 2, n % 2
            if opts.get("order", 0) == 1 and j % 2: c = 1 - c
            if opts.get("order", 0) == 2: j, c = n % 4, n // 4
            w = RING + 4*((2*s + c) % NW)
            fresh = st["first"] and (n < 4 if opts.get("order", 0) == 2 else n % 2 == 0)
            a(f"{MF} {st['d'][j]}, v[{w}:{w+3}], {st['b'][j][c]}, {'0' if fresh else st['d'][j]}")
            room = 2 - (1 if n == 7 else 0)
            gap += 1
            if n in (2, 5): pend_rd += 1
            if n == 0 and issued < 486 and issued % STAGE == 0:
                b = issued // STAGE
                force(("w", b), s)
                if b == NSTAGE - 1:
                    assert "e0" in done
                    vm.wait(max(tag[("w", b)], tag[("o", 0)])); room -= 1
                    add(s, s, [f"v_mov_b32 v{VFV}, s{NONCE}", f"v_mov_b32 v{VFV+1}, s{NONCE+1}",
                               ("vm", f"buffer_store_dwordx2 v[{VFV}:{VFV+1}], v{VFS}, {WS}, s44 offen sc1", ("fq", 0))])
                    gap = -2
                elif b >= NPRE: vm.wait(tag[("w", b)]); room -= 1
                bar_next = True
            elif bar_next:
                a("s_barrier"); bar_next = False
                if b + 4 < NSTAGE: add(s, max(18 + b, bstep(b + 4) - (12 if b >= 12 else 40)), dma(b + 4))
                continue
            if pend_rd and issued < 486:
                a(rd(issued)); issued += 1; pend_rd -= 1; room -= 1
            grp = next_mem(s)
            if grp and s >= P2 and 8 not in done and grp["dl"] > s + 7: grp = None
            while grp and grp["q"] and not isinstance(grp["q"][0], tuple) and room > 0: emit(grp["q"].pop(0)); room -= 1
            if grp and grp["q"] and isinstance(grp["q"][0], tuple):
                want = 4 if grp["dl"] <= s + 2 or grp["q"][0][2][0] == "x" else GAP
                if gap >= want and (room == 2 or gap >= want + 2):
                    room -= cost(grp["q"][0]); emit(grp["q"].pop(0)); gap = 0
            g = 8*s + n
            live = sorted((jb for jb in jobs if jb["q"] and 8*jb["t0"] + 3 <= g and after.get(jb["name"], "c") in done | {"c"}), key=lambda jb: jb["t1"])
            for jb in live:
                left = sum(cost(x) for x in jb["q"]); slots = 8*jb["t1"] - g - 2
                lazy = jb is live[-1] and isinstance(jb["name"], int) and jb["name"] in (6,) and left < 1.15*slots - 6
                while jb["q"] and not lazy:
                    urgent = left > 1.9*slots
                    i = pick(jb["q"], lambda x: urgent or (cost(x) <= room and not (isinstance(x, tuple) and gap < 2)))
                    if i is None: break
                    x = jb["q"].pop(i); cx = cost(x)
                    emit(x); room -= cx; left -= cx
                    if isinstance(x, tuple): gap = 0
                    if room <= 0: break
                if not jb["q"]: done.add(jb["name"])
                if room <= 0: break
    assert not any(g['q'] for g in groups)
    if any(x[0] == 'mem' or x[1] > 12 for x in late): print("late items", late)
    for jb in jobs:
        for x in jb["q"]: emit(x)
    for x in epilogue([8]): emit(x)
    a(f"s_mov_b32 s{S_FLAG}, s35")
    pr.stamp("fst")
```

```python
from gen_common import *
from gen_common import _uid
import re

RAW, AD, PKD, MU, VL = 76, 156, 176, 20, 4
RAWD, PKDD, ADD, VLD = RAW, PKD, AD, VL
GR = 124
LX = 159744
assert all((n*147) >> 10 == n//7 for n in range(128)) and all((n*205) >> 10 == n//5 for n in range(96))

def arms(a, name, tests, bodies):
    for n, body in enumerate(bodies):
        if n < len(tests): a(tests[n], f"s_cbranch_scc0 L_{name}_{n}", "; @if")
        body()
        if n < len(tests): a(f"s_branch L_{name}_e", "; @else"); a.label(f"L_{name}_{n}")
    a(["; @endif"]*len(tests)); a.label(f"L_{name}_e")

def by_type(a, name, w1, wd, none):
    arms(a, name, ["s_cmp_lt_u32 s2, 144", "s_cmp_lt_u32 s2, 216"], [w1, wd, none])

def nonce(a):
    a("v_readfirstlane_b32 s12, v14", "v_readfirstlane_b32 s13, v15", f"s_add_u32 s{NONCE}, s12, 1", f"s_addc_u32 s{NONCE+1}, s13, 0")

def stage_rows(a, vm, n, stride, group):
    a(f"v_mul_u32_u24 v9, {stride}, v7", "v_lshl_add_u32 v9, v6, 4, v9", "v_cmp_gt_u32 vcc, 9, v6", "v_cndmask_b32 v9, v12, v9, vcc")
    for g in range(n):
        a(f"s_add_u32 m0, s43, {1024*g}", f"s_add_u32 s41, s42, {group(g)}")
        vm.op("buffer_load_dwordx4 v9, s[44:47], s41 offen lds")

def fragment(a, vm, n, addr, offs, dst, imm):
    r = GR + 8*(n % 4)
    for i in range(8): a(f"ds_read_u16 v{r+i}, v{addr} offset:{offs[i]}")
    def finish(younger):
        a(f"s_waitcnt lgkmcnt({younger})")
        for d in range(4): a(f"v_lshl_or_b32 v{r+d}, v{r+2*d+1}, 16, v{r+2*d}")
        vm.op(f"buffer_store_dwordx4 v[{r}:{r+3}], v{V_L16}, {WS}, s{dst} offen offset:{imm} sc1")
    return finish

def run_fragments(jobs):
    pend = None
    for job in jobs:
        fin = job()
        if pend: pend(8)
        pend = fin
    pend(0)

def pack_q_issue(a, vm, nk):
    srd(a, 44, 58, D * 3 * D * 2)
    a(f"s_mul_i32 s42, s40, {32*3456}", f"s_mul_i32 s43, s{S_WAVE}, {8*3456}", "s_add_u32 s42, s42, s43", f"s_mul_i32 s43, s{S_X}, 144", "s_add_u32 s42, s42, s43")
    first = True
    for ks in range(nk):
        for seg in range(3):
            a(f"s_lshl_b32 s43, s{S_WAVE}, 11", f"s_add_u32 s43, s43, {(ks*3 + seg)*8192}")
            if first: stage_rows(a, vm, 2, 3456, lambda g: ks*32*3456 + seg*1152 + g*4*3456); first = False
            else:
                for g in range(2):
                    a(f"s_add_u32 m0, s43, {1024*g}", f"s_add_u32 s41, s42, {ks*32*3456 + seg*1152 + g*4*3456}")
                    vm.op("buffer_load_dwordx4 v9, s[44:47], s41 offen lds")

def pack_q_finish(a, vm, nk):
    a(f"s_and_b32 s41, s{S_WAVE}, 1", "s_mul_i32 s42, s41, 72", f"s_lshl_b32 s43, s{S_X}, 1", "s_add_u32 s41, s41, s43", f"s_mul_i32 s41, s41, {PQ_TASK}",
      f"s_mul_i32 s43, s40, {7*1024}", "s_add_u32 s41, s41, s43", f"s_add_u32 s41, s41, {PQ}", f"s_lshr_b32 s43, s{S_WAVE}, 1", "s_lshl_b32 s29, s43, 12", "s_add_u32 s41, s41, s29")
    a(f"v_and_b32 v6, 15, v{V_LANE}", f"v_lshrrev_b32 v7, 4, v{V_LANE}", "v_lshlrev_b32 v10, 11, v7", "v_add_u32 v10, s42, v10", "v_lshl_add_u32 v11, v6, 1, v10")
    a("v_and_b32 v9, 1, v6", "v_bfe_u32 v13, v6, 1, 1", "v_mad_u32_u24 v9, v13, 18, v9", "v_lshl_add_u32 v9, v9, 1, v10", "v_lshrrev_b32 v13, 2, v6",
      "v_lshl_add_u32 v9, v13, 13, v9", "v_add_u32 v9, 32, v9", "v_mov_b32 v13, 160", "v_cmp_gt_u32 vcc, 12, v6", "v_cndmask_b32 v9, v13, v9, vcc")
    a("s_cmp_eq_u32 s43, 0", "s_cselect_b64 vcc, -1, 0")
    for j, (lo, hi) in enumerate(((0, None), (36, 16384), (8192, 16384 + 36), (8192 + 36, 0))):
        a(f"v_add_u32 v{4+j}, {lo}, v11")
        if hi is None: a(f"v_cndmask_b32 v{4+j}, v9, v{4+j}, vcc")
        else: a(f"v_add_u32 v13, {hi}, v11", f"v_cndmask_b32 v{4+j}, v13, v{4+j}, vcc")
    for ks in range(nk):
        a(f"s_add_u32 s{20+2*ks}, s41, {ks*7*1024}", f"s_add_u32 s29, s40, {ks}", "s_cmp_lt_u32 s29, 18", f"s_cselect_b32 s{20+2*ks}, s{20+2*ks}, {OOB}",
          "s_cmp_eq_u32 s43, 0", f"s_cselect_b32 s{21+2*ks}, s{20+2*ks}, {OOB}")
    run_fragments([lambda ks=ks, j=j: fragment(a, vm, 4*ks + j, 4+j, [ks*24576 + 256*i for i in range(8)], 20 + 2*ks + (j == 3), 1024*j)
                   for ks in range(nk) for j in range(4)])

def pack_o_issue(a, vm):
    srd(a, 44, 60, D * D * 2)
    a(f"s_mul_i32 s42, s40, {288*1152}", f"s_mul_i32 s43, s{S_WAVE}, {72*1152}", "s_add_u32 s42, s42, s43", f"s_mul_i32 s43, s{S_X}, 144", "s_add_u32 s42, s42, s43",
      f"s_mul_i32 s43, s{S_WAVE}, {72*256}")
    stage_rows(a, vm, 18, 1152, lambda g: g*4*1152)

def pack_o_finish(a, vm):
    a(f"s_mul_i32 s41, s{S_X}, {PO_TASK}", f"s_add_u32 s41, s41, {PO}", "s_lshl_b32 s42, s40, 3", f"s_lshl_b32 s43, s{S_WAVE}, 1", "s_add_u32 s42, s42, s43",
      "s_mul_i32 s42, s42, 5120", "s_add_u32 s20, s41, s42", "s_add_u32 s21, s20, 4096", "s_add_u32 s22, s20, 5120", "s_add_u32 s23, s22, 4096",
      "s_add_u32 s42, s40, 16", "s_mul_i32 s42, s42, 5120", "s_add_u32 s41, s41, s42", f"s_lshl_b32 s42, s{S_WAVE}, 10", "s_add_u32 s24, s41, s42",
      "s_add_u32 s25, s41, 4096", f"s_cmp_eq_u32 s{S_WAVE}, 0", f"s_cselect_b32 s25, s25, {OOB}")
    a("v_and_b32 v9, 3, v6", "v_lshl_add_u32 v9, v8, 3, v9", "v_lshlrev_b32 v9, 1, v9", "v_lshlrev_b32 v10, 1, v6", "v_add_u32 v10, 128, v10",
      "v_mov_b32 v13, 160", "v_cmp_gt_u32 vcc, 8, v6", "v_cndmask_b32 v10, v13, v10, vcc")
    a(f"s_mul_i32 s42, s{S_WAVE}, {72*256}", "v_lshlrev_b32 v11, 10, v7", "v_add_u32 v11, s42, v11", "v_add_u32 v4, v11, v9", "v_add_u32 v5, v11, v10",
      f"v_mul_u32_u24 v11, {72*256}, v7", "v_add_u32 v7, v11, v10", f"s_lshr_b32 s42, s{S_WAVE}, 1", "s_lshl_b32 s42, s42, 6", f"s_and_b32 s43, s{S_WAVE}, 1",
      "s_lshl_b32 s43, s43, 3", "s_add_u32 s42, s42, s43", "v_add3_u32 v6, v11, v9, s42")
    ra = [256*(18*(i >> 2) + (i & 3)) for i in range(8)]; rb = [256*(36*(i >> 2) + [16, 17, 34, 35][i & 3]) for i in range(8)]
    jobs = []
    for ks in range(2):
        for t in range(5):
            col = 0 if t == 4 else 64*(t >> 1) + 8*(t & 1)
            jobs.append(lambda ks=ks, t=t, col=col, n=len(jobs): fragment(a, vm, n, 5 if t == 4 else 4, [ks*36*256 + col + x for x in ra],
                                                                          20 + 2*ks + (t == 4), 0 if t == 4 else 1024*t))
    jobs += [lambda: fragment(a, vm, 10, 6, rb, 24, 0), lambda: fragment(a, vm, 11, 7, rb, 25, 0)]
    run_fragments(jobs)

def rows_issue(a, vm):
    a(f"v_and_b32 v9, 7, v{V_LANE}", f"v_lshrrev_b32 v10, 3, v{V_LANE}", "v_mul_u32_u24 v5, 2304, v9", "v_lshl_add_u32 v5, v10, 4, v5")
    a(f"s_lshl_b32 s36, s{S_X}, 8", "s_lshl_b32 s37, s39, 3", "s_add_u32 s36, s36, s37", "s_and_b32 s37, s36, 1023", "s_lshl_b32 s37, s37, 1",
      "s_lshr_b32 s36, s36, 10", "s_add_u32 s36, s36, s37", "s_mul_i32 s36, s36, 1152")
    for n in range(9): vm.op(f"buffer_load_dwordx4 v[{16+4*n}:{19+4*n}], v5, s[16:19], s36 offen offset:{128*n}")
    a("s_and_b32 s37, s39, 1", "s_lshl_b32 s37, s37, 3", "v_add_u32 v9, s37, v9", "v_lshlrev_b32 v9, 4, v9", "v_lshl_add_u32 v4, v10, 8, v9",
      f"s_lshl_b32 s36, s{S_X}, 4", "s_lshr_b32 s37, s39, 1", "s_add_u32 s36, s36, s37", f"s_mul_i32 s36, s36, {TILE}")

def rows_finish(a, vm):
    DATA, SUM = 16, 52
    def put(base):
        for n in range(9):
            if n % 2 == 0: a(f"s_add_u32 s37, s36, {base + 2048*n}")
            vm.op(f"buffer_store_dwordx4 v[{DATA+4*n}:{DATA+4*n+3}], v4, {WS}, s37 offen offset:{2048*(n % 2)} sc1")
    for d in range(36): a(f"v_lshlrev_b32 v{SUM+2*d}, 16, v{DATA+d}", f"v_and_b32 v{SUM+2*d+1}, 0xffff0000, v{DATA+d}")
    a("s_mov_b32 s37, 0x3f803f80")
    for n in range(4): a(f"v_mov_b32 v{6+n}, 0")
    for d in range(36): a(f"v_dot2_f32_bf16 v{6 + d % 2}, v{DATA+d}, s37, v{6 + d % 2}", f"v_dot2_f32_bf16 v{8 + d % 2}, v{DATA+d}, v{DATA+d}, v{8 + d % 2}")
    put(XR[0])
    a("v_add_f32 v6, v6, v7", "v_add_f32 v7, v8, v9")
    xreduce(a, [6, 7], 8, steps=("8", "16", "32"))
    a(f"v_mul_f32 v6, {f32(1/576)}, v6", f"v_mul_f32 v7, {f32(1/576)}, v7", "v_fma_f32 v7, -v6, v6, v7",
      "v_max_f32 v7, 0, v7", f"v_add_f32 v7, {f32(1e-5)}, v7", "v_rsq_f32 v7, v7", "v_mul_f32 v6, v6, v7")
    for e in range(72): a(f"v_fma_f32 v{SUM+e}, v{SUM+e}, v7, -v6")
    for d in range(36): a(f"v_cvt_pk_bf16_f32 v{DATA+d}, v{SUM+2*d}, v{SUM+2*d+1}")
    put(XN[0])

def w1_load(kk, i):
    r = RAW + 16*kk + 2*i
    return [f"buffer_load_dwordx2 v[{r}:{r+1}], v{VL if kk < 4 else VL+1}, s[48:51], s53 offen", f"s_add_u32 s53, s53, {9216 if i < 7 else 25*9216}"]

def wd_load(kk, i):
    out = [f"s_add_u32 s43, s37, {(4*(i & 3) + 2*kk + (i >> 2))*1152}"]
    for Q in range(2):
        r = RAWD + 40*kk + 16*Q + 2*i
        out.append(f"buffer_load_dwordx2 v[{r}:{r+1}], v{VLD}, s[16:19], s43 offen offset:{128*Q}")
    return out + [f"buffer_load_ushort v{RAWD + 40*kk + 32 + i}, v{VLD+1}, s[16:19], s43 offen offset:1024"]
WD_LOADS = [x for kk in range(2) for i in range(8) for x in wd_load(kk, i)]

def spread(a, v, AD=AD, s0=40):
    for n0 in range(0, 20, 4):
        for n in range(n0, n0+4): a(f"v_readlane_b32 s{s0 + n - n0}, v{v}, {n}")
        for n in range(n0, n0+4): a(f"v_add_u32 v{AD+n}, s{s0 + n - n0}, v{V_L16}")

def quad_perm(a, raw, dst, sel=34):
    for j in range(4):
        for d in range(4):
            a(f"v_perm_b32 v{dst + 4*j + d}, v{raw + 4*d + 2 + (j >> 1)}, v{raw + 4*d + (j >> 1)}, s{sel + (j & 1)}")

def center_items(n):
    t = 24 + (12*(n & 1) if n < NPC[0] else 0); mu = MU + (n & 3); r = PKD + 4*n
    out = [f"v_dot2_f32_bf16 v{t + 2*d + h}, v{r+d}, s{38+h}, v{mu}" for d in range(4) for h in range(2)]
    return out + [f"v_cvt_pk_bf16_f32 v{r+d}, v{t + 2*d}, v{t + 2*d + 1}" for d in range(4)]

def store_item(n): return f"buffer_store_dwordx4 v[{PKD+4*n}:{PKD+4*n+3}], v{AD+n}, {WS}, 0 offen sc1"

TLB = [0]; ADFIRST = [1]; NPC = [12]
def role_w1(a, pr):
    def loads():
        for kk in range(5):
            for i in range(8): a(w1_load(kk, i))
        pr.stamp("p2")
    if True:
        div(a, 40, 2, 72, 144)
        a("s_mul_i32 s41, s40, 72", "s_sub_u32 s41, s2, s41", "s_cmp_eq_u32 s40, 0", "s_cselect_b64 s[12:13], s[64:65], s[66:67]")
        srd(a, 48, 12, D * DF * 2)
        a("s_lshl_b32 s42, s41, 7", "v_lshlrev_b32 v9, 3, v6", f"v_mul_u32_u24 v10, {8*9216}, v7", f"v_add3_u32 v{VL}, v9, v10, s42")
        a(f"s_bitcmp1_b32 s{S_WAVE}, 0", "s_cselect_b64 vcc, -1, 0", f"v_cndmask_b32 v{VL+1}, v{VL}, v12, vcc")
        a(f"s_mul_i32 s43, s{S_WAVE}, 9", "s_add_u32 s43, s43, 1", "s_lshr_b32 s43, s43, 1", f"s_mul_i32 s53, s43, {32*9216}")
        if TLB[0]:
            n = TLB[0]
            a(f"s_mul_i32 s35, s{S_I}, {4*n}", f"s_mul_i32 s36, s{S_WAVE}, {n}", "s_add_u32 s35, s35, s36", f"v_add_u32 v9, s35, v{V_LANE}",
              f"v_mul_u32_u24 v9, {(2 << 20) // n // 128 * 128 >> 7}, v9", "v_lshlrev_b32 v9, 7, v9", f"v_cmp_gt_u32 vcc, {n}, v{V_LANE}", "v_cndmask_b32 v9, v12, v9, vcc",
              f"buffer_load_dword a4, v9, {WS}, 0 offen")
        if not ADFIRST[0]: loads()
        div(a, 42, 41, 9, 72)
        a("s_mul_i32 s35, s42, 9", "s_sub_u32 s41, s41, s35", "s_lshl_b32 s41, s41, 2", "s_lshl_b32 s42, s42, 2", "s_lshl_b32 s40, s40, 11",
          f"s_add_u32 s40, s40, {PF}", f"s_mov_b32 s35, {PF_TASK}")
        a(f"v_and_b32 v6, 3, v{V_LANE}", "v_add_u32 v6, s41, v6", "v_mul_u32_u24 v7, 57, v6", "v_lshrrev_b32 v7, 9, v7",
          "v_mul_u32_u24 v8, 9, v7", "v_sub_u32 v6, v6, v8", "v_add_u32 v8, 1, v6", "v_cmp_eq_u32 vcc, 9, v8", "v_cndmask_b32 v8, v8, 0, vcc",
          "v_and_b32 v9, 1, v7", "v_cmp_eq_u32 vcc, 0, v9", "v_cndmask_b32 v6, v6, v8, vcc",
          "v_add_u32 v7, s42, v7", "v_mul_lo_u32 v7, v7, s35", "v_add_u32 v7, s40, v7",
          f"v_lshrrev_b32 v8, 2, v{V_LANE}", "v_add_u32 v8, s43, v8", "v_and_b32 v9, 1, v8", "v_lshl_add_u32 v7, v9, 10, v7",
          "v_lshrrev_b32 v9, 1, v8", "v_lshlrev_b32 v9, 12, v9", "v_add_u32 v7, v7, v9",
          "v_lshl_add_u32 v9, v6, 12, v9", f"v_mul_u32_u24 v10, {36*1024}, v6", "v_cmp_gt_u32 vcc, 2, v6", "v_cndmask_b32 v9, v10, v9, vcc",
          "v_add_u32 v7, v7, v9", "v_cmp_gt_u32 vcc, 18, v8", "v_cndmask_b32 v7, v12, v7, vcc",
          f"s_bitcmp1_b32 s{S_WAVE}, 0", "s_cselect_b32 s41, 16, 20", f"v_cmp_gt_u32 vcc, s41, v{V_LANE}", "v_cndmask_b32 v7, v12, v7, vcc")
        spread(a, 7)
        if ADFIRST[0]: loads()
        a("s_mov_b32 s34, 0x05040100", "s_mov_b32 s35, 0x07060302", "s_mov_b32 s38, 0x00003f80", "s_mov_b32 s39, 0x3f800000")
        for r in range(4): a(f"v_mov_b32 v{68+r}, 0x3f803f80")
        a(f"v_and_b32 v72, 15, v{V_LANE}", "v_lshlrev_b32 v72, 4, v72", f"v_add_u32 v72, {LX}, v72", f"s_lshl_b32 s44, s{S_WAVE}, 2", "v_add_u32 v73, s44, v72")
        for kk in range(5):
            a(f"s_waitcnt vmcnt({32 - 8*kk})")
            quad_perm(a, RAW + 16*kk, PKD + 16*kk)
            for j in range(4):
                r = PKD + 16*kk + 4*j; d = 52 + 4*j
                a(f"v_mfma_f32_16x16x32_bf16 v[{d}:{d+3}], v[68:71], v[{r}:{r+3}], {'0' if kk == 0 else f'v[{d}:{d+3}]'}")
        nonce(a)
        pr.stamp("px")
        for j in range(4): a(f"ds_write_b32 v73, v{52 + 4*j} offset:{256*j}")
        a("s_waitcnt lgkmcnt(0)", "s_barrier")
        for j in range(4): a(f"ds_read_b128 v[{52+4*j}:{55+4*j}], v72 offset:{256*j}")
        a("s_waitcnt lgkmcnt(0)")
        for j in range(4): a(f"v_add_f32 v{52+4*j}, v{52+4*j}, v{53+4*j}", f"v_add_f32 v{54+4*j}, v{54+4*j}, v{55+4*j}")
        for j in range(4): a(f"v_add_f32 v{52+4*j}, v{52+4*j}, v{54+4*j}")
        for j in range(4): a(f"v_mul_f32 v{MU+j}, {f32(-1/576)}, v{52+4*j}")
        for n in range(NPC[0]): a(center_items(n))
        pr.stamp("pst")

def role_rows(a, pr, vm):
    n0 = vm.n; p0 = (pr.n, list(pr.names))
    a(f"s_sub_u32 s39, s{S_I}, 18", "s_lshl_b32 s39, s39, 2", f"s_add_u32 s39, s39, s{S_WAVE}")
    def begin(): vm.n = n0; pr.n = p0[0]; pr.names = list(p0[1])
    def landed(): a("s_waitcnt vmcnt(0)", "s_barrier"); nonce(a)
    def rows():
        begin(); rows_issue(a, vm); t = vm.n
        a("s_lshr_b32 s40, s39, 2")
        pack_q_issue(a, vm, 1); pr.stamp("p2")
        nonce_n = vm.n
        vm.wait(t); rows_finish(a, vm); pr.stamp("px")
        vm.wait(nonce_n); a("s_barrier"); nonce(a)
        pack_q_finish(a, vm, 1)
    def heads():
        begin()
        a("s_lshr_b32 s40, s39, 2", "s_mul_i32 s40, s40, 3", "s_sub_u32 s40, s40, 16")
        pack_q_issue(a, vm, 3); pr.stamp("p2"); landed(); pr.stamp("px")
        pack_q_finish(a, vm, 3)
    def proj():
        begin()
        a("s_lshr_b32 s40, s39, 2", "s_sub_u32 s40, s40, 12")
        pack_o_issue(a, vm); pr.stamp("p2"); landed(); pr.stamp("px")
        pack_o_finish(a, vm)
    arms(a, "cr", ["s_cmp_lt_u32 s39, 32", "s_cmp_lt_u32 s39, 48"], [rows, heads, proj])
    pr.stamp("pst")
    a(f"s_lshl_b32 s24, s{S_X}, 5", f"s_add_u32 s24, s24, s{S_I}")
    set_flag_addr(a, 24, FLAGS + FL_R)
    commit(a)
    for j in range(4): a(f"v_mov_b32 v{MU+j}, 0")
    a("s_mov_b32 s38, 0x00003f80", "s_mov_b32 s39, 0x3f800000")
    def wd():
        srd(a, 16, 62, D * DF * 2)
        a(f"v_and_b32 v6, 15, v{V_LANE}", f"v_lshrrev_b32 v7, 4, v{V_LANE}", f"v_mov_b32 v12, {OOB}")
        a("s_sub_u32 s40, s2, 144", f"s_mul_i32 s37, s40, {64*1152}", f"s_lshl_b32 s41, s{S_WAVE}, 8", f"s_lshl_b32 s42, s{S_WAVE}, 5")
        a(f"v_mul_u32_u24 v10, {16*1152}, v7", "v_lshl_add_u32 v9, v6, 3, v10", f"v_add_u32 v{VLD}, s41, v9",
          "v_lshl_add_u32 v9, v6, 1, v10", f"v_add_u32 v{VLD+1}, s42, v9")
        a(WD_LOADS)
        b = a
        b("s_sub_u32 s48, s2, 144")
        div(b, 49, 48, 9, 72)
        b("s_mul_i32 s50, s49, 9", "s_sub_u32 s48, s48, s50", "s_lshl_b32 s48, s48, 1", "s_lshl_b32 s49, s49, 2", f"s_add_u32 s49, s49, s{S_WAVE}",
          f"s_mul_i32 s49, s49, {PF_TASK}", f"s_add_u32 s49, s49, {PF + 324*1024}")
        b(f"v_cmp_lt_u32 vcc, 8, v{V_LANE}", "v_cndmask_b32 v6, 0, 1, vcc", "v_mul_u32_u24 v7, 9, v6", f"v_sub_u32 v7, v{V_LANE}, v7", "v_add_u32 v6, s48, v6")
        b("v_mov_b32 v8, 0")
        for lim in (4, 8, 13): b(f"v_cmp_lt_u32 vcc, {lim}, v6", "v_addc_co_u32 v8, vcc, 0, v8, vcc")
        b("v_mul_u32_u24 v9, 9, v8", "v_add_u32 v9, 1, v9", "v_lshrrev_b32 v9, 1, v9", "v_sub_u32 v9, v6, v9",
          f"v_subrev_u32 v8, s{S_WAVE}, v8", "v_and_b32 v8, 3, v8",
          "v_mul_u32_u24 v10, 3, v9", "v_add3_u32 v10, v10, v8, 2", "v_add_u32 v11, 3, v10", "v_cmp_lt_u32 vcc, 1, v9", "v_cndmask_b32 v10, v10, v11, vcc",
          "v_cmp_eq_u32 vcc, 3, v9", "v_cndmask_b32 v9, v9, 11, vcc", "v_cmp_eq_u32 vcc, 0, v8", "v_cndmask_b32 v10, v10, v9, vcc",
          "v_cmp_eq_u32 vcc, 4, v6", "v_cndmask_b32 v10, v10, 9, vcc", "v_cmp_eq_u32 vcc, 13, v6", "v_cndmask_b32 v10, v10, 10, vcc")
        b("v_and_b32 v6, 30, v10", "v_and_b32 v8, 1, v10", "v_lshl_add_u32 v8, v7, 1, v8",
          "v_lshl_add_u32 v9, v6, 3, v8",
          "v_lshrrev_b32 v11, 2, v7", f"v_mul_u32_u24 v13, {24 + 2*OS}, v11", "v_lshl_add_u32 v6, v6, 2, v8", "v_add3_u32 v6, v6, v13, 40",
          "v_cmp_gt_u32 vcc, 10, v10", "v_cndmask_b32 v9, v6, v9, vcc",
          "v_lshl_add_u32 v6, v7, 2, v10", "v_lshl_add_u32 v6, v11, 4, v6", f"v_add_u32 v6, {82 + 2*OS}, v6",
          "v_cmp_gt_u32 vcc, 14, v10", "v_cndmask_b32 v9, v6, v9, vcc",
          "v_add_u32 v6, 144, v10", "v_add_u32 v11, 96, v10", f"v_cmp_gt_u32 vcc, {2*OS}, v10", "v_cndmask_b32 v6, v6, v11, vcc", "v_cmp_eq_u32 vcc, 8, v7", "v_cndmask_b32 v9, v9, v6, vcc",
          "v_lshlrev_b32 v9, 10, v9", "v_add_u32 v9, s49, v9", f"v_cmp_gt_u32 vcc, 18, v{V_LANE}", "v_cndmask_b32 v9, v12, v9, vcc")
        spread(b, 9, ADD, 48)
    arms(a, "wd", ["s_cmp_lt_u32 s2, 216"], [wd, lambda: a([f"v_mov_b32 v{AD+n}, {OOB}" for n in range(20)])])

def wd_transpose(o, side):
    def wd():
        a = Asm()
        for kk in range(2):
            for Q in range(2): quad_perm(a, RAWD + 40*kk + 16*Q, PKDD + 36*kk + 16*Q, 46)
            for d in range(4):
                r = RAWD + 40*kk + 32 + 2*d
                a(f"v_lshl_or_b32 v{PKDD + 36*kk + 32 + d}, v{r+1}, 16, v{r}")
        o("s_mov_b32 s46, 0x05040100", "s_mov_b32 s47, 0x07060302")
        weave(o, a.lines, side, start=2, every=2)
    o("s_sub_u32 s48, s2, 144")
    arms(o, "wp", ["s_cmp_lt_u32 s48, 72"], [wd, lambda: o(side)])

def gen_p0(a, pr, code_bytes):
    vm = VM(a)
    a("s_getpc_b64 s[40:41]")
    a.label("L_warm_pc")
    a("s_lshr_b32 s42, s2, 3", "s_lshl_b32 s42, s42, 11", "v_lshlrev_b32 v10, 3, v0", "v_add_u32 v10, s42, v10", f"v_min_u32 v10, {code_bytes}, v10",
      "v_mov_b32 v11, s41", "v_add_co_u32 v10, vcc, s40, v10", "v_addc_co_u32 v11, vcc, 0, v11, vcc")
    a("global_load_dwordx2 a[0:1], v[10:11], off")
    a("v_add_co_u32 v10, vcc, 0x10000, v10", "v_addc_co_u32 v11, vcc, 0, v11, vcc", f"s_add_u32 s42, s42, {0x10000 + 2048}", f"s_cmp_le_u32 s42, {code_bytes}")
    a("s_cbranch_scc0 L_warm_done")
    a("global_load_dwordx2 a[2:3], v[10:11], off")
    a.label("L_warm_done")
    a(f"s_load_dwordx4 s[56:59], s[0:1], {KA['x']}", f"s_load_dwordx2 s[60:61], s[0:1], {KA['wo']}",
      f"s_load_dwordx4 s[64:67], s[0:1], {KA['wg']}", f"s_load_dwordx2 s[62:63], s[0:1], {KA['wd']}")
    common(a)
    pr.stamp("c0", cyc=True); pr.stamp("start")
    srd(a, 16, 56, S * D * 2)
    a(f"v_mov_b32 v3, {EPOCH}")
    vm.op(f"buffer_load_dwordx2 v[14:15], v3, {WS}, 0 offen sc1")
    a(f"v_and_b32 v6, 15, v{V_LANE}", f"v_lshrrev_b32 v7, 4, v{V_LANE}", "v_lshrrev_b32 v8, 2, v6", f"v_mov_b32 v12, {OOB}", "s_mov_b32 s37, 0")
    p0 = (pr.n, list(pr.names))
    def other(): pr.n = p0[0]; pr.names = list(p0[1]); role_rows(a, pr, vm)
    arms(a, "p0", ["s_cmp_lt_u32 s2, 144"], [lambda: role_w1(a, pr), other])
    pr.stamp("pend")

def gen_epoch(a):
    a("s_cmp_lg_u32 s2, 0", "s_cbranch_scc1 L_end", f"v_lshlrev_b32 v4, {FS}, v{V_LANE}")
    for n in range(4):
        a(f"s_mov_b32 s40, {FLAGS + FL_O + (64*n << FS)}")
        await_flags(a, 4, 40)
    a(f"s_mov_b32 s40, {EPOCH}")
    flag_store(a, 40, V_LANE)
    a("s_branch L_end")
```

```python
from gen_common import *
from gen_common import _uid

OUTPOL = ['']
BLOCK = [[0, 6, 5], [2, 1, 7], [4, 3, 8]]

def gen_r(a, mode, layer, pr, tail=None, cp="sc1", lds=0, vm=None, after_issue=None, early=True):
    vm = vm or VM(a)
    VA, VN, T0 = 4, 5, 6
    DATA, SUM, PK, XO = (16, 28, None, 16) if mode == 'first' else (16, 128, 152, 168)
    sT, sN = 28, 31
    a(f"v_and_b32 v6, 7, v{V_LANE}", f"v_lshrrev_b32 v7, 3, v{V_LANE}")
    a(f"s_and_b32 s23, s{S_I}, 1", "s_lshl_b32 s23, s23, 3")
    a("v_add_u32 v8, s23, v6", "v_lshlrev_b32 v8, 4, v8", f"v_lshl_add_u32 v{VA}, v7, 8, v8")
    a(f"s_lshl_b32 s24, s{S_X}, 4", f"s_lshr_b32 s25, s{S_I}, 1", "s_add_u32 s24, s24, s25", f"s_mul_i32 s20, s24, {TILE}")
    if mode != "mid":
        a(f"s_lshl_b32 s24, s{S_X}, 8", f"s_lshl_b32 s25, s{S_I}, 3", "s_add_u32 s24, s24, s25",
          "s_and_b32 s25, s24, 1023", "s_lshl_b32 s25, s25, 1", "s_lshr_b32 s24, s24, 10", "s_add_u32 s24, s24, s25",
          "s_mul_i32 s21, s24, 1152")
        a("v_mul_u32_u24 v8, 2304, v6", f"v_lshl_add_u32 v{VN}, v7, 4, v8")
        if mode == "last":
            a(f"s_load_dwordx2 s[12:13], s[0:1], {KA['out']}", "s_waitcnt lgkmcnt(0)")
            srd(a, 16, 12, S * D * 2)
    a(f"s_lshl_b32 s22, s{S_WAVE}, 2")
    for j in range(3):
        a(f"s_lshr_b32 s23, {sum(BLOCK[w][j] << (4*w) for w in range(3))}, s22", "s_and_b32 s23, s23, 15", "s_lshl_b32 s24, s23, 11", f"s_add_u32 s{sT+j}, s20, s24")
        if mode != "mid": a("s_lshl_b32 s24, s23, 7", f"s_add_u32 s{sN+j}, s21, s24")
    tags = {}
    def load(s, j):
        base = X1[layer] if s == 0 else PART[layer] + (s-1) * ACT
        r = DATA + 12*s + 4*j; t = 24 + (s + j) % 2
        a(f"s_add_u32 s{t}, s{sT+j}, {base}")
        tags[s, j] = vm.op(f"buffer_load_dwordx4 v[{r}:{r+3}], v{VA}, {WS}, s{t} offen {ldpol()}")
    if mode == "first":
        a(f"s_cmp_eq_u32 s{S_WAVE}, 3", "s_cselect_b64 vcc, -1, 0", f"v_mov_b32 v8, {OOB}", f"v_cndmask_b32 v{VA}, v{VA}, v8, vcc", f"v_cndmask_b32 v{VN}, v{VN}, v8, vcc")
        for j in range(3):
            vm.op(f"buffer_load_dwordx4 v[{DATA+4*j}:{DATA+4*j+3}], v{VN}, s[16:19], s{sN+j} offen nt")
        order = [(0, j) for j in range(3)]
        after_issue()
    else:
        fl = FLAGS + layer*FL_LAYER
        a(f"s_lshl_b32 s26, s{S_X}, {5+FS}", f"s_add_u32 s27, s26, {fl + FL_Q}", f"s_add_u32 s26, s26, {fl + FL_P}",
          f"v_and_b32 v6, 31, v{V_LANE}", f"v_lshlrev_b32 v6, {FS}, v6")
        if early: a(f"buffer_load_dwordx2 v[10:11], v6, {WS}, s27 offen sc1")
        commit(a)
        pr.stamp("fend")
        for j in range(3): load(0, j)
        order = [(0, j) for j in range(3)]
        if early:
            _uid[0] += 1; u = _uid[0]
            a(f"v_cmp_eq_u64 vcc, s[{NONCE}:{NONCE+1}], v[10:11]", "s_nop 0", "s_cmp_eq_u64 vcc, exec", f"s_cbranch_scc0 L_re_slow{u}")
            a.label(f"L_re_back{u}")
            tail.label(f"L_re_slow{u}"); await_flags(tail, 6, 27); tail(f"s_branch L_re_back{u}")
            for s in range(1, 9): load(s, 0)
            order += [(s, 0) for s in range(1, 9)]
        pr.stamp('rpre')
        await_flags(a, 6, 26)
        pr.stamp("rgo")
        late = [(s, j) for s in range(1, 9) for j in range(3) if (s, j) not in order]
        for s, j in late: load(s, j)
        order += late
    for n, (s, j) in enumerate(order):
        if mode != 'first': vm.wait(tags[s, j])
        if n == len(order) - 16: pr.stamp("r1")
        for d in range(4):
            src = DATA + 12*s + 4*j + d; lo = SUM + 8*j + 2*d
            if s == 0:
                a(f"v_lshlrev_b32 v{lo}, 16, v{src}", f"v_and_b32 v{lo+1}, 0xffff0000, v{src}")
            else:
                t = T0 + 2*(d % 2)
                a(f"v_lshlrev_b32 v{t}, 16, v{src}", f"v_and_b32 v{t+1}, 0xffff0000, v{src}",
                  f"v_add_f32 v{lo}, v{lo}, v{t}", f"v_add_f32 v{lo+1}, v{lo+1}, v{t+1}")
    pr.stamp("rsum")
    pk = DATA if mode == "first" else PK
    if mode != "first":
        for d in range(12): a(f"v_cvt_pk_bf16_f32 v{PK+d}, v{SUM+2*d}, v{SUM+2*d+1}")
    if mode == "last":
        for j in range(3):
            vm.op(f"buffer_store_dwordx4 v[{PK+4*j}:{PK+4*j+3}], v{VN}, s[16:19], s{sN+j} offen {OUTPOL[0]}")
        return
    nl = 0 if mode == "first" else layer + 1
    def put(src, base):
        for j in range(3):
            a(f"s_add_u32 s{24 + j % 2}, s{sT+j}, {base}")
            vm.op(f"buffer_store_dwordx4 v[{src+4*j}:{src+4*j+3}], v{VA}, {WS}, s{24 + j % 2} offen {stpol()}")
    a(f"v_add_f32 v6, v{SUM}, v{SUM+1}", f"v_mul_f32 v7, v{SUM}, v{SUM}", f"v_mul_f32 v9, v{SUM+1}, v{SUM+1}", "v_mov_b32 v8, 0")
    for e in range(2, 24, 2):
        a(f"v_add_f32 v6, v6, v{SUM+e}", f"v_add_f32 v8, v8, v{SUM+e+1}",
          f"v_fmac_f32 v7, v{SUM+e}, v{SUM+e}", f"v_fmac_f32 v9, v{SUM+e+1}, v{SUM+e+1}")
    a("v_add_f32 v6, v6, v8", "v_add_f32 v7, v7, v9")
    xreduce(a, [6, 7], 8, steps=("8", "16", "32"))
    a(f"v_and_b32 v10, 7, v{V_LANE}", "v_lshlrev_b32 v10, 3, v10", f"v_add_u32 v10, {lds}, v10", f"s_lshl_b32 s24, s{S_WAVE}, 6", "v_add_u32 v11, s24, v10")
    pr.stamp("rxr")
    a("ds_write_b64 v11, v[6:7]")
    put(pk, XR[nl])
    a("s_waitcnt lgkmcnt(0)", "s_barrier")
    pr.stamp("rbar")
    a("ds_read_b64 v[6:7], v10", "ds_read_b64 v[8:9], v10 offset:64", "ds_read_b64 v[12:13], v10 offset:128", "s_waitcnt lgkmcnt(0)")
    a("v_add_f32 v6, v6, v8", "v_add_f32 v7, v7, v9", "v_add_f32 v6, v6, v12", "v_add_f32 v7, v7, v13")
    a(f"v_mul_f32 v6, {f32(1/576)}, v6", f"v_mul_f32 v7, {f32(1/576)}, v7", "v_fma_f32 v7, -v6, v6, v7",
      "v_max_f32 v7, 0, v7", f"v_add_f32 v7, {f32(1e-5)}, v7", "v_rsq_f32 v7, v7")
    a("v_mul_f32 v6, v6, v7")
    for j in range(3):
        for e in range(8*j, 8*j + 8): a(f"v_fma_f32 v{SUM+e}, v{SUM+e}, v7, -v6")
        for d in range(4*j, 4*j + 4): a(f"v_cvt_pk_bf16_f32 v{XO+d}, v{SUM+2*d}, v{SUM+2*d+1}")
        a(f"s_add_u32 s{24 + j % 2}, s{sT+j}, {XN[nl]}")
        vm.op(f"buffer_store_dwordx4 v[{XO+4*j}:{XO+4*j+3}], v{VA}, {WS}, s{24 + j % 2} offen {stpol()}")
    a(f"s_lshl_b32 s24, s{S_X}, 5", f"s_add_u32 s24, s24, s{S_I}")
    set_flag_addr(a, 24, FLAGS + nl*FL_LAYER + FL_R)
```

```python
S, D, H, DH, DF = 2048, 576, 32, 18, 4608
TILE = 18432
ACT = 128 * TILE
WS_BYTES = 268435456

import os as _os
_off = int(_os.environ.get("WSBASE", 0)) << 20
def _alloc(n):
    global _off
    o = _off
    _off += (n + 4095) // 4096 * 4096
    return o

import os
FS = int(os.environ.get('FS', 7))
FLAG_BYTES = 16 * 1024 << 8
FLAGS = _alloc(FLAG_BYTES)
FL_LAYER = 8 * 1024 << FS
FL_H, FL_O, FL_X, FL_P, FL_R, FL_Q = [n * 1024 << FS for n in (0, 3, 4, 5, 6, 7)]
FL_K = FL_LAYER + FL_Q
EPOCH = _alloc(4096)
PQ_TASK = 126 * 1024
PQ = _alloc(16 * PQ_TASK + 4096)
PO_TASK = 90 * 1024
PO = _alloc(8 * PO_TASK + 8192)
PF_TASK = 486 * 1024
PF = _alloc(32 * PF_TASK + 32768)
XN = [_alloc(ACT) for _ in range(2)]
XR = [_alloc(ACT) for _ in range(2)]
OB = [_alloc(ACT) for _ in range(2)]
X1 = [_alloc(ACT) for _ in range(2)]
STAT_BYTES = 128 * 8 * 128
ST = [_alloc(STAT_BYTES) for _ in range(2)]
HB_BYTES = 8 * 8 * 16 * TILE
HB = [_alloc(HB_BYTES) for _ in range(2)]
PART = [_alloc(8 * ACT) for _ in range(2)]
PROF = _alloc(2 * 1024 * 256)
WS_USED = _off
assert WS_USED <= WS_BYTES

KPOS = [(0, 0), (0, 1), (0, 2), (1, 0), (2, 0), (3, 0), (1, 1), (2, 1), (3, 1), ("mix", 0), ("mix", 1), (0, 3),
        (1, 2), (2, 2), (3, 2), (1, 3), (2, 3), (3, 3)]
OS = int(os.environ.get("OS", 0))
KBLOCKS = [(p, 2, range(8)) for p in range(0, 10, 2)] + [(10, 2, range(4)), (12, 2, range(4)), (0, 2*OS, [8]), (14, 4, range(4)),
           (10, 2, range(4, 8)), (12, 2, range(4, 8)), (14, 4, range(4, 8)), (2*OS, 18 - 2*OS, [8])]

def kbase(m): return (9 * m + 1) >> 1

def kstep_of(member, pos):
    rel, p = KPOS[pos]
    if rel == "mix": return 4 if p == 0 else 13
    return kbase((member + rel) & 3) + p

def pd_index(pos, t):
    n0 = 0
    for start, n, tiles in KBLOCKS:
        if start <= pos < start + n and t in tiles: return n0 + list(tiles).index(t) * n + (pos - start)
        n0 += n * len(tiles)

def hidden_col(c, q, i):
    return 64 * (c >> 1) + 16 * q + 4 * (i & 3) + 2 * (c & 1) + (i >> 2)
```

```python
from gen_common import *
from gen_a1 import warm_items
import math

STAGE, NS, PER = 24, 6, 6
SLOT0 = 4
NPRE = 4
F_LDS = STAGE * NS * 1024
NSTAGE = (486 + STAGE - 1) // STAGE
MF = "v_mfma_f32_16x16x32_bf16"

PKCOST = [2]
def cost(x):
    if callable(x): return 1
    if isinstance(x, tuple): return 2 if " 0 offen" in x[1] or "store" in x[1] else 3
    return 2 if x.split()[0] in TRANS else (PKCOST[0] if x.startswith("v_pk_") else 1)

_ins = {}
def ins_of(x):
    t = x[1] if isinstance(x, tuple) else x
    if t not in _ins: _ins[t] = Ins(t)
    return _ins[t]

def pick(q, fits, window=12):
    rd = set(); wr = set()
    for i, x in enumerate(q[:window]):
        I = ins_of(x)
        if fits(x) and not (I.rd & wr or I.wr & wr or I.wr & rd): return i
        rd |= I.rd; wr |= I.wr
    return None

def f_ids(a, opts):
    if opts.get("mapping", 0) == 0:
        a(f"s_and_b32 s40, s{S_X}, 1", "s_lshl_b32 s40, s40, 2", f"s_lshr_b32 s41, s{S_I}, 3", "s_add_u32 s40, s40, s41",
          f"s_lshr_b32 s41, s{S_X}, 1", "s_lshl_b32 s41, s41, 3", f"s_and_b32 s42, s{S_I}, 7", "s_add_u32 s41, s41, s42")
    elif opts.get("mapping") == 2:
        a(f"s_mov_b32 s40, s{S_X}", f"s_mov_b32 s41, s{S_I}")
    elif opts.get("mapping") == 3:
        a(f"s_and_b32 s40, s{S_X}, 3", "s_lshl_b32 s40, s40, 1", f"s_lshr_b32 s41, s{S_I}, 4", "s_add_u32 s40, s40, s41",
          f"s_lshr_b32 s41, s{S_X}, 2", "s_lshl_b32 s41, s41, 4", f"s_and_b32 s42, s{S_I}, 15", "s_add_u32 s41, s41, s42")
    else:
        a(f"s_lshr_b32 s40, s{S_I}, 2", f"s_lshl_b32 s41, s{S_X}, 2", f"s_and_b32 s42, s{S_I}, 3", "s_add_u32 s41, s41, s42")
    a("s_lshr_b32 s42, s41, 2", "s_and_b32 s43, s41, 3")

VW, sWd = 3, 22
def ring_dma(stage, wpol="sc1"):
    slot = ((stage + SLOT0) % NS)*STAGE*1024; out = []
    if stage == NSTAGE - 1:
        return [f"s_lshl_b32 s21, s{S_WAVE}, 11", f"s_add_u32 m0, s21, {slot}", f"s_sub_u32 s21, s21, s{sWd}",
                f"s_add_u32 s21, s21, {STAGE*1024 - 4096}", f"v_add_u32 v{VW}, s21, v{VW}"] + \
               [("vm", f"buffer_load_dwordx4 v{VW}, {WS}, 0 offen offset:{q*1024} {wpol} lds", ("w", stage)) for q in range(2)]
    for q0 in (0, 4):
        out += [f"s_add_u32 m0, s{sWd}, {slot + q0*1024}"]
        if stage or q0: out += [f"v_add_u32 v{VW}, {4096 if q0 else STAGE*1024 - 4096}, v{VW}"]
        out += [("vm", f"buffer_load_dwordx4 v{VW}, {WS}, 0 offen offset:{q*1024} {wpol} lds", ("w", stage)) for q in range(min(4, PER - q0))]
    return out

def f_early(a, opts):
    a(f"s_mul_i32 s{sWd}, s{S_WAVE}, {PER*1024}", f"s_mul_i32 s23, s41, {PF_TASK}", f"s_add_u32 s23, s23, s{sWd}", f"s_add_u32 s23, s23, {PF}",
      f"v_add_u32 v{VW}, s23, v{V_L16}")
    return [x[1] if isinstance(x, tuple) else x for st in range(2) for x in ring_dma(st)]

def gen_f(a, sL, tail, pr, opts, cp="sc1"):
    vm = VM(a); tag = {}; PKCOST[0] = opts.get('pk', 0) or 2
    wpol = 'sc1 nt' if opts.get('wnt', 0) else 'sc1'
    VJ = [V_L16, 4, 5, 6]; VB = [V_L16, 7, 8]
    VODD, VFS, VFL, VFV, VQ = 9, 10, 11, 12, 252
    VJH = [248, 249, 250, 251]
    XV, RING, NW = 16, 48, 8
    HOWN, TMP, HS, CON = 144, 208, 224, 232
    ACC = [80, 112, HOWN + 32]
    aset = lambda pos: ACC[[0, 1, 2, 0, 1, 0, 1, 0, 1][pos]]
    OUT = 112
    sX, sH, sM, sP, sF, sPJ = 20, 24, 28, 31, 34, 36
    dma = lambda stage: ring_dma(stage, wpol)
    RD = list(range(6))
    def rd(n):
        off = ((RD[n] + SLOT0*STAGE) % (STAGE*NS))*1024; w = RING + 4*(n % NW)
        return f"ds_read_b128 v[{w}:{w+3}], v{VB[off // 65536]} offset:{off % 65536}"
    def xreg(k, j): return f"a[{(4*k+j)*4}:{(4*k+j)*4+3}]" if k < 16 else f"v[{XV + (4*(k-16)+j)*4}:{XV + (4*(k-16)+j)*4+3}]"
    def xload(k):
        out = [f"s_add_u32 s48, s{sX}, {(k >> 2)*4096}"] if k % 4 == 0 else []
        return out + [("vm", f"buffer_load_dwordx4 {xreg(k, j)}, v{VJ[j]}, {WS}, s48 offen offset:{(k & 3)*1024} {ldpol()}", ("x", k)) for j in range(4)]
    def emit(x):
        if callable(x): x()
        elif isinstance(x, tuple): tag[x[2]] = vm.op(x[1])
        else: a(x)
    a("s_lshl_b32 s44, s40, 4", f"s_lshl_b32 s45, s{S_WAVE}, 2", "s_add_u32 s44, s44, s45")
    a(f"s_mul_i32 s46, s44, {TILE}", f"s_add_u32 s{sX}, s46, s{sL['X1']}")
    for j in range(1, 4): a(f"v_add_u32 v{VJ[j]}, {j*TILE}, v{V_L16}")
    a(f"v_lshlrev_b32 v{VJH[0]}, 3, v{V_LANE}")
    for j in range(1, 4): a(f"v_add_u32 v{VJH[j]}, {j*TILE}, v{VJH[0]}")
    a(f"v_and_b32 v13, 15, v{V_LANE}", f"v_lshrrev_b32 v14, 4, v{V_LANE}")
    a(f"v_add_u32 v{VB[1]}, 0x10000, v{V_L16}", f"v_add_u32 v{VB[2]}, 0x20000, v{V_L16}")
    a(f"v_and_b32 v{VODD}, 1, v14", f"v_mul_u32_u24 v{VODD}, {TILE}, v{VODD}", "v_lshrrev_b32 v15, 1, v14", "v_lshlrev_b32 v15, 8, v15",
      "v_lshl_add_u32 v15, v13, 4, v15", f"v_add_u32 v{VODD}, v{VODD}, v15")
    a(f"v_and_b32 v{VFL}, 3, v{V_LANE}", f"v_lshlrev_b32 v{VFL}, {FS}, v{VFL}", f"s_lshl_b32 s49, s43, {FS}", f"v_mov_b32 v{VFS}, {OOB}",
      f"v_lshl_add_u32 v15, v{V_LANE}, 3, s49", f"v_cmp_gt_u32 vcc, {FLANES[0]}, v{V_LANE}", f"v_cndmask_b32 v{VFS}, v{VFS}, v15, vcc")
    a("s_lshl_b32 s49, s40, 3", "s_add_u32 s49, s49, s42")
    a("s_lshl_b32 s50, s49, 2", f"s_add_u32 s50, s50, s{S_WAVE}", f"s_lshl_b32 s50, s50, {2+FS}", f"s_add_u32 s{sF}, s50, s{sL['FL']}", f"s_add_u32 s{sF}, s{sF}, {FL_H}")
    a("s_lshl_b32 s49, s49, 4", "s_add_u32 s49, s49, s45", f"s_mul_i32 s49, s49, {TILE}", f"s_add_u32 s49, s49, s{sL['HB']}")
    for rel in range(4):
        a(f"s_add_u32 s50, s43, {rel}", "s_and_b32 s50, s50, 3", "s_mul_i32 s50, s50, 9", "s_add_u32 s50, s50, 1", "s_lshr_b32 s50, s50, 1",
          "s_lshl_b32 s50, s50, 10", f"s_add_u32 s{sH+rel}, s49, s50")
    a(f"s_add_u32 s{sM}, s49, {4*1024}", f"s_add_u32 s{sM+1}, s49, {13*1024}", "s_cmp_ge_u32 s43, 2", f"s_cselect_b32 s50, s{sM+1}, s{sM}",
      "s_and_b32 s51, s43, 1", "s_lshl_b32 s51, s51, 9", f"s_add_u32 s{sM+2}, s50, s51")
    a(f"s_mul_i32 s50, s42, {ACT}", "s_add_u32 s50, s50, s46", f"s_add_u32 s50, s50, s{sL['PART']}", "s_lshl_b32 s51, s43, 12",
      f"s_add_u32 s{sP}, s50, s51", "s_lshl_b32 s51, s43, 9", "s_add_u32 s50, s50, s51", f"s_add_u32 s{sP+1}, s50, 16384", f"s_add_u32 s{sP+2}, s{sP+1}, {2*TILE}")
    for j in range(4): a(f"s_add_u32 s{sPJ+j}, s{sP}, {j*TILE}")
    a(f"v_lshlrev_b32 v{VQ}, 4, v13", f"v_lshl_add_u32 v{VQ}, v14, 9, v{VQ}")
    a("s_lshl_b32 s35, s40, 5", "s_add_u32 s35, s35, s41", f"s_lshl_b32 s35, s35, {FS}",
      f"s_add_u32 s35, s35, s{sL['FL']}", f"s_add_u32 s35, s35, {FL_P}")
    a("v_lshlrev_b32 v17, 3, v13", "v_lshl_add_u32 v17, v14, 8, v17", "s_lshl_b32 s47, s44, 10", f"s_add_u32 s47, s47, s{sL['ST']}")
    a(f"s_lshl_b32 s49, s44, {1+FS}", f"s_add_u32 s49, s49, s{sL['FL']}", f"s_add_u32 s49, s49, {FL_X}", f"v_and_b32 v16, 7, v{V_LANE}", f"v_lshlrev_b32 v16, {FS}, v16")
    a(f"s_lshl_b32 s50, s43, {FS}", f"s_add_u32 s44, s35, {FL_Q - FL_P}", "s_sub_u32 s44, s44, s50", f"s_cmp_eq_u32 s{S_WAVE}, 0",
      f"s_cselect_b32 s44, s44, {OOB}")
    commit(a)
    pr.stamp("a2end")
    for st in range(2, NPRE):
        for x in dma(st): emit(x)
    for n in range(6): a(rd(n))
    await_flags(a, 16, 49)
    pr.stamp("fgo")
    BURST = opts.get('fburst', 5)
    for k in range(BURST):
        for x in xload(k): emit(x)
        if k == 1:
            for j in range(4):
                for h in range(2):
                    r = HOWN + 4*j + 2*h
                    tag["st"] = vm.op(f"buffer_load_dwordx2 v[{r}:{r+1}], v17, {WS}, s47 offen offset:{j*1024 + h*128} {ldpol()}")
    pr.stamp("fiss")
    pr.stamp("fbar")

    def consts():
        b = Asm(); sr = []
        for j in range(4):
            r = HOWN + 4*j
            b(f"v_add_f32 v{r}, v{r}, v{r+2}", f"v_add_f32 v{r+1}, v{r+1}, v{r+3}"); sr += [r, r+1]
        xreduce(b, sr, HOWN + 16)
        k1 = -2.0 * math.sqrt(2.0 / math.pi) * math.log2(math.e); k2 = k1 * 0.044715
        rows = []
        for j in range(4):
            r = HOWN + 4*j; c = CON + 4*j
            rows.append([f"v_mul_f32 v{r}, {f32(1/576)}, v{r}", f"v_mul_f32 v{r+1}, {f32(1/576)}, v{r+1}", f"v_fma_f32 v{r+1}, -v{r}, v{r}, v{r+1}",
                         f"v_max_f32 v{r+1}, 0, v{r+1}", f"v_add_f32 v{c+2}, {f32(1e-5)}, v{r+1}", f"v_rsq_f32 v{r}, v{c+2}",
                         f"v_mul_f32 v{c}, {f32(k1)}, v{r}", f"v_mul_f32 v{r+1}, v{r}, v{r}", f"v_mul_f32 v{r+1}, v{r+1}, v{r}",
                         f"v_mul_f32 v{c+1}, {f32(k2)}, v{r+1}"])
        for col in zip(*rows): b(list(col))
        return b.lines
    def hstore(pos, j):
        p = pos//2; r = HOWN + 16*p + 4*j
        return ("vm", f"buffer_store_dwordx4 v[{r}:{r+3}], v{VJ[j]}, {WS}, s{sH} offen offset:{p*1024} {stpol()}", ("hs", pos))
    def gelu(pos, tmp=TMP):
        acc = aset(pos); out = []
        for j in range(4):
            c = CON + 4*j
            for h in range(2):
                st = []
                for e in range(2):
                    g = acc + 4*j + 2*h + e; u = g + 16; t = tmp + 4*((2*j + h) % 2) + 2*e
                    st.append([f"v_mul_f32 v{t}, v{g}, v{g}", f"v_fma_f32 v{t}, v{t}, v{c+1}, v{c}", f"v_mul_f32 v{t}, v{t}, v{g}",
                               f"v_exp_f32 v{t}, v{t}", f"v_mul_f32 v{t+1}, v{g}, v{u}", f"v_fma_f32 v{t}, v{t}, v{c+2}, v{c+2}",
                               f"v_rcp_f32 v{t}, v{t}", f"v_mul_f32 v{t+1}, v{t+1}, v{t}"])
                t = tmp + 4*((2*j + h) % 2)
                if opts.get("pk", 0):
                    g = acc + 4*j + 2*h; P = lambda r: f"v[{r}:{r+1}]"; w = t + 2
                    out += [f"v_pk_mul_f32 {P(t)}, {P(g)}, {P(g)}",
                            f"v_pk_fma_f32 {P(t)}, {P(t)}, {P(c)}, {P(c)} op_sel:[0,1,0] op_sel_hi:[1,1,0]",
                            f"v_pk_mul_f32 {P(t)}, {P(t)}, {P(g)}", f"v_exp_f32 v{t}, v{t}", f"v_exp_f32 v{t+1}, v{t+1}",
                            f"v_pk_mul_f32 {P(w)}, {P(g)}, {P(g+16)}",
                            f"v_pk_fma_f32 {P(t)}, {P(t)}, {P(c+2)}, {P(c+2)} op_sel_hi:[1,0,0]",
                            f"v_rcp_f32 v{t}, v{t}", f"v_rcp_f32 v{t+1}, v{t+1}", f"v_pk_mul_f32 {P(w)}, {P(w)}, {P(t)}"]
                    dst = HS + 2*j + h if pos == 8 else HOWN + 16*(pos//2) + 4*j + 2*(pos % 2) + h
                    out.append(f"v_cvt_pk_bf16_f32 v{dst}, v{w}, v{w+1}")
                    continue
                for x, y in zip(*st): out += [x, y]
                dst = HS + 2*j + h if pos == 8 else HOWN + 16*(pos//2) + 4*j + 2*(pos % 2) + h
                out.append(f"v_cvt_pk_bf16_f32 v{dst}, v{t+1}, v{t+3}")
            if pos == 8:
                out.append(("vm", f"buffer_store_dwordx2 v[{HS+2*j}:{HS+2*j+1}], v{VJH[j]}, {WS}, s{sM+2} offen {stpol()}", ("hs", 8)))
            elif pos % 2 and pos != 3: out.append(hstore(pos, j))
        return out
    hreg = {0: ("v", HOWN), 1: ("v", HOWN+16), 2: ("v", HOWN+32), 12: ("v", HOWN+48)}
    for n, pos in enumerate(range(3, 10)): hreg[pos] = ("a", 16*n)
    hreg[10] = ("v", XV); hreg[11] = ("v", XV+16); hreg[13] = ("v", aset(7)); hreg[14] = ("v", aset(7)+16)
    hreg[15] = ("v", aset(8)); hreg[16] = ("v", aset(8)+16); hreg[17] = ("v", CON)
    def hfrag(pos, j):
        k, r = hreg[pos]; return f"{k}[{r+4*j}:{r+4*j+3}]"
    def hload(pos):
        rel, p = KPOS[pos]
        if rel == "mix":
            k, r = hreg[pos]
            return [("vm", f"buffer_load_dwordx2 {k}[{r+4*j+2*h}:{r+4*j+2*h+1}], v{VJH[j]}, {WS}, s{sM+p} offen offset:{512*h} {ldpol()}", ("h", pos))
                    for j in range(4) for h in range(2)]
        return [("vm", f"buffer_load_dwordx4 {hfrag(pos, j)}, v{VJ[j]}, {WS}, s{sH+rel} offen offset:{p*1024} {ldpol()}", ("h", pos)) for j in range(4)]
    done = set()
    def set_flag(val, keys):
        def w():
            assert all(k in done for k in keys), (val, keys)
            vm.wait(max(tag[("hs", 3 if k == "sB" else k)] for k in keys))
        return [f"v_mov_b32 v{VFV}, s{NONCE}", f"v_mov_b32 v{VFV+1}, s{NONCE+1}", f"s_add_u32 s53, s{sF}, {(val-1) << (10+FS)}", w,
                ("vm", f"buffer_store_dwordx2 v[{VFV}:{VFV+1}], v{VFS}, {WS}, s53 offen {stpol()}", ("fs", val))]
    def poll(val):
        return [f"s_add_u32 s23, s{sF}, {(val-1) << (10+FS)}", ("vm", f"buffer_load_dwordx2 v[14:15], v{VFL}, {WS}, s23 offen {plpol()}", ("fl", val))]
    def check(val):
        def f():
            vm.wait(tag[("fl", val)])
            a(f"v_cmp_eq_u64 vcc, s[{NONCE}:{NONCE+1}], v[14:15]", "s_nop 0", "s_cmp_eq_u64 vcc, exec", f"s_cbranch_scc0 L_f_slow{val}")
            a.label(f"L_f_back{val}")
            tail(f"L_f_slow{val}:", "s_mov_b32 s52, 0", f"L_f_spin{val}:",
                 f"buffer_load_dwordx2 v[14:15], v{VFL}, {WS}, s23 offen {plpol()}", "s_add_u32 s52, s52, 1", "s_waitcnt vmcnt(0)",
                 f"v_cmp_eq_u64 vcc, s[{NONCE}:{NONCE+1}], v[14:15]", f"s_cmp_gt_u32 s52, {SPIN[0]}", f"s_cbranch_scc1 L_f_back{val}",
                 "s_cmp_eq_u64 vcc, exec", f"s_cbranch_scc0 L_f_spin{val}", f"s_branch L_f_back{val}")
        return f
    def epilogue(tiles, js=range(4)):
        out = []
        if len(tiles) == 4:
            Q = tiles[0] // 4
            for j in js:
                for h in range(2):
                    t = TMP + 8*h; pk = HS + 4*h
                    out += [f"v_accvgpr_read_b32 v{t + 4*rr + jj}, a{OUT + ((4*Q + jj)*4 + j)*4 + 2*h + rr}" for rr in range(2) for jj in range(4)]
                    out += [f"v_cvt_pk_bf16_f32 v{pk+d}, v{t+2*d}, v{t+2*d+1}" for d in range(4)]
                    out.append(("vm", f"buffer_store_dwordx4 v[{pk}:{pk+3}], v{VQ}, {WS}, s{sPJ+j} offen offset:{Q*2048 + h*256} {stpol()}", ("o", Q)))
        else:
            for jp in range(2):
                t = TMP + 8*jp; pk = HS + 4*jp
                for n in range(2):
                    r = OUT + (8*4 + 2*jp + n)*4
                    out += [f"v_accvgpr_read_b32 v{t+4*n+e}, a{r+e}" for e in range(4)]
                out += [f"v_cvt_pk_bf16_f32 v{pk+d}, v{t+2*d}, v{t+2*d+1}" for d in range(4)]
                out += [f"v_permlane16_swap_b32 v{pk}, v{pk+2}", f"v_permlane16_swap_b32 v{pk+1}, v{pk+3}"]
                out.append(("vm", f"buffer_store_dwordx4 v[{pk}:{pk+3}], v{VODD}, {WS}, s{sP+1+jp} offen {stpol()}", ("o", 4)))
        return out

    steps = []
    def gstep(pos, kp, mat, wait=None):
        d = [f"v[{aset(pos) + 16*mat + 4*j}:{aset(pos) + 16*mat + 4*j + 3}]" for j in range(4)]
        steps.append(dict(d=d, b=[[xreg(2*kp + c, j) for c in range(2)] for j in range(4)], first=kp == 0, wait=wait))
    for kp in range(9):
        for pos in range(2):
            for mat in range(2): gstep(pos, kp, mat, ("x", 2*kp+1) if pos == 0 and mat == 0 else None)
    for pos in range(2, 9):
        for kp in range(9):
            for mat in range(2): gstep(pos, kp, mat)
    P2 = len(steps)
    for start, n, tiles in KBLOCKS:
        for t in tiles:
            for c0 in range(0, n, 2):
                d = [f"a[{OUT + (t*4+j)*4}:{OUT + (t*4+j)*4 + 3}]" for j in range(4)]
                need_h = [p for p in (start+c0, start+c0+1) if KPOS[p][0] != 0]
                steps.append(dict(d=d, b=[[hfrag(start + c0 + c, j) for c in range(2)] for j in range(4)], first=start + c0 == 0,
                                  wait=("h", need_h[-1]) if need_h and t == 0 else None))
    for n, st in enumerate(steps): st.update(fr=2*n, js=[0, 1, 2, 3])
    q0 = P2 + 52 + OS; NH = opts.get("split", 20)
    tailq = steps[q0 + 20 - NH:q0 + 20]
    steps[q0 + 20 - NH:q0 + 20] = [dict(st, js=js) for js in ([0, 1], [2, 3]) for st in tailq] if NH else []
    q1a = q0 + 20; q1 = q0 + 20 + NH
    NSTEP = len(steps)
    RD[:] = [st["fr"] + c for st in steps for c in range(2)]; NRD = len(RD)
    G = [0]
    for st in steps: G.append(G[-1] + 2*len(st["js"]))
    G.append(G[-1] + 8)
    groups = []
    def add(rel, dl, items): groups.append(dict(rel=rel, dl=dl, q=list(items)))
    bstep = lambda b: (STAGE*b - 6) // 2
    need = {}
    for n, st in enumerate(steps):
        for j in range(2):
            for pos in range(18):
                if st["b"][0][j] == hfrag(pos, 0) and n >= P2: need.setdefault(pos, n)
    LEAD = opts.get("lead", 13); f1 = opts.get("f1", 132); f2 = opts.get("f2", 170); f3 = opts.get("f3", 182); g8 = opts.get("g8", 175)
    for k in range(BURST, 18): add(0, k, xload(k))
    add(0, 18, dma(4))
    add(f1, f1, set_flag(1, (1, "sB", 5))); add(f1 + 6, f1 + 6, poll(1)); add(f1 + 14, f1 + 14, [check(1)])
    add(f2, f2, set_flag(2, (7,))); add(f2 + 6, f2 + 6, poll(2)); add(f2 + 14, f2 + 14, [check(2)])
    add(f3, f3, set_flag(3, (8,))); add(f3 + 6, f3 + 6, poll(3)); add(f3 + 13, f3 + 13, [check(3)])
    for pos in range(3, 18):
        if pos == 12: continue
        rel = max(f1 + 15, 146 + 2*((pos - 3)//2)) if pos < 10 else (163 if pos < 12 else (f2 + 15 if pos < 16 else f3 + 14))
        add(rel, max(rel, need[pos] - LEAD) + pos/100, hload(pos))
    def next_mem(s):
        live = [g for g in groups if g["q"] and g["rel"] <= s]
        return min(live, key=lambda g: g["dl"]) if live else None
    def force(key, s):
        for g in sorted(groups, key=lambda g: g["dl"]):
            if any(isinstance(x, tuple) and x[2] == key for x in g["q"]):
                assert g["rel"] <= s, (key, s)
                late.append(("mem", key, s))
                while g["q"]: emit(g["q"].pop(0))
    jobs = [("c", consts(), 8, 30)]
    jobs += [(0, gelu(0), 36, 54), (1, gelu(1), 36, 72), (2, gelu(2, TMP + 8), 54, 98), (3, gelu(3), 72, 90), ("sB", [hstore(3, j) for j in range(4)], 90, 112)]
    jobs += [(p, gelu(p), 18*(p+1), 18*(p+2)) for p in range(4, 7)] + [(7, gelu(7), 144, 163), (8, gelu(8), 162, g8)]
    fq = q1a + opts.get("fq", 12)
    jobs += [("e0", epilogue(range(4)), q0, min(fq - 6, q1a))]
    if NH: jobs += [("e1a", epilogue(range(4, 8), (0, 1)), q1a, q1), ("e1b", epilogue(range(4, 8), (2, 3)), q1, NSTEP + 1)]
    else: jobs += [("e1", epilogue(range(4, 8)), q1, NSTEP + 1)]
    jobs = [dict(name=n, q=list(q), t0=t0, t1=t1) for n, q, t0, t1 in jobs]
    after = {4: 2, 'sB': 2, 8: 7}; GAP = opts.get('gap', 5)
    issued = 6; late = []; gap = 4; pend_rd = 0; bar_next = False; stage = 0
    for s, st in enumerate(steps):
        for jb in jobs:
            if jb["t1"] == s:
                if jb["q"]: late.append((jb["name"], len(jb["q"])))
                while jb["q"]: emit(jb["q"].pop(0))
                done.add(jb["name"])
        if st["wait"]:
            force(st["wait"], s)
            vm.wait(tag[st["wait"]])
        assert issued >= 2*s + 2
        a(f"s_waitcnt lgkmcnt({issued - 2*s - 2})")
        pr.stamp(f"s{s}")
        if opts.get("trace") and next_mem(s): print(s, [x[2] for x in next_mem(s)["q"] if isinstance(x, tuple)][:1])
        nm = 2*len(st["js"])
        for n in range(nm):
            j, c = st["js"][n // 2], n % 2
            w = RING + 4*((2*s + c) % NW)
            a(f"{MF} {st['d'][j]}, v[{w}:{w+3}], {st['b'][j][c]}, {'0' if st['first'] and c == 0 else st['d'][j]}")
            room = 2 - (1 if n == nm - 1 else 0)
            gap += 1
            if n in ((2, 5) if nm == 8 else (1, 2)): pend_rd += 1
            if n == 0 and issued < NRD and RD[issued] // STAGE > stage:
                b = stage = RD[issued] // STAGE
                force(("w", b), s)
                if b >= NPRE: vm.wait(tag[("w", b)]); room -= 1
                bar_next = True
            elif n == 0 and s == fq:
                assert "e0" in done
                vm.wait(tag[("o", 0)]); room -= 1; b = NSTAGE; bar_next = True; gap = -1
                add(s, s, [f"v_mov_b32 v{VFV}, s{NONCE}", f"v_mov_b32 v{VFV+1}, s{NONCE+1}",
                           ("vm", f"buffer_store_dwordx2 v[{VFV}:{VFV+1}], v{VFS}, {WS}, s44 offen sc1", ("fq", 0))])
            elif bar_next:
                a("s_barrier"); bar_next = False
                if b + 4 < NSTAGE: add(s, max(18 + b, bstep(b + 4) - (12 if b >= 12 else 40)), dma(b + 4))
                continue
            if pend_rd and issued < NRD:
                a(rd(issued)); issued += 1; pend_rd -= 1; room -= 1
            grp = next_mem(s)
            if grp and s >= P2 and 8 not in done and grp["dl"] > s + 7: grp = None
            while grp and grp["q"] and not isinstance(grp["q"][0], tuple) and room > 0: emit(grp["q"].pop(0)); room -= 1
            if grp and grp["q"] and isinstance(grp["q"][0], tuple):
                want = 4 if grp["dl"] <= s + 2 or grp["q"][0][2][0] == "x" else GAP
                if gap >= want and (room == 2 or gap >= want + 2):
                    room -= cost(grp["q"][0]); emit(grp["q"].pop(0)); gap = 0
            g = G[s] + n
            live = sorted((jb for jb in jobs if jb["q"] and G[jb["t0"]] + 3 <= g and after.get(jb["name"], "c") in done | {"c"}), key=lambda jb: jb["t1"])
            for jb in live:
                left = sum(cost(x) for x in jb["q"]); slots = G[jb["t1"]] - g - 2
                lazy = jb is live[-1] and isinstance(jb["name"], int) and jb["name"] in (6,) and left < 1.15*slots - 6
                while jb["q"] and not lazy:
                    urgent = left > 1.9*slots
                    i = pick(jb["q"], lambda x: urgent or (cost(x) <= room and not (isinstance(x, tuple) and gap < 2)))
                    if i is None: break
                    x = jb["q"].pop(i); cx = cost(x)
                    emit(x); room -= cx; left -= cx
                    if isinstance(x, tuple): gap = 0
                    if room <= 0: break
                if not jb["q"]: done.add(jb["name"])
                if room <= 0: break
    assert not any(g['q'] for g in groups) and ("fq", 0) in tag
    if any(x[0] == 'mem' or x[1] > 16 for x in late): print("late items", late)
    for jb in jobs:
        for x in jb["q"]: emit(x)
    for x in epilogue([8]): emit(x)
    a(f"s_mov_b32 s{S_FLAG}, s35")
    pr.stamp("fst")
```

```python
from gen_common import *
from gen_common import _uid
import re

RAW, AD, PKD, MU, VL = 76, 156, 176, 20, 4
RAWD, PKDD, ADD, VLD = RAW, PKD, AD, VL
GR = 124
LX = 159744
assert all((n*147) >> 10 == n//7 for n in range(128)) and all((n*205) >> 10 == n//5 for n in range(96))

def arms(a, name, tests, bodies):
    for n, body in enumerate(bodies):
        if n < len(tests): a(tests[n], f"s_cbranch_scc0 L_{name}_{n}", "; @if")
        body()
        if n < len(tests): a(f"s_branch L_{name}_e", "; @else"); a.label(f"L_{name}_{n}")
    a(["; @endif"]*len(tests)); a.label(f"L_{name}_e")

def by_type(a, name, w1, wd, none):
    arms(a, name, ["s_cmp_lt_u32 s2, 144", "s_cmp_lt_u32 s2, 216"], [w1, wd, none])

def nonce(a):
    a("v_readfirstlane_b32 s12, v14", "v_readfirstlane_b32 s13, v15", f"s_add_u32 s{NONCE}, s12, 1", f"s_addc_u32 s{NONCE+1}, s13, 0")

def stage_rows(a, vm, n, stride, group):
    a(f"v_mul_u32_u24 v9, {stride}, v7", "v_lshl_add_u32 v9, v6, 4, v9", "v_cmp_gt_u32 vcc, 9, v6", "v_cndmask_b32 v9, v12, v9, vcc")
    for g in range(n):
        a(f"s_add_u32 m0, s43, {1024*g}", f"s_add_u32 s41, s42, {group(g)}")
        vm.op("buffer_load_dwordx4 v9, s[44:47], s41 offen lds")

def fragment(a, vm, n, addr, offs, dst, imm):
    r = GR + 8*(n % 4)
    for i in range(8): a(f"ds_read_u16 v{r+i}, v{addr} offset:{offs[i]}")
    def finish(younger):
        a(f"s_waitcnt lgkmcnt({younger})")
        for d in range(4): a(f"v_lshl_or_b32 v{r+d}, v{r+2*d+1}, 16, v{r+2*d}")
        vm.op(f"buffer_store_dwordx4 v[{r}:{r+3}], v{V_L16}, {WS}, s{dst} offen offset:{imm} sc1")
    return finish

def run_fragments(jobs):
    pend = None
    for job in jobs:
        fin = job()
        if pend: pend(8)
        pend = fin
    pend(0)

def pack_q_issue(a, vm, nk):
    srd(a, 44, 58, D * 3 * D * 2)
    a(f"s_mul_i32 s42, s40, {32*3456}", f"s_mul_i32 s43, s{S_WAVE}, {8*3456}", "s_add_u32 s42, s42, s43", f"s_mul_i32 s43, s{S_X}, 144", "s_add_u32 s42, s42, s43")
    first = True
    for ks in range(nk):
        for seg in range(3):
            a(f"s_lshl_b32 s43, s{S_WAVE}, 11", f"s_add_u32 s43, s43, {(ks*3 + seg)*8192}")
            if first: stage_rows(a, vm, 2, 3456, lambda g: ks*32*3456 + seg*1152 + g*4*3456); first = False
            else:
                for g in range(2):
                    a(f"s_add_u32 m0, s43, {1024*g}", f"s_add_u32 s41, s42, {ks*32*3456 + seg*1152 + g*4*3456}")
                    vm.op("buffer_load_dwordx4 v9, s[44:47], s41 offen lds")

def pack_q_finish(a, vm, nk):
    a(f"s_and_b32 s41, s{S_WAVE}, 1", "s_mul_i32 s42, s41, 72", f"s_lshl_b32 s43, s{S_X}, 1", "s_add_u32 s41, s41, s43", f"s_mul_i32 s41, s41, {PQ_TASK}",
      f"s_mul_i32 s43, s40, {7*1024}", "s_add_u32 s41, s41, s43", f"s_add_u32 s41, s41, {PQ}", f"s_lshr_b32 s43, s{S_WAVE}, 1", "s_lshl_b32 s29, s43, 12", "s_add_u32 s41, s41, s29")
    a(f"v_and_b32 v6, 15, v{V_LANE}", f"v_lshrrev_b32 v7, 4, v{V_LANE}", "v_lshlrev_b32 v10, 11, v7", "v_add_u32 v10, s42, v10", "v_lshl_add_u32 v11, v6, 1, v10")
    a("v_and_b32 v9, 1, v6", "v_bfe_u32 v13, v6, 1, 1", "v_mad_u32_u24 v9, v13, 18, v9", "v_lshl_add_u32 v9, v9, 1, v10", "v_lshrrev_b32 v13, 2, v6",
      "v_lshl_add_u32 v9, v13, 13, v9", "v_add_u32 v9, 32, v9", "v_mov_b32 v13, 160", "v_cmp_gt_u32 vcc, 12, v6", "v_cndmask_b32 v9, v13, v9, vcc")
    a("s_cmp_eq_u32 s43, 0", "s_cselect_b64 vcc, -1, 0")
    for j, (lo, hi) in enumerate(((0, None), (36, 16384), (8192, 16384 + 36), (8192 + 36, 0))):
        a(f"v_add_u32 v{4+j}, {lo}, v11")
        if hi is None: a(f"v_cndmask_b32 v{4+j}, v9, v{4+j}, vcc")
        else: a(f"v_add_u32 v13, {hi}, v11", f"v_cndmask_b32 v{4+j}, v13, v{4+j}, vcc")
    for ks in range(nk):
        a(f"s_add_u32 s{20+2*ks}, s41, {ks*7*1024}", f"s_add_u32 s29, s40, {ks}", "s_cmp_lt_u32 s29, 18", f"s_cselect_b32 s{20+2*ks}, s{20+2*ks}, {OOB}",
          "s_cmp_eq_u32 s43, 0", f"s_cselect_b32 s{21+2*ks}, s{20+2*ks}, {OOB}")
    run_fragments([lambda ks=ks, j=j: fragment(a, vm, 4*ks + j, 4+j, [ks*24576 + 256*i for i in range(8)], 20 + 2*ks + (j == 3), 1024*j)
                   for ks in range(nk) for j in range(4)])

def pack_o_issue(a, vm):
    srd(a, 44, 60, D * D * 2)
    a(f"s_mul_i32 s42, s40, {288*1152}", f"s_mul_i32 s43, s{S_WAVE}, {72*1152}", "s_add_u32 s42, s42, s43", f"s_mul_i32 s43, s{S_X}, 144", "s_add_u32 s42, s42, s43",
      f"s_mul_i32 s43, s{S_WAVE}, {72*256}")
    stage_rows(a, vm, 18, 1152, lambda g: g*4*1152)

def pack_o_finish(a, vm):
    a(f"s_mul_i32 s41, s{S_X}, {PO_TASK}", f"s_add_u32 s41, s41, {PO}", "s_lshl_b32 s42, s40, 3", f"s_lshl_b32 s43, s{S_WAVE}, 1", "s_add_u32 s42, s42, s43",
      "s_mul_i32 s42, s42, 5120", "s_add_u32 s20, s41, s42", "s_add_u32 s21, s20, 4096", "s_add_u32 s22, s20, 5120", "s_add_u32 s23, s22, 4096",
      "s_add_u32 s42, s40, 16", "s_mul_i32 s42, s42, 5120", "s_add_u32 s41, s41, s42", f"s_lshl_b32 s42, s{S_WAVE}, 10", "s_add_u32 s24, s41, s42",
      "s_add_u32 s25, s41, 4096", f"s_cmp_eq_u32 s{S_WAVE}, 0", f"s_cselect_b32 s25, s25, {OOB}")
    a("v_and_b32 v9, 3, v6", "v_lshl_add_u32 v9, v8, 3, v9", "v_lshlrev_b32 v9, 1, v9", "v_lshlrev_b32 v10, 1, v6", "v_add_u32 v10, 128, v10",
      "v_mov_b32 v13, 160", "v_cmp_gt_u32 vcc, 8, v6", "v_cndmask_b32 v10, v13, v10, vcc")
    a(f"s_mul_i32 s42, s{S_WAVE}, {72*256}", "v_lshlrev_b32 v11, 10, v7", "v_add_u32 v11, s42, v11", "v_add_u32 v4, v11, v9", "v_add_u32 v5, v11, v10",
      f"v_mul_u32_u24 v11, {72*256}, v7", "v_add_u32 v7, v11, v10", f"s_lshr_b32 s42, s{S_WAVE}, 1", "s_lshl_b32 s42, s42, 6", f"s_and_b32 s43, s{S_WAVE}, 1",
      "s_lshl_b32 s43, s43, 3", "s_add_u32 s42, s42, s43", "v_add3_u32 v6, v11, v9, s42")
    ra = [256*(18*(i >> 2) + (i & 3)) for i in range(8)]; rb = [256*(36*(i >> 2) + [16, 17, 34, 35][i & 3]) for i in range(8)]
    jobs = []
    for ks in range(2):
        for t in range(5):
            col = 0 if t == 4 else 64*(t >> 1) + 8*(t & 1)
            jobs.append(lambda ks=ks, t=t, col=col, n=len(jobs): fragment(a, vm, n, 5 if t == 4 else 4, [ks*36*256 + col + x for x in ra],
                                                                          20 + 2*ks + (t == 4), 0 if t == 4 else 1024*t))
    jobs += [lambda: fragment(a, vm, 10, 6, rb, 24, 0), lambda: fragment(a, vm, 11, 7, rb, 25, 0)]
    run_fragments(jobs)

def rows_issue(a, vm):
    a(f"v_and_b32 v9, 7, v{V_LANE}", f"v_lshrrev_b32 v10, 3, v{V_LANE}", "v_mul_u32_u24 v5, 2304, v9", "v_lshl_add_u32 v5, v10, 4, v5")
    a(f"s_lshl_b32 s36, s{S_X}, 8", "s_lshl_b32 s37, s39, 3", "s_add_u32 s36, s36, s37", "s_and_b32 s37, s36, 1023", "s_lshl_b32 s37, s37, 1",
      "s_lshr_b32 s36, s36, 10", "s_add_u32 s36, s36, s37", "s_mul_i32 s36, s36, 1152")
    for n in range(9): vm.op(f"buffer_load_dwordx4 v[{16+4*n}:{19+4*n}], v5, s[16:19], s36 offen offset:{128*n}")
    a("s_and_b32 s37, s39, 1", "s_lshl_b32 s37, s37, 3", "v_add_u32 v9, s37, v9", "v_lshlrev_b32 v9, 4, v9", "v_lshl_add_u32 v4, v10, 8, v9",
      f"s_lshl_b32 s36, s{S_X}, 4", "s_lshr_b32 s37, s39, 1", "s_add_u32 s36, s36, s37", f"s_mul_i32 s36, s36, {TILE}")

def rows_finish(a, vm):
    DATA, SUM = 16, 52
    def put(base):
        for n in range(9):
            if n % 2 == 0: a(f"s_add_u32 s37, s36, {base + 2048*n}")
            vm.op(f"buffer_store_dwordx4 v[{DATA+4*n}:{DATA+4*n+3}], v4, {WS}, s37 offen offset:{2048*(n % 2)} sc1")
    for d in range(36): a(f"v_lshlrev_b32 v{SUM+2*d}, 16, v{DATA+d}", f"v_and_b32 v{SUM+2*d+1}, 0xffff0000, v{DATA+d}")
    a("s_mov_b32 s37, 0x3f803f80")
    for n in range(4): a(f"v_mov_b32 v{6+n}, 0")
    for d in range(36): a(f"v_dot2_f32_bf16 v{6 + d % 2}, v{DATA+d}, s37, v{6 + d % 2}", f"v_dot2_f32_bf16 v{8 + d % 2}, v{DATA+d}, v{DATA+d}, v{8 + d % 2}")
    put(XR[0])
    a("v_add_f32 v6, v6, v7", "v_add_f32 v7, v8, v9")
    xreduce(a, [6, 7], 8, steps=("8", "16", "32"))
    a(f"v_mul_f32 v6, {f32(1/576)}, v6", f"v_mul_f32 v7, {f32(1/576)}, v7", "v_fma_f32 v7, -v6, v6, v7",
      "v_max_f32 v7, 0, v7", f"v_add_f32 v7, {f32(1e-5)}, v7", "v_rsq_f32 v7, v7", "v_mul_f32 v6, v6, v7")
    for e in range(72): a(f"v_fma_f32 v{SUM+e}, v{SUM+e}, v7, -v6")
    for d in range(36): a(f"v_cvt_pk_bf16_f32 v{DATA+d}, v{SUM+2*d}, v{SUM+2*d+1}")
    put(XN[0])

def w1_load(kk, i):
    r = RAW + 16*kk + 2*i
    return [f"buffer_load_dwordx2 v[{r}:{r+1}], v{VL if kk < 4 else VL+1}, s[48:51], s53 offen", f"s_add_u32 s53, s53, {9216 if i < 7 else 25*9216}"]

def wd_load(kk, i):
    out = [f"s_add_u32 s43, s37, {(4*(i & 3) + 2*kk + (i >> 2))*1152}"]
    for Q in range(2):
        r = RAWD + 40*kk + 16*Q + 2*i
        out.append(f"buffer_load_dwordx2 v[{r}:{r+1}], v{VLD}, s[16:19], s43 offen offset:{128*Q}")
    return out + [f"buffer_load_ushort v{RAWD + 40*kk + 32 + i}, v{VLD+1}, s[16:19], s43 offen offset:1024"]
WD_LOADS = [x for kk in range(2) for i in range(8) for x in wd_load(kk, i)]

def spread(a, v, AD=AD, s0=40):
    for n0 in range(0, 20, 4):
        for n in range(n0, n0+4): a(f"v_readlane_b32 s{s0 + n - n0}, v{v}, {n}")
        for n in range(n0, n0+4): a(f"v_add_u32 v{AD+n}, s{s0 + n - n0}, v{V_L16}")

def quad_perm(a, raw, dst, sel=34):
    for j in range(4):
        for d in range(4):
            a(f"v_perm_b32 v{dst + 4*j + d}, v{raw + 4*d + 2 + (j >> 1)}, v{raw + 4*d + (j >> 1)}, s{sel + (j & 1)}")

def center_items(n):
    t = 24 + (12*(n & 1) if n < NPC[0] else 0); mu = MU + (n & 3); r = PKD + 4*n
    out = [f"v_dot2_f32_bf16 v{t + 2*d + h}, v{r+d}, s{38+h}, v{mu}" for d in range(4) for h in range(2)]
    return out + [f"v_cvt_pk_bf16_f32 v{r+d}, v{t + 2*d}, v{t + 2*d + 1}" for d in range(4)]

def store_item(n): return f"buffer_store_dwordx4 v[{PKD+4*n}:{PKD+4*n+3}], v{AD+n}, {WS}, 0 offen sc1"

ADFIRST = [1]; NPC = [12]
def role_w1(a, pr):
    def loads():
        for kk in range(5):
            for i in range(8): a(w1_load(kk, i))
        pr.stamp("p2")
    if True:
        div(a, 40, 2, 72, 144)
        a("s_mul_i32 s41, s40, 72", "s_sub_u32 s41, s2, s41", "s_cmp_eq_u32 s40, 0", "s_cselect_b64 s[12:13], s[64:65], s[66:67]")
        srd(a, 48, 12, D * DF * 2)
        a("s_lshl_b32 s42, s41, 7", "v_lshlrev_b32 v9, 3, v6", f"v_mul_u32_u24 v10, {8*9216}, v7", f"v_add3_u32 v{VL}, v9, v10, s42")
        a(f"s_bitcmp1_b32 s{S_WAVE}, 0", "s_cselect_b64 vcc, -1, 0", f"v_cndmask_b32 v{VL+1}, v{VL}, v12, vcc")
        a(f"s_mul_i32 s43, s{S_WAVE}, 9", "s_add_u32 s43, s43, 1", "s_lshr_b32 s43, s43, 1", f"s_mul_i32 s53, s43, {32*9216}")
        if not ADFIRST[0]: loads()
        div(a, 42, 41, 9, 72)
        a("s_mul_i32 s35, s42, 9", "s_sub_u32 s41, s41, s35", "s_lshl_b32 s41, s41, 2", "s_lshl_b32 s42, s42, 2", "s_lshl_b32 s40, s40, 11",
          f"s_add_u32 s40, s40, {PF}", f"s_mov_b32 s35, {PF_TASK}")
        a(f"v_and_b32 v6, 3, v{V_LANE}", "v_add_u32 v6, s41, v6", "v_mul_u32_u24 v7, 57, v6", "v_lshrrev_b32 v7, 9, v7",
          "v_mul_u32_u24 v8, 9, v7", "v_sub_u32 v6, v6, v8", "v_subrev_u32 v8, 1, v6", "v_min_u32 v8, 8, v8",
          "v_and_b32 v9, 1, v7", "v_cmp_eq_u32 vcc, 1, v9", "v_cndmask_b32 v6, v6, v8, vcc",
          "v_add_u32 v7, s42, v7", "v_mul_lo_u32 v7, v7, s35", "v_add_u32 v7, s40, v7",
          f"v_lshrrev_b32 v8, 2, v{V_LANE}", "v_add_u32 v8, s43, v8", "v_and_b32 v9, 1, v8", "v_lshl_add_u32 v7, v9, 10, v7",
          "v_lshrrev_b32 v9, 1, v8", "v_lshlrev_b32 v9, 12, v9", "v_add_u32 v7, v7, v9",
          "v_lshl_add_u32 v9, v6, 12, v9", f"v_mul_u32_u24 v10, {36*1024}, v6", "v_cmp_gt_u32 vcc, 2, v6", "v_cndmask_b32 v9, v10, v9, vcc",
          "v_add_u32 v7, v7, v9", "v_cmp_gt_u32 vcc, 18, v8", "v_cndmask_b32 v7, v12, v7, vcc",
          f"s_bitcmp1_b32 s{S_WAVE}, 0", "s_cselect_b32 s41, 16, 20", f"v_cmp_gt_u32 vcc, s41, v{V_LANE}", "v_cndmask_b32 v7, v12, v7, vcc")
        spread(a, 7)
        if ADFIRST[0]: loads()
        a("s_mov_b32 s34, 0x05040100", "s_mov_b32 s35, 0x07060302", "s_mov_b32 s38, 0x00003f80", "s_mov_b32 s39, 0x3f800000")
        for r in range(4): a(f"v_mov_b32 v{68+r}, 0x3f803f80")
        a(f"v_and_b32 v72, 15, v{V_LANE}", "v_lshlrev_b32 v72, 4, v72", f"v_add_u32 v72, {LX}, v72", f"s_lshl_b32 s44, s{S_WAVE}, 2", "v_add_u32 v73, s44, v72")
        for kk in range(5):
            a(f"s_waitcnt vmcnt({32 - 8*kk})")
            quad_perm(a, RAW + 16*kk, PKD + 16*kk)
            for j in range(4):
                r = PKD + 16*kk + 4*j; d = 52 + 4*j
                a(f"v_mfma_f32_16x16x32_bf16 v[{d}:{d+3}], v[68:71], v[{r}:{r+3}], {'0' if kk == 0 else f'v[{d}:{d+3}]'}")
        nonce(a)
        pr.stamp("px")
        for j in range(4): a(f"ds_write_b32 v73, v{52 + 4*j} offset:{256*j}")
        a("s_waitcnt lgkmcnt(0)", "s_barrier")
        for j in range(4): a(f"ds_read_b128 v[{52+4*j}:{55+4*j}], v72 offset:{256*j}")
        a("s_waitcnt lgkmcnt(0)")
        for j in range(4): a(f"v_add_f32 v{52+4*j}, v{52+4*j}, v{53+4*j}", f"v_add_f32 v{54+4*j}, v{54+4*j}, v{55+4*j}")
        for j in range(4): a(f"v_add_f32 v{52+4*j}, v{52+4*j}, v{54+4*j}")
        for j in range(4): a(f"v_mul_f32 v{MU+j}, {f32(-1/576)}, v{52+4*j}")
        for n in range(NPC[0]): a(center_items(n))
        pr.stamp("pst")

def role_rows(a, pr, vm):
    n0 = vm.n; p0 = (pr.n, list(pr.names))
    a(f"s_sub_u32 s39, s{S_I}, 18", "s_lshl_b32 s39, s39, 2", f"s_add_u32 s39, s39, s{S_WAVE}")
    def begin(): vm.n = n0; pr.n = p0[0]; pr.names = list(p0[1])
    def landed(): a("s_waitcnt vmcnt(0)", "s_barrier"); nonce(a)
    def rows():
        begin(); rows_issue(a, vm); t = vm.n
        a("s_lshr_b32 s40, s39, 2")
        pack_q_issue(a, vm, 1); pr.stamp("p2")
        nonce_n = vm.n
        vm.wait(t); rows_finish(a, vm); pr.stamp("px")
        vm.wait(nonce_n); a("s_barrier"); nonce(a)
        pack_q_finish(a, vm, 1)
    def heads():
        begin()
        a("s_lshr_b32 s40, s39, 2", "s_mul_i32 s40, s40, 3", "s_sub_u32 s40, s40, 16")
        pack_q_issue(a, vm, 3); pr.stamp("p2"); landed(); pr.stamp("px")
        pack_q_finish(a, vm, 3)
    def proj():
        begin()
        a("s_lshr_b32 s40, s39, 2", "s_sub_u32 s40, s40, 12")
        pack_o_issue(a, vm); pr.stamp("p2"); landed(); pr.stamp("px")
        pack_o_finish(a, vm)
    arms(a, "cr", ["s_cmp_lt_u32 s39, 32", "s_cmp_lt_u32 s39, 48"], [rows, heads, proj])
    pr.stamp("pst")
    a(f"s_lshl_b32 s24, s{S_X}, 5", f"s_add_u32 s24, s24, s{S_I}")
    set_flag_addr(a, 24, FLAGS + FL_R)
    commit(a)
    for j in range(4): a(f"v_mov_b32 v{MU+j}, 0")
    a("s_mov_b32 s38, 0x00003f80", "s_mov_b32 s39, 0x3f800000")
    def wd():
        srd(a, 16, 62, D * DF * 2)
        a(f"v_and_b32 v6, 15, v{V_LANE}", f"v_lshrrev_b32 v7, 4, v{V_LANE}", f"v_mov_b32 v12, {OOB}")
        a("s_sub_u32 s40, s2, 144", f"s_mul_i32 s37, s40, {64*1152}", f"s_lshl_b32 s41, s{S_WAVE}, 8", f"s_lshl_b32 s42, s{S_WAVE}, 5")
        a(f"v_mul_u32_u24 v10, {16*1152}, v7", "v_lshl_add_u32 v9, v6, 3, v10", f"v_add_u32 v{VLD}, s41, v9",
          "v_lshl_add_u32 v9, v6, 1, v10", f"v_add_u32 v{VLD+1}, s42, v9")
        a(WD_LOADS)
        b = a
        b("s_sub_u32 s48, s2, 144")
        div(b, 49, 48, 9, 72)
        b("s_mul_i32 s50, s49, 9", "s_sub_u32 s48, s48, s50", "s_lshl_b32 s48, s48, 1", "s_lshl_b32 s49, s49, 2", f"s_add_u32 s49, s49, s{S_WAVE}",
          f"s_mul_i32 s49, s49, {PF_TASK}", f"s_add_u32 s49, s49, {PF + 324*1024}")
        b(f"v_cmp_lt_u32 vcc, 8, v{V_LANE}", "v_cndmask_b32 v6, 0, 1, vcc", "v_mul_u32_u24 v7, 9, v6", f"v_sub_u32 v7, v{V_LANE}, v7", "v_add_u32 v6, s48, v6")
        b("v_mov_b32 v8, 0")
        for lim in (4, 8, 13): b(f"v_cmp_lt_u32 vcc, {lim}, v6", "v_addc_co_u32 v8, vcc, 0, v8, vcc")
        b("v_mul_u32_u24 v9, 9, v8", "v_add_u32 v9, 1, v9", "v_lshrrev_b32 v9, 1, v9", "v_sub_u32 v9, v6, v9",
          f"v_subrev_u32 v8, s{S_WAVE}, v8", "v_and_b32 v8, 3, v8",
          "v_mul_u32_u24 v10, 3, v9", "v_add3_u32 v10, v10, v8, 2", "v_cmp_eq_u32 vcc, 0, v8", "v_cndmask_b32 v10, v10, v9, vcc",
          "v_add_u32 v11, 12, v8", "v_cmp_eq_u32 vcc, 3, v9", "v_cndmask_b32 v10, v10, v11, vcc",
          "v_cmp_eq_u32 vcc, 4, v6", "v_cndmask_b32 v10, v10, 16, vcc", "v_cmp_eq_u32 vcc, 13, v6", "v_cndmask_b32 v10, v10, 17, vcc")
        b("v_and_b32 v6, 30, v10", "v_and_b32 v8, 1, v10", "v_lshl_add_u32 v8, v7, 1, v8",
          "v_lshl_add_u32 v9, v6, 3, v8",
          "v_lshrrev_b32 v11, 2, v7", "v_lshl_add_u32 v6, v6, 2, v8", "v_lshl_add_u32 v6, v11, 5, v6", "v_add_u32 v6, 32, v6",
          "v_lshrrev_b32 v13, 4, v10", "v_or_b32 v11, v11, v13", f"v_mad_u32_u24 v6, v11, {2*OS}, v6",
          "v_cmp_gt_u32 vcc, 8, v10", "v_cndmask_b32 v9, v6, v9, vcc",
          "v_add_u32 v6, 144, v10", "v_add_u32 v11, 96, v10", f"v_cmp_gt_u32 vcc, {2*OS}, v10", "v_cndmask_b32 v6, v6, v11, vcc", "v_cmp_eq_u32 vcc, 8, v7", "v_cndmask_b32 v9, v9, v6, vcc",
          "v_lshlrev_b32 v9, 10, v9", "v_add_u32 v9, s49, v9", f"v_cmp_gt_u32 vcc, 18, v{V_LANE}", "v_cndmask_b32 v9, v12, v9, vcc")
        spread(b, 9, ADD, 48)
    arms(a, "wd", ["s_cmp_lt_u32 s2, 216"], [wd, lambda: a([f"v_mov_b32 v{AD+n}, {OOB}" for n in range(20)])])

def wd_transpose(o, side):
    def wd():
        a = Asm()
        for kk in range(2):
            for Q in range(2): quad_perm(a, RAWD + 40*kk + 16*Q, PKDD + 36*kk + 16*Q, 46)
            for d in range(4):
                r = RAWD + 40*kk + 32 + 2*d
                a(f"v_lshl_or_b32 v{PKDD + 36*kk + 32 + d}, v{r+1}, 16, v{r}")
        o("s_mov_b32 s46, 0x05040100", "s_mov_b32 s47, 0x07060302")
        weave(o, a.lines, side, start=2, every=2)
    o("s_sub_u32 s48, s2, 144")
    arms(o, "wp", ["s_cmp_lt_u32 s48, 72"], [wd, lambda: o(side)])

def gen_p0(a, pr, code_bytes):
    vm = VM(a)
    a("s_getpc_b64 s[40:41]")
    a.label("L_warm_pc")
    a("s_lshr_b32 s42, s2, 3", "s_lshl_b32 s42, s42, 11", "v_lshlrev_b32 v10, 3, v0", "v_add_u32 v10, s42, v10", f"v_min_u32 v10, {code_bytes}, v10",
      "v_mov_b32 v11, s41", "v_add_co_u32 v10, vcc, s40, v10", "v_addc_co_u32 v11, vcc, 0, v11, vcc")
    a("global_load_dwordx2 a[0:1], v[10:11], off")
    a("v_add_co_u32 v10, vcc, 0x10000, v10", "v_addc_co_u32 v11, vcc, 0, v11, vcc", f"s_add_u32 s42, s42, {0x10000 + 2048}", f"s_cmp_le_u32 s42, {code_bytes}")
    a("s_cbranch_scc0 L_warm_done")
    a("global_load_dwordx2 a[2:3], v[10:11], off")
    a.label("L_warm_done")
    a(f"s_load_dwordx4 s[56:59], s[0:1], {KA['x']}", f"s_load_dwordx2 s[60:61], s[0:1], {KA['wo']}",
      f"s_load_dwordx4 s[64:67], s[0:1], {KA['wg']}", f"s_load_dwordx2 s[62:63], s[0:1], {KA['wd']}")
    common(a)
    pr.stamp("c0", cyc=True); pr.stamp("start")
    srd(a, 16, 56, S * D * 2)
    a(f"v_mov_b32 v3, {EPOCH}")
    vm.op(f"buffer_load_dwordx2 v[14:15], v3, {WS}, 0 offen sc1")
    a(f"v_and_b32 v6, 15, v{V_LANE}", f"v_lshrrev_b32 v7, 4, v{V_LANE}", "v_lshrrev_b32 v8, 2, v6", f"v_mov_b32 v12, {OOB}", "s_mov_b32 s37, 0")
    p0 = (pr.n, list(pr.names))
    def other(): pr.n = p0[0]; pr.names = list(p0[1]); role_rows(a, pr, vm)
    arms(a, "p0", ["s_cmp_lt_u32 s2, 144"], [lambda: role_w1(a, pr), other])
    pr.stamp("pend")

def gen_epoch(a):
    a("s_cmp_lg_u32 s2, 0", "s_cbranch_scc1 L_end", f"v_lshlrev_b32 v4, {FS}, v{V_LANE}")
    for n in range(4):
        a(f"s_mov_b32 s40, {FLAGS + FL_O + (64*n << FS)}")
        await_flags(a, 4, 40)
    a(f"s_mov_b32 s40, {EPOCH}")
    flag_store(a, 40, V_LANE)
    a("s_branch L_end")
```

```python
from gen_common import *
from gen_common import _uid

OUTPOL = ['']
BLOCK = [[0, 6, 5], [2, 1, 7], [4, 3, 8]]

def gen_r(a, mode, layer, pr, tail=None, cp="sc1", lds=0, vm=None, after_issue=None, early=True):
    vm = vm or VM(a)
    VA, VN, T0 = 4, 5, 6
    DATA, SUM, PK, XO = (16, 28, None, 16) if mode == 'first' else (16, 128, 152, 168)
    sT, sN = 28, 31
    a(f"v_and_b32 v6, 7, v{V_LANE}", f"v_lshrrev_b32 v7, 3, v{V_LANE}")
    a(f"s_and_b32 s23, s{S_I}, 1", "s_lshl_b32 s23, s23, 3")
    a("v_add_u32 v8, s23, v6", "v_lshlrev_b32 v8, 4, v8", f"v_lshl_add_u32 v{VA}, v7, 8, v8")
    a(f"s_lshl_b32 s24, s{S_X}, 4", f"s_lshr_b32 s25, s{S_I}, 1", "s_add_u32 s24, s24, s25", f"s_mul_i32 s20, s24, {TILE}")
    if mode != "mid":
        a(f"s_lshl_b32 s24, s{S_X}, 8", f"s_lshl_b32 s25, s{S_I}, 3", "s_add_u32 s24, s24, s25",
          "s_and_b32 s25, s24, 1023", "s_lshl_b32 s25, s25, 1", "s_lshr_b32 s24, s24, 10", "s_add_u32 s24, s24, s25",
          "s_mul_i32 s21, s24, 1152")
        a("v_mul_u32_u24 v8, 2304, v6", f"v_lshl_add_u32 v{VN}, v7, 4, v8")
        if mode == "last":
            a(f"s_load_dwordx2 s[12:13], s[0:1], {KA['out']}", "s_waitcnt lgkmcnt(0)")
            srd(a, 16, 12, S * D * 2)
    a(f"s_lshl_b32 s22, s{S_WAVE}, 2")
    for j in range(3):
        a(f"s_lshr_b32 s23, {sum(BLOCK[w][j] << (4*w) for w in range(3))}, s22", "s_and_b32 s23, s23, 15", "s_lshl_b32 s24, s23, 11", f"s_add_u32 s{sT+j}, s20, s24")
        if mode != "mid": a("s_lshl_b32 s24, s23, 7", f"s_add_u32 s{sN+j}, s21, s24")
    tags = {}
    def load(s, j):
        base = X1[layer] if s == 0 else PART[layer] + (s-1) * ACT
        r = DATA + 12*s + 4*j; t = 24 + (s + j) % 2
        a(f"s_add_u32 s{t}, s{sT+j}, {base}")
        tags[s, j] = vm.op(f"buffer_load_dwordx4 v[{r}:{r+3}], v{VA}, {WS}, s{t} offen {ldpol()}")
    if mode == "first":
        a(f"s_cmp_eq_u32 s{S_WAVE}, 3", "s_cselect_b64 vcc, -1, 0", f"v_mov_b32 v8, {OOB}", f"v_cndmask_b32 v{VA}, v{VA}, v8, vcc", f"v_cndmask_b32 v{VN}, v{VN}, v8, vcc")
        for j in range(3):
            vm.op(f"buffer_load_dwordx4 v[{DATA+4*j}:{DATA+4*j+3}], v{VN}, s[16:19], s{sN+j} offen nt")
        order = [(0, j) for j in range(3)]
        after_issue()
    else:
        fl = FLAGS + layer*FL_LAYER
        a(f"s_lshl_b32 s26, s{S_X}, {5+FS}", f"s_add_u32 s27, s26, {fl + FL_Q}", f"s_add_u32 s26, s26, {fl + FL_P}",
          f"v_and_b32 v6, 31, v{V_LANE}", f"v_lshlrev_b32 v6, {FS}, v6")
        if early: a(f"buffer_load_dwordx2 v[10:11], v6, {WS}, s27 offen sc1")
        commit(a)
        pr.stamp("fend")
        for j in range(3): load(0, j)
        order = [(0, j) for j in range(3)]
        if early:
            _uid[0] += 1; u = _uid[0]
            a(f"v_cmp_eq_u64 vcc, s[{NONCE}:{NONCE+1}], v[10:11]", "s_nop 0", "s_cmp_eq_u64 vcc, exec", f"s_cbranch_scc0 L_re_slow{u}")
            a.label(f"L_re_back{u}")
            tail.label(f"L_re_slow{u}"); await_flags(tail, 6, 27); tail(f"s_branch L_re_back{u}")
            for s in range(1, 9): load(s, 0)
            order += [(s, 0) for s in range(1, 9)]
            a(f"s_cmp_eq_u32 s{S_WAVE}, 0", f"s_cbranch_scc0 L_re1_{u}")
            n0 = vm.n
            for s in range(1, 9): load(s, 1)
            vm.n = n0; a.label(f"L_re1_{u}")
        pr.stamp('rpre')
        await_flags(a, 6, 26)
        pr.stamp("rgo")
        late = [(s, j) for j in range(3) for s in range(1, 9) if (s, j) not in order]
        for s, j in late:
            if early and (s, j) == (1, 1): a(f"s_cmp_eq_u32 s{S_WAVE}, 0", f"s_cbranch_scc1 L_re2_{u}", "; @if")
            load(s, j)
            if early and (s, j) == (8, 1): a("; @endif"); a.label(f"L_re2_{u}")
        order += late
    for n, (s, j) in enumerate(order):
        if mode != 'first': vm.wait(tags[s, j])
        if n == len(order) - 16: pr.stamp("r1")
        for d in range(4):
            src = DATA + 12*s + 4*j + d; lo = SUM + 8*j + 2*d
            if s == 0:
                a(f"v_lshlrev_b32 v{lo}, 16, v{src}", f"v_and_b32 v{lo+1}, 0xffff0000, v{src}")
            else:
                t = T0 + 2*(d % 2)
                a(f"v_lshlrev_b32 v{t}, 16, v{src}", f"v_and_b32 v{t+1}, 0xffff0000, v{src}",
                  f"v_add_f32 v{lo}, v{lo}, v{t}", f"v_add_f32 v{lo+1}, v{lo+1}, v{t+1}")
    pr.stamp("rsum")
    pk = DATA if mode == "first" else PK
    if mode != "first":
        for d in range(12): a(f"v_cvt_pk_bf16_f32 v{PK+d}, v{SUM+2*d}, v{SUM+2*d+1}")
    if mode == "last":
        for j in range(3):
            vm.op(f"buffer_store_dwordx4 v[{PK+4*j}:{PK+4*j+3}], v{VN}, s[16:19], s{sN+j} offen {OUTPOL[0]}")
        return
    nl = 0 if mode == "first" else layer + 1
    def put(src, base):
        for j in range(3):
            a(f"s_add_u32 s{24 + j % 2}, s{sT+j}, {base}")
            vm.op(f"buffer_store_dwordx4 v[{src+4*j}:{src+4*j+3}], v{VA}, {WS}, s{24 + j % 2} offen {stpol()}")
    a(f"v_add_f32 v6, v{SUM}, v{SUM+1}", f"v_mul_f32 v7, v{SUM}, v{SUM}", f"v_mul_f32 v9, v{SUM+1}, v{SUM+1}", "v_mov_b32 v8, 0")
    for e in range(2, 24, 2):
        a(f"v_add_f32 v6, v6, v{SUM+e}", f"v_add_f32 v8, v8, v{SUM+e+1}",
          f"v_fmac_f32 v7, v{SUM+e}, v{SUM+e}", f"v_fmac_f32 v9, v{SUM+e+1}, v{SUM+e+1}")
    a("v_add_f32 v6, v6, v8", "v_add_f32 v7, v7, v9")
    xreduce(a, [6, 7], 8, steps=("8", "16", "32"))
    a(f"v_and_b32 v10, 7, v{V_LANE}", "v_lshlrev_b32 v10, 3, v10", f"v_add_u32 v10, {lds}, v10", f"s_lshl_b32 s24, s{S_WAVE}, 6", "v_add_u32 v11, s24, v10")
    pr.stamp("rxr")
    a("ds_write_b64 v11, v[6:7]")
    put(pk, XR[nl])
    a("s_waitcnt lgkmcnt(0)", "s_barrier")
    pr.stamp("rbar")
    a("ds_read_b64 v[6:7], v10", "ds_read_b64 v[8:9], v10 offset:64", "ds_read_b64 v[12:13], v10 offset:128", "s_waitcnt lgkmcnt(0)")
    a("v_add_f32 v6, v6, v8", "v_add_f32 v7, v7, v9", "v_add_f32 v6, v6, v12", "v_add_f32 v7, v7, v13")
    a(f"v_mul_f32 v6, {f32(1/576)}, v6", f"v_mul_f32 v7, {f32(1/576)}, v7", "v_fma_f32 v7, -v6, v6, v7",
      "v_max_f32 v7, 0, v7", f"v_add_f32 v7, {f32(1e-5)}, v7", "v_rsq_f32 v7, v7")
    a("v_mul_f32 v6, v6, v7")
    for j in range(3):
        for e in range(8*j, 8*j + 8): a(f"v_fma_f32 v{SUM+e}, v{SUM+e}, v7, -v6")
        for d in range(4*j, 4*j + 4): a(f"v_cvt_pk_bf16_f32 v{XO+d}, v{SUM+2*d}, v{SUM+2*d+1}")
        a(f"s_add_u32 s{24 + j % 2}, s{sT+j}, {XN[nl]}")
        vm.op(f"buffer_store_dwordx4 v[{XO+4*j}:{XO+4*j+3}], v{VA}, {WS}, s{24 + j % 2} offen {stpol()}")
    a(f"s_lshl_b32 s24, s{S_X}, 5", f"s_add_u32 s24, s24, s{S_I}")
    set_flag_addr(a, 24, FLAGS + nl*FL_LAYER + FL_R)
```

```python
S, D, H, DH, DF = 2048, 576, 32, 18, 4608
TILE = 18432
ACT = 128 * TILE
WS_BYTES = 268435456

import os as _os
_off = int(_os.environ.get("WSBASE", 0)) << 20
def _alloc(n):
    global _off
    o = _off
    _off += (n + 4095) // 4096 * 4096
    return o

import os
FS = int(os.environ.get('FS', 7))
FLAG_BYTES = 16 * 1024 << 8
FLAGS = _alloc(FLAG_BYTES)
FL_LAYER = 8 * 1024 << FS
FL_H, FL_O, FL_X, FL_P, FL_R, FL_Q = [n * 1024 << FS for n in (0, 3, 4, 5, 6, 7)]
FL_K = FL_LAYER + FL_Q
EPOCH = _alloc(4096)
PQ_TASK = 126 * 1024
PQ = _alloc(16 * PQ_TASK + 4096)
PO_TASK = 90 * 1024
PO = _alloc(8 * PO_TASK + 8192)
PF_TASK = 486 * 1024
PF = _alloc(32 * PF_TASK + 32768)
XN = [_alloc(ACT) for _ in range(2)]
XR = [_alloc(ACT) for _ in range(2)]
OB = [_alloc(ACT) for _ in range(2)]
X1 = [_alloc(ACT) for _ in range(2)]
STAT_BYTES = 128 * 8 * 128
ST = [_alloc(STAT_BYTES) for _ in range(2)]
HB_BYTES = 8 * 8 * 16 * TILE
HB = [_alloc(HB_BYTES) for _ in range(2)]
PART = [_alloc(8 * ACT) for _ in range(2)]
PROF = _alloc(2 * 1024 * 256)
WS_USED = _off
assert WS_USED <= WS_BYTES

KPOS = [(0, 0), (0, 1), (0, 2)] + [(rel, p) for p in range(3) for rel in (1, 2, 3)] + [(rel, 3) for rel in range(4)] + [("mix", 0), ("mix", 1)]
OS = int(os.environ.get("OS", 0))
KBLOCKS = [(p, 2, range(8)) for p in range(0, 8, 2)] + [(p, 2, range(4)) for p in range(8, 16, 2)] + [(0, 2*OS, [8]), (16, 2, range(4))] \
        + [(p, 2, range(4, 8)) for p in range(8, 18, 2)] + [(2*OS, 18 - 2*OS, [8])]

def kbase(m): return (9 * m + 1) >> 1

def kstep_of(member, pos):
    rel, p = KPOS[pos]
    if rel == "mix": return 4 if p == 0 else 13
    return kbase((member + rel) & 3) + p

def pd_index(pos, t):
    n0 = 0
    for start, n, tiles in KBLOCKS:
        if start <= pos < start + n and t in tiles: return n0 + list(tiles).index(t) * n + (pos - start)
        n0 += n * len(tiles)

def hidden_col(c, q, i):
    return 64 * (c >> 1) + 16 * q + 4 * (i & 3) + 2 * (c & 1) + (i >> 2)
```

```python
from gen_common import *
from gen_common import _uid
import re

RAW, AD, PKD, MU, VL = 76, 156, 176, 20, 4
RAWD, PKDD, ADD, VLD = RAW, PKD, AD, 24
GR = 124
LX = 159744
assert all((n*147) >> 10 == n//7 for n in range(128)) and all((n*205) >> 10 == n//5 for n in range(96))

def arms(a, name, tests, bodies):
    for n, body in enumerate(bodies):
        if n < len(tests): a(tests[n], f"s_cbranch_scc0 L_{name}_{n}", "; @if")
        body()
        if n < len(tests): a(f"s_branch L_{name}_e", "; @else"); a.label(f"L_{name}_{n}")
    a(["; @endif"]*len(tests)); a.label(f"L_{name}_e")

def nonce(a):
    a("v_readfirstlane_b32 s12, v14", "v_readfirstlane_b32 s13, v15", f"s_add_u32 s{NONCE}, s12, 1", f"s_addc_u32 s{NONCE+1}, s13, 0")

def stage_rows(a, vm, n, stride, group):
    a(f"v_mul_u32_u24 v9, {stride}, v7", "v_lshl_add_u32 v9, v6, 4, v9", "v_cmp_gt_u32 vcc, 9, v6", "v_cndmask_b32 v9, v12, v9, vcc")
    for g in range(n):
        a(f"s_add_u32 m0, s43, {1024*g}", f"s_add_u32 s41, s42, {group(g)}")
        vm.op("buffer_load_dwordx4 v9, s[44:47], s41 offen lds")

def fragment(a, vm, n, addr, offs, dst, imm):
    r = GR + 8*(n % 4)
    for i in range(8): a(f"ds_read_u16 v{r+i}, v{addr} offset:{offs[i]}")
    def finish(younger):
        a(f"s_waitcnt lgkmcnt({younger})")
        for d in range(4): a(f"v_lshl_or_b32 v{r+d}, v{r+2*d+1}, 16, v{r+2*d}")
        vm.op(f"buffer_store_dwordx4 v[{r}:{r+3}], v{V_L16}, {WS}, s{dst} offen offset:{imm} sc1")
    return finish

def run_fragments(jobs):
    pend = None
    for job in jobs:
        fin = job()
        if pend: pend(8)
        pend = fin
    pend(0)

def pack_q_issue(a, vm, nk):
    srd(a, 44, 58, D * 3 * D * 2)
    a(f"s_mul_i32 s42, s40, {32*3456}", f"s_mul_i32 s43, s{S_WAVE}, {8*3456}", "s_add_u32 s42, s42, s43", f"s_mul_i32 s43, s{S_X}, 144", "s_add_u32 s42, s42, s43")
    first = True
    for ks in range(nk):
        for seg in range(3):
            a(f"s_lshl_b32 s43, s{S_WAVE}, 11", f"s_add_u32 s43, s43, {(ks*3 + seg)*8192}")
            if first: stage_rows(a, vm, 2, 3456, lambda g: ks*32*3456 + seg*1152 + g*4*3456); first = False
            else:
                for g in range(2):
                    a(f"s_add_u32 m0, s43, {1024*g}", f"s_add_u32 s41, s42, {ks*32*3456 + seg*1152 + g*4*3456}")
                    vm.op("buffer_load_dwordx4 v9, s[44:47], s41 offen lds")

def pack_q_finish(a, vm, nk):
    a(f"s_and_b32 s41, s{S_WAVE}, 1", "s_mul_i32 s42, s41, 72", f"s_lshl_b32 s43, s{S_X}, 1", "s_add_u32 s41, s41, s43", f"s_mul_i32 s41, s41, {PQ_TASK}",
      f"s_mul_i32 s43, s40, {7*1024}", "s_add_u32 s41, s41, s43", f"s_add_u32 s41, s41, {PQ}", f"s_lshr_b32 s43, s{S_WAVE}, 1", "s_lshl_b32 s29, s43, 12", "s_add_u32 s41, s41, s29")
    a(f"v_and_b32 v6, 15, v{V_LANE}", f"v_lshrrev_b32 v7, 4, v{V_LANE}", "v_lshlrev_b32 v10, 11, v7", "v_add_u32 v10, s42, v10", "v_lshl_add_u32 v11, v6, 1, v10")
    a("v_and_b32 v9, 1, v6", "v_bfe_u32 v13, v6, 1, 1", "v_mad_u32_u24 v9, v13, 18, v9", "v_lshl_add_u32 v9, v9, 1, v10", "v_lshrrev_b32 v13, 2, v6",
      "v_lshl_add_u32 v9, v13, 13, v9", "v_add_u32 v9, 32, v9", "v_mov_b32 v13, 160", "v_cmp_gt_u32 vcc, 12, v6", "v_cndmask_b32 v9, v13, v9, vcc")
    a("s_cmp_eq_u32 s43, 0", "s_cselect_b64 vcc, -1, 0")
    for j, (lo, hi) in enumerate(((0, None), (36, 16384), (8192, 16384 + 36), (8192 + 36, 0))):
        a(f"v_add_u32 v{4+j}, {lo}, v11")
        if hi is None: a(f"v_cndmask_b32 v{4+j}, v9, v{4+j}, vcc")
        else: a(f"v_add_u32 v13, {hi}, v11", f"v_cndmask_b32 v{4+j}, v13, v{4+j}, vcc")
    for ks in range(nk):
        a(f"s_add_u32 s{20+2*ks}, s41, {ks*7*1024}", f"s_add_u32 s29, s40, {ks}", "s_cmp_lt_u32 s29, 18", f"s_cselect_b32 s{20+2*ks}, s{20+2*ks}, {OOB}",
          "s_cmp_eq_u32 s43, 0", f"s_cselect_b32 s{21+2*ks}, s{20+2*ks}, {OOB}")
    run_fragments([lambda ks=ks, j=j: fragment(a, vm, 4*ks + j, 4+j, [ks*24576 + 256*i for i in range(8)], 20 + 2*ks + (j == 3), 1024*j)
                   for ks in range(nk) for j in range(4)])

def pack_o_issue(a, vm):
    srd(a, 44, 60, D * D * 2)
    a(f"s_mul_i32 s42, s40, {288*1152}", f"s_mul_i32 s43, s{S_WAVE}, {72*1152}", "s_add_u32 s42, s42, s43", f"s_mul_i32 s43, s{S_X}, 144", "s_add_u32 s42, s42, s43",
      f"s_mul_i32 s43, s{S_WAVE}, {72*256}")
    stage_rows(a, vm, 18, 1152, lambda g: g*4*1152)

def pack_o_finish(a, vm):
    a(f"s_mul_i32 s41, s{S_X}, {PO_TASK}", f"s_add_u32 s41, s41, {PO}", "s_lshl_b32 s42, s40, 3", f"s_lshl_b32 s43, s{S_WAVE}, 1", "s_add_u32 s42, s42, s43",
      "s_mul_i32 s42, s42, 5120", "s_add_u32 s20, s41, s42", "s_add_u32 s21, s20, 4096", "s_add_u32 s22, s20, 5120", "s_add_u32 s23, s22, 4096",
      "s_add_u32 s42, s40, 16", "s_mul_i32 s42, s42, 5120", "s_add_u32 s41, s41, s42", f"s_lshl_b32 s42, s{S_WAVE}, 10", "s_add_u32 s24, s41, s42",
      "s_add_u32 s25, s41, 4096", f"s_cmp_eq_u32 s{S_WAVE}, 0", f"s_cselect_b32 s25, s25, {OOB}")
    a("v_and_b32 v9, 3, v6", "v_lshl_add_u32 v9, v8, 3, v9", "v_lshlrev_b32 v9, 1, v9", "v_lshlrev_b32 v10, 1, v6", "v_add_u32 v10, 128, v10",
      "v_mov_b32 v13, 160", "v_cmp_gt_u32 vcc, 8, v6", "v_cndmask_b32 v10, v13, v10, vcc")
    a(f"s_mul_i32 s42, s{S_WAVE}, {72*256}", "v_lshlrev_b32 v11, 10, v7", "v_add_u32 v11, s42, v11", "v_add_u32 v4, v11, v9", "v_add_u32 v5, v11, v10",
      f"v_mul_u32_u24 v11, {72*256}, v7", "v_add_u32 v7, v11, v10", f"s_lshr_b32 s42, s{S_WAVE}, 1", "s_lshl_b32 s42, s42, 6", f"s_and_b32 s43, s{S_WAVE}, 1",
      "s_lshl_b32 s43, s43, 3", "s_add_u32 s42, s42, s43", "v_add3_u32 v6, v11, v9, s42")
    ra = [256*(18*(i >> 2) + (i & 3)) for i in range(8)]; rb = [256*(36*(i >> 2) + [16, 17, 34, 35][i & 3]) for i in range(8)]
    jobs = []
    for ks in range(2):
        for t in range(5):
            col = 0 if t == 4 else 64*(t >> 1) + 8*(t & 1)
            jobs.append(lambda ks=ks, t=t, col=col, n=len(jobs): fragment(a, vm, n, 5 if t == 4 else 4, [ks*36*256 + col + x for x in ra],
                                                                          20 + 2*ks + (t == 4), 0 if t == 4 else 1024*t))
    jobs += [lambda: fragment(a, vm, 10, 6, rb, 24, 0), lambda: fragment(a, vm, 11, 7, rb, 25, 0)]
    run_fragments(jobs)

def rows_issue(a, vm):
    a(f"v_and_b32 v9, 7, v{V_LANE}", f"v_lshrrev_b32 v10, 3, v{V_LANE}", "v_mul_u32_u24 v5, 2304, v9", "v_lshl_add_u32 v5, v10, 4, v5")
    a(f"s_lshl_b32 s36, s{S_X}, 8", "s_lshl_b32 s37, s39, 3", "s_add_u32 s36, s36, s37", "s_and_b32 s37, s36, 1023", "s_lshl_b32 s37, s37, 1",
      "s_lshr_b32 s36, s36, 10", "s_add_u32 s36, s36, s37", "s_mul_i32 s36, s36, 1152")
    for n in range(9): vm.op(f"buffer_load_dwordx4 v[{16+4*n}:{19+4*n}], v5, s[16:19], s36 offen offset:{128*n}")
    a("s_and_b32 s37, s39, 1", "s_lshl_b32 s37, s37, 3", "v_add_u32 v9, s37, v9", "v_lshlrev_b32 v9, 4, v9", "v_lshl_add_u32 v4, v10, 8, v9",
      f"s_lshl_b32 s36, s{S_X}, 4", "s_lshr_b32 s37, s39, 1", "s_add_u32 s36, s36, s37", f"s_mul_i32 s36, s36, {TILE}")

def rows_finish(a, vm):
    DATA, SUM = 16, 52
    def put(base):
        for n in range(9):
            if n % 2 == 0: a(f"s_add_u32 s37, s36, {base + 2048*n}")
            vm.op(f"buffer_store_dwordx4 v[{DATA+4*n}:{DATA+4*n+3}], v4, {WS}, s37 offen offset:{2048*(n % 2)} sc1")
    for d in range(36): a(f"v_lshlrev_b32 v{SUM+2*d}, 16, v{DATA+d}", f"v_and_b32 v{SUM+2*d+1}, 0xffff0000, v{DATA+d}")
    a("s_mov_b32 s37, 0x3f803f80")
    for n in range(4): a(f"v_mov_b32 v{6+n}, 0")
    for d in range(36): a(f"v_dot2_f32_bf16 v{6 + d % 2}, v{DATA+d}, s37, v{6 + d % 2}", f"v_dot2_f32_bf16 v{8 + d % 2}, v{DATA+d}, v{DATA+d}, v{8 + d % 2}")
    put(XR[0])
    a("v_add_f32 v6, v6, v7", "v_add_f32 v7, v8, v9")
    xreduce(a, [6, 7], 8, steps=("8", "16", "32"))
    a(f"v_mul_f32 v6, {f32(1/576)}, v6", f"v_mul_f32 v7, {f32(1/576)}, v7", "v_fma_f32 v7, -v6, v6, v7",
      "v_max_f32 v7, 0, v7", f"v_add_f32 v7, {f32(1e-5)}, v7", "v_rsq_f32 v7, v7", "v_mul_f32 v6, v6, v7")
    for e in range(72): a(f"v_fma_f32 v{SUM+e}, v{SUM+e}, v7, -v6")
    for d in range(36): a(f"v_cvt_pk_bf16_f32 v{DATA+d}, v{SUM+2*d}, v{SUM+2*d+1}")
    put(XN[0])

def w1_load(kk, i):
    r = RAW + 16*kk + 2*i
    return [f"buffer_load_dwordx2 v[{r}:{r+1}], v{VL if kk < 4 else VL+1}, s[48:51], s53 offen", f"s_add_u32 s53, s53, {9216 if i < 7 else 25*9216}"]

def wd_load(kk, i):
    out = [f"s_add_u32 s43, s37, {(4*(i & 3) + 2*kk + (i >> 2))*1152}"]
    for Q in range(2):
        r = RAWD + 40*kk + 16*Q + 2*i
        out.append(f"buffer_load_dwordx2 v[{r}:{r+1}], v{VLD}, s[16:19], s43 offen offset:{128*Q}")
    return out + [f"buffer_load_ushort v{RAWD + 40*kk + 32 + i}, v{VLD+1}, s[16:19], s43 offen offset:1024"]
WD_LOADS = [x for kk in range(2) for i in range(8) for x in wd_load(kk, i)]

def spread(a, v, AD=AD, s0=40):
    for n0 in range(0, 20, 4):
        for n in range(n0, n0+4): a(f"v_readlane_b32 s{s0 + n - n0}, v{v}, {n}")
        for n in range(n0, n0+4): a(f"v_add_u32 v{AD+n}, s{s0 + n - n0}, v{V_L16}")

def quad_perm(a, raw, dst, sel=34):
    for j in range(4):
        for d in range(4):
            a(f"v_perm_b32 v{dst + 4*j + d}, v{raw + 4*d + 2 + (j >> 1)}, v{raw + 4*d + (j >> 1)}, s{sel + (j & 1)}")

def center_items(n):
    t = 24 + (12*(n & 1) if n < NPC[0] else 0); mu = MU + (n & 3); r = PKD + 4*n
    out = [f"v_dot2_f32_bf16 v{t + 2*d + h}, v{r+d}, s{38+h}, v{mu}" for d in range(4) for h in range(2)]
    return out + [f"v_cvt_pk_bf16_f32 v{r+d}, v{t + 2*d}, v{t + 2*d + 1}" for d in range(4)]

def store_item(n): return f"buffer_store_dwordx4 v[{PKD+4*n}:{PKD+4*n+3}], v{AD+n}, {WS}, 0 offen sc1"

WIN = [2]; S_HOP = 15; EARLY_HOPS = [1]; ADFIRST = [1]; NPC = [12]
def role_w1(a, pr):
    def loads():
        for kk in range(WIN[0]):
            for i in range(8): a(w1_load(kk, i))
        pr.stamp("p2")
    if True:
        div(a, 40, 2, 72, 144)
        a("s_mul_i32 s41, s40, 72", "s_sub_u32 s41, s2, s41", "s_cmp_eq_u32 s40, 0", "s_cselect_b64 s[12:13], s[64:65], s[66:67]")
        srd(a, 48, 12, D * DF * 2)
        a("s_lshl_b32 s42, s41, 7", "v_lshlrev_b32 v9, 3, v6", f"v_mul_u32_u24 v10, {8*9216}, v7", f"v_add3_u32 v{VL}, v9, v10, s42")
        a(f"s_bitcmp1_b32 s{S_WAVE}, 0", "s_cselect_b64 vcc, -1, 0", f"v_cndmask_b32 v{VL+1}, v{VL}, v12, vcc")
        a(f"s_mul_i32 s43, s{S_WAVE}, 9", "s_add_u32 s43, s43, 1", "s_lshr_b32 s43, s43, 1", f"s_mul_i32 s53, s43, {32*9216}")
        if not ADFIRST[0]: loads()
        div(a, 42, 41, 9, 72)
        a("s_mul_i32 s35, s42, 9", "s_sub_u32 s41, s41, s35", "s_lshl_b32 s41, s41, 2", "s_lshl_b32 s42, s42, 2", "s_lshl_b32 s40, s40, 11",
          f"s_add_u32 s40, s40, {PF}", f"s_mov_b32 s35, {PF_TASK}")
        a(f"v_and_b32 v6, 3, v{V_LANE}", "v_add_u32 v6, s41, v6", "v_mul_u32_u24 v7, 57, v6", "v_lshrrev_b32 v7, 9, v7",
          "v_mul_u32_u24 v8, 9, v7", "v_sub_u32 v6, v6, v8", "v_subrev_u32 v8, 1, v6", "v_min_u32 v8, 8, v8",
          "v_and_b32 v9, 1, v7", "v_cmp_eq_u32 vcc, 1, v9", "v_cndmask_b32 v6, v6, v8, vcc",
          "v_add_u32 v7, s42, v7", "v_mul_lo_u32 v7, v7, s35", "v_add_u32 v7, s40, v7",
          f"v_lshrrev_b32 v8, 2, v{V_LANE}", "v_add_u32 v8, s43, v8", "v_and_b32 v9, 1, v8", "v_lshl_add_u32 v7, v9, 10, v7",
          "v_lshrrev_b32 v9, 1, v8", "v_lshlrev_b32 v9, 12, v9", "v_add_u32 v7, v7, v9",
          "v_lshl_add_u32 v9, v6, 12, v9", f"v_mul_u32_u24 v10, {36*1024}, v6", "v_cmp_gt_u32 vcc, 2, v6", "v_cndmask_b32 v9, v10, v9, vcc",
          "v_add_u32 v7, v7, v9", "v_cmp_gt_u32 vcc, 18, v8", "v_cndmask_b32 v7, v12, v7, vcc",
          f"s_bitcmp1_b32 s{S_WAVE}, 0", "s_cselect_b32 s41, 16, 20", f"v_cmp_gt_u32 vcc, s41, v{V_LANE}", "v_cndmask_b32 v7, v12, v7, vcc")
        spread(a, 7)
        if EARLY_HOPS[0]:
            a(f"s_mov_b32 s{S_HOP}, 2", "s_branch L_hop_enter")
            a.label("L_w1_cont"); a(f"s_mov_b32 s{S_HOP}, 0")
        if ADFIRST[0]: loads()
        a("s_mov_b32 s34, 0x05040100", "s_mov_b32 s35, 0x07060302", "s_mov_b32 s38, 0x00003f80", "s_mov_b32 s39, 0x3f800000")
        for r in range(4): a(f"v_mov_b32 v{68+r}, 0x3f803f80")
        a(f"v_and_b32 v72, 15, v{V_LANE}", "v_lshlrev_b32 v72, 4, v72", f"v_add_u32 v72, {LX}, v72", f"s_lshl_b32 s44, s{S_WAVE}, 2", "v_add_u32 v73, s44, v72")
        for kk in range(5):
            a(f"s_waitcnt vmcnt({8*(min(5, kk + WIN[0]) - kk - 1)})")
            if kk + WIN[0] < 5:
                for i in range(8): a(w1_load(kk + WIN[0], i))
            quad_perm(a, RAW + 16*kk, PKD + 16*kk)
            for j in range(4):
                r = PKD + 16*kk + 4*j; d = 52 + 4*j
                a(f"v_mfma_f32_16x16x32_bf16 v[{d}:{d+3}], v[68:71], v[{r}:{r+3}], {'0' if kk == 0 else f'v[{d}:{d+3}]'}")
        nonce(a)
        pr.stamp("px")
        for j in range(4): a(f"ds_write_b32 v73, v{52 + 4*j} offset:{256*j}")
        a("s_waitcnt lgkmcnt(0)", "s_barrier")
        for j in range(4): a(f"ds_read_b128 v[{52+4*j}:{55+4*j}], v72 offset:{256*j}")
        a("s_waitcnt lgkmcnt(0)")
        for j in range(4): a(f"v_add_f32 v{52+4*j}, v{52+4*j}, v{53+4*j}", f"v_add_f32 v{54+4*j}, v{54+4*j}, v{55+4*j}")
        for j in range(4): a(f"v_add_f32 v{52+4*j}, v{52+4*j}, v{54+4*j}")
        for j in range(4): a(f"v_mul_f32 v{MU+j}, {f32(-1/576)}, v{52+4*j}")
        for n in range(NPC[0]): a(center_items(n))
        pr.stamp("pst")
        if EARLY_HOPS[0]:
            pr.stamp("pend")
            if pr.on: a("s_waitcnt lgkmcnt(0)")
            a("s_branch L_hop_skip")

def role_rows(a, pr, vm):
    n0 = vm.n; p0 = (pr.n, list(pr.names))
    a(f"s_sub_u32 s39, s{S_I}, 18", "s_lshl_b32 s39, s39, 2", f"s_add_u32 s39, s39, s{S_WAVE}")
    def begin(): vm.n = n0; pr.n = p0[0]; pr.names = list(p0[1])
    def landed(): a("s_waitcnt vmcnt(0)", "s_barrier"); nonce(a)
    def rows():
        begin(); rows_issue(a, vm); t = vm.n
        a("s_lshr_b32 s40, s39, 2")
        pack_q_issue(a, vm, 1); pr.stamp("p2")
        nonce_n = vm.n
        vm.wait(t); rows_finish(a, vm); pr.stamp("px")
        vm.wait(nonce_n); a("s_barrier"); nonce(a)
        pack_q_finish(a, vm, 1)
    def heads():
        begin()
        a("s_lshr_b32 s40, s39, 2", "s_mul_i32 s40, s40, 3", "s_sub_u32 s40, s40, 16")
        pack_q_issue(a, vm, 3); pr.stamp("p2"); landed(); pr.stamp("px")
        pack_q_finish(a, vm, 3)
    def proj():
        begin()
        a("s_lshr_b32 s40, s39, 2", "s_sub_u32 s40, s40, 12")
        pack_o_issue(a, vm); pr.stamp("p2"); landed(); pr.stamp("px")
        pack_o_finish(a, vm)
    arms(a, "cr", ["s_cmp_lt_u32 s39, 32", "s_cmp_lt_u32 s39, 48"], [rows, heads, proj])
    pr.stamp("pst")
    a(f"s_lshl_b32 s24, s{S_X}, 5", f"s_add_u32 s24, s24, s{S_I}")
    set_flag_addr(a, 24, FLAGS + FL_R)
    commit(a)
    for j in range(4): a(f"v_mov_b32 v{MU+j}, 0")
    a("s_mov_b32 s38, 0x00003f80", "s_mov_b32 s39, 0x3f800000")
    def wd():
        srd(a, 16, 62, D * DF * 2)
        a(f"v_and_b32 v6, 15, v{V_LANE}", f"v_lshrrev_b32 v7, 4, v{V_LANE}", f"v_mov_b32 v12, {OOB}")
        a("s_sub_u32 s40, s2, 144", f"s_mul_i32 s37, s40, {64*1152}", f"s_lshl_b32 s41, s{S_WAVE}, 8", f"s_lshl_b32 s42, s{S_WAVE}, 5")
        a(f"v_mul_u32_u24 v10, {16*1152}, v7", "v_lshl_add_u32 v9, v6, 3, v10", f"v_add_u32 v{VLD}, s41, v9",
          "v_lshl_add_u32 v9, v6, 1, v10", f"v_add_u32 v{VLD+1}, s42, v9")
        a(WD_LOADS)
        b = a
        b("s_sub_u32 s48, s2, 144")
        div(b, 49, 48, 9, 72)
        b("s_mul_i32 s50, s49, 9", "s_sub_u32 s48, s48, s50", "s_lshl_b32 s48, s48, 1", "s_lshl_b32 s49, s49, 2", f"s_add_u32 s49, s49, s{S_WAVE}",
          f"s_mul_i32 s49, s49, {PF_TASK}", f"s_add_u32 s49, s49, {PF + 324*1024}")
        b(f"v_cmp_lt_u32 vcc, 8, v{V_LANE}", "v_cndmask_b32 v6, 0, 1, vcc", "v_mul_u32_u24 v7, 9, v6", f"v_sub_u32 v7, v{V_LANE}, v7", "v_add_u32 v6, s48, v6")
        b("v_mov_b32 v8, 0")
        for lim in (4, 8, 13): b(f"v_cmp_lt_u32 vcc, {lim}, v6", "v_addc_co_u32 v8, vcc, 0, v8, vcc")
        b("v_mul_u32_u24 v9, 9, v8", "v_add_u32 v9, 1, v9", "v_lshrrev_b32 v9, 1, v9", "v_sub_u32 v9, v6, v9",
          f"v_subrev_u32 v8, s{S_WAVE}, v8", "v_and_b32 v8, 3, v8",
          "v_mul_u32_u24 v10, 3, v9", "v_add3_u32 v10, v10, v8, 2", "v_cmp_eq_u32 vcc, 0, v8", "v_cndmask_b32 v10, v10, v9, vcc",
          "v_add_u32 v11, 12, v8", "v_cmp_eq_u32 vcc, 3, v9", "v_cndmask_b32 v10, v10, v11, vcc",
          "v_cmp_eq_u32 vcc, 4, v6", "v_cndmask_b32 v10, v10, 16, vcc", "v_cmp_eq_u32 vcc, 13, v6", "v_cndmask_b32 v10, v10, 17, vcc")
        b("v_and_b32 v6, 30, v10", "v_and_b32 v8, 1, v10", "v_lshl_add_u32 v8, v7, 1, v8",
          "v_lshl_add_u32 v9, v6, 3, v8",
          "v_lshrrev_b32 v11, 2, v7", "v_lshl_add_u32 v6, v6, 2, v8", "v_lshl_add_u32 v6, v11, 5, v6", "v_add_u32 v6, 32, v6",
          "v_lshrrev_b32 v13, 4, v10", "v_or_b32 v11, v11, v13", f"v_mad_u32_u24 v6, v11, {2*OS}, v6",
          "v_cmp_gt_u32 vcc, 8, v10", "v_cndmask_b32 v9, v6, v9, vcc",
          "v_add_u32 v6, 144, v10", "v_add_u32 v11, 96, v10", f"v_cmp_gt_u32 vcc, {2*OS}, v10", "v_cndmask_b32 v6, v6, v11, vcc", "v_cmp_eq_u32 vcc, 8, v7", "v_cndmask_b32 v9, v9, v6, vcc",
          "v_lshlrev_b32 v9, 10, v9", "v_add_u32 v9, s49, v9", f"v_cmp_gt_u32 vcc, 18, v{V_LANE}", "v_cndmask_b32 v9, v12, v9, vcc")
        spread(b, 9, ADD, 48)
    arms(a, "wd", ["s_cmp_lt_u32 s2, 216"], [wd, lambda: a([f"v_mov_b32 v{r}, {OOB}" for r in list(range(AD, AD + 20)) + [VLD, VLD + 1]])])

def wd_perm(kk, sel):
    a = Asm()
    for Q in range(2): quad_perm(a, RAWD + 40*kk + 16*Q, PKDD + 36*kk + 16*Q, sel)
    for d in range(4):
        r = RAWD + 40*kk + 32 + 2*d
        a(f"v_lshl_or_b32 v{PKDD + 36*kk + 32 + d}, v{r+1}, 16, v{r}")
    return a.lines

def wd_transpose(o, side):
    def wd():
        a = Asm()
        for kk in range(2): a(wd_perm(kk, 46))
        o("s_mov_b32 s46, 0x05040100", "s_mov_b32 s47, 0x07060302")
        weave(o, a.lines, side, start=2, every=2)
    o("s_sub_u32 s48, s2, 144")
    arms(o, "wp", ["s_cmp_lt_u32 s48, 72"], [wd, lambda: o(side)])

def gen_p0(a, pr, code_bytes):
    vm = VM(a)
    a("s_getpc_b64 s[40:41]")
    a.label("L_warm_pc")
    a("s_lshr_b32 s42, s2, 3", "s_lshl_b32 s42, s42, 11", "v_lshlrev_b32 v10, 3, v0", "v_add_u32 v10, s42, v10", f"v_min_u32 v10, {code_bytes}, v10",
      "v_mov_b32 v11, s41", "v_add_co_u32 v10, vcc, s40, v10", "v_addc_co_u32 v11, vcc, 0, v11, vcc")
    a("global_load_dwordx2 a[0:1], v[10:11], off")
    a("v_add_co_u32 v10, vcc, 0x10000, v10", "v_addc_co_u32 v11, vcc, 0, v11, vcc", f"s_add_u32 s42, s42, {0x10000 + 2048}", f"s_cmp_le_u32 s42, {code_bytes}")
    a("s_cbranch_scc0 L_warm_done")
    a("global_load_dwordx2 a[2:3], v[10:11], off")
    a.label("L_warm_done")
    a(f"s_load_dwordx4 s[56:59], s[0:1], {KA['x']}", f"s_load_dwordx2 s[60:61], s[0:1], {KA['wo']}",
      f"s_load_dwordx4 s[64:67], s[0:1], {KA['wg']}", f"s_load_dwordx2 s[62:63], s[0:1], {KA['wd']}")
    common(a)
    pr.stamp("c0", cyc=True); pr.stamp("start")
    srd(a, 16, 56, S * D * 2)
    a(f"v_mov_b32 v3, {EPOCH}")
    vm.op(f"buffer_load_dwordx2 v[14:15], v3, {WS}, 0 offen sc1")
    a(f"v_and_b32 v6, 15, v{V_LANE}", f"v_lshrrev_b32 v7, 4, v{V_LANE}", "v_lshrrev_b32 v8, 2, v6", f"v_mov_b32 v12, {OOB}", "s_mov_b32 s37, 0")
    p0 = (pr.n, list(pr.names))
    def other(): pr.n = p0[0]; pr.names = list(p0[1]); role_rows(a, pr, vm)
    arms(a, "p0", ["s_cmp_lt_u32 s2, 144"], [lambda: role_w1(a, pr), other])
    pr.stamp("pend")

def gen_epoch(a):
    a("s_cmp_lg_u32 s2, 0", "s_cbranch_scc1 L_end", f"v_lshlrev_b32 v4, {FS}, v{V_LANE}")
    for n in range(4):
        a(f"s_mov_b32 s40, {FLAGS + FL_O + (64*n << FS)}")
        await_flags(a, 4, 40)
    a(f"s_mov_b32 s40, {EPOCH}")
    flag_store(a, 40, V_LANE)
    a("s_branch L_end")
```
